```python
import torch

def _softmax(x, axis=-1):
    return torch.softmax(x, dim=axis)

def _gelu(x):
    return torch.nn.functional.gelu(x, approximate='tanh')

def _silu(x):
    return torch.nn.functional.silu(x)

def _sigmoid(x):
    return torch.sigmoid(x)

def _layernorm(x, axis=-1, eps=1e-05):
    m = x.mean(dim=axis, keepdim=True)
    v = x.var(dim=axis, keepdim=True, unbiased=False)
    return (x - m) / torch.sqrt(v + eps)

def _scatter_add(tgt, idx, src, axis=0):
    return tgt.clone().index_add_(axis, idx, src)

def _segment_sum(src, seg, n):
    out = torch.zeros((n,) + src.shape[1:], dtype=src.dtype)
    return out.index_add_(0, seg, src)

def _pad(x, pw):
    flat = tuple((v for pair in reversed(pw) for v in pair))
    return torch.nn.functional.pad(x, flat)
kernel_name = 'parallel_sum__memory_aug_recurrent_mem_tr__dense_activation_mish__prompt'

def setup_inputs():

    _w = lambda a: (lambda t: t.to(torch.bfloat16) if t.is_floating_point() else t)(torch.as_tensor(a))

    def _A_setup():
        B, S, Dm = (1, 2048, 640)
        H, Dh = (32, 128)
        M, seg = (8, 32)
        seg = min(seg, S)
        S = S // seg * seg
        return {'x': _w((lambda *s: torch.randn(*s, dtype=torch.bfloat16) * 0.05)(B, S, Dm)), 'mem0': _w((lambda *s: torch.randn(*s, dtype=torch.bfloat16) * 0.2)(B, M, Dm)), 'Wq': _w((lambda *s: torch.randn(*s, dtype=torch.bfloat16) * 1.6)(Dm, H, Dh) * Dm ** (-0.5)), 'Wk': _w((lambda *s: torch.randn(*s, dtype=torch.bfloat16) * 1.6)(Dm, H, Dh) * Dm ** (-0.5)), 'Wv': _w((lambda *s: torch.randn(*s, dtype=torch.bfloat16) * 0.2)(Dm, H, Dh) * Dm ** (-0.5)), 'Wo': _w((lambda *s: torch.randn(*s, dtype=torch.bfloat16) * 0.2)(H, Dh, Dm) * (H * Dh) ** (-0.5)), 'seg_len': seg}
    _A_in = _A_setup()

    def _B_setup():
        B, S, D, F = (1, 2048, 640, 1728)
        return {'x': _w((lambda *s: torch.randn(*s, dtype=torch.bfloat16) * 0.05)(B, S, D)), 'w1': _w((lambda *s: torch.randn(*s, dtype=torch.bfloat16) * 0.8)(D, F) * D ** (-0.5)), 'b1': _w((lambda *s: torch.randn(*s, dtype=torch.bfloat16) * 0.2)(F)), 'w2': _w((lambda *s: torch.randn(*s, dtype=torch.bfloat16) * 0.1)(F, D) * F ** (-0.5))}
    _B_in = _B_setup()
    return {'A_x': _A_in['x'], 'A_mem0': _A_in['mem0'], 'A_Wq': _A_in['Wq'], 'A_Wk': _A_in['Wk'], 'A_Wv': _A_in['Wv'], 'A_Wo': _A_in['Wo'], 'A_seg_len': _A_in['seg_len'], 'B_x': _B_in['x'], 'B_w1': _B_in['w1'], 'B_b1': _B_in['b1'], 'B_w2': _B_in['w2']}

def reference(A_x, A_mem0, A_Wq, A_Wk, A_Wv, A_Wo, A_seg_len, B_x, B_w1, B_b1, B_w2):

    def _A_ref(x, mem0, Wq, Wk, Wv, Wo, seg_len):
        B, S, Dm = x.shape
        H, Dh = (Wq.shape[1], Wq.shape[2])
        M = mem0.shape[1]
        scale = Dh ** (-0.5)
        n_seg = S // seg_len
        L = M + seg_len
        idx = torch.arange(L)
        mask = (idx[:, None] < M) | (idx[:, None] >= idx[None, :])
        mem = mem0
        outs = []
        for s in range(n_seg):
            xs = x[:, s * seg_len:(s + 1) * seg_len, :].clone()
            h = torch.concatenate([mem, xs], axis=1)
            q = torch.einsum('btd,dhe->bhte', h, Wq)
            k = torch.einsum('btd,dhe->bhte', h, Wk)
            v = torch.einsum('btd,dhe->bhte', h, Wv)
            scores = torch.einsum('bhqe,bhke->bhqk', q, k) * scale
            scores = torch.where(mask[None, None], scores, -1000000000.0)
            p = _softmax(scores, axis=-1)
            o = torch.einsum('bhqk,bhke->bhqe', p, v)
            o = torch.einsum('bhte,hed->btd', o, Wo)
            mem = o[:, :M, :].clone()
            outs.append(o[:, M:, :])
        return torch.concatenate(outs, axis=1)

    def _B_ref(x, w1, b1, w2):
        h = torch.einsum('bsd,df->bsf', x, w1) + b1
        sp = torch.log1p(torch.exp(-torch.abs(h))) + torch.where(h > 0, h, torch.zeros_like(h))
        act = h * torch.tanh(sp)
        return torch.einsum('bsf,fd->bsd', act, w2)
    x = A_x
    xn = _layernorm(x, axis=-1)
    return x + _A_ref(xn, A_mem0, A_Wq, A_Wk, A_Wv, A_Wo, A_seg_len) + _B_ref(xn, B_w1, B_b1, B_w2)
```

```python
import re

REG_RE = re.compile(r'^(v|a|s)(\d+)$')
RNG_RE = re.compile(r'^(v|a|s)\[(\d+):(\d+)\]$')

def parse_reg(tok):
    tok = tok.strip()
    neg = tok.startswith('-')
    if neg: tok = tok[1:]
    if tok.startswith('abs(') and tok.endswith(')'): tok = tok[4:-1]
    if tok.startswith('|') and tok.endswith('|'): tok = tok[1:-1]
    m = REG_RE.match(tok)
    if m: return [(m.group(1), int(m.group(2)))]
    m = RNG_RE.match(tok)
    if m: return [(m.group(1), i) for i in range(int(m.group(2)), int(m.group(3)) + 1)]
    if tok == 'vcc': return [('s', 'vcc_lo'), ('s', 'vcc_hi')]
    if tok in ('vcc_lo', 'vcc_hi', 'm0', 'exec_lo', 'exec_hi'): return [('s', tok)]
    if tok == 'exec': return [('s', 'exec_lo'), ('s', 'exec_hi')]
    return []

TRANS = ('v_exp_f32', 'v_log_f32', 'v_rcp_f32', 'v_rsq_f32', 'v_sqrt_f32', 'v_sin_f32', 'v_cos_f32', 'v_rcp_iflag_f32')

class Ins:
    __slots__ = ('text', 'op', 'kind', 'dst', 'src', 'passes', 'is_trans', 'dpp', 'states', 'line_no', 'cdst', 'srcC', 'wide_store_data', 'target')
    def __init__(self, text):
        self.text = text
        t = text.split(';')[0].split('//')[0].strip()
        self.dst = []; self.src = []; self.passes = 0; self.is_trans = False; self.dpp = False
        self.states = 1; self.srcC = []; self.wide_store_data = []; self.target = None
        if t.endswith(':') or t == '' or t.startswith('.'):
            self.op = t; self.kind = 'label' if t.endswith(':') else 'none'; self.states = 0
            return
        parts = t.split(None, 1)
        op = parts[0]; self.op = op
        rest = parts[1] if len(parts) > 1 else ''
        ops = [x.strip() for x in rest.split(',')] if rest else []
        mods = ''
        if ops:
            last = ops[-1].split()
            if last:
                ops[-1] = last[0]; mods = ' '.join(last[1:])
        R = [parse_reg(o) for o in ops]
        if op == 's_nop':
            self.kind = 'salu'; self.states = int(ops[0], 0) + 1; return
        if op.startswith('s_'):
            self.kind = 'salu'
            if op.startswith('s_cbranch') or op == 's_branch':
                self.target = ops[0]; self.kind = 'branch'
                if 'vcc' in op: self.src = parse_reg('vcc')
                if 'exec' in op: self.src = parse_reg('exec')
                return
            if op.startswith('s_cmp') or op.startswith('s_bitcmp') or op in ('s_waitcnt', 's_barrier', 's_endpgm', 's_sleep', 's_setprio'):
                self.src = sum(R, []); return
            if op.startswith('s_load') or op.startswith('s_memtime') or op.startswith('s_memrealtime'):
                self.kind = 'smem'
            if R:
                self.dst = R[0]; self.src = sum(R[1:], [])
            if 'saveexec' in op:
                self.dst = self.dst + parse_reg('exec'); self.src = self.src + parse_reg('exec')
            return
        if op.startswith('v_mfma') or op.startswith('v_smfmac'):
            self.kind = 'mfma'
            self.dst = R[0]
            if op.startswith('v_smfmac'):
                self.src = R[1] + R[2] + R[3]; self.srcC = R[0]
            else:
                self.src = R[1] + R[2]; self.srcC = R[3]
            if '32x32' in op: self.passes = 8
            elif '16x16' in op: self.passes = 4
            else: raise ValueError(op)
            return
        if op.startswith('v_'):
            self.kind = 'valu'
            base = op
            for suf in ('_e32', '_e64', '_dpp', '_sdwa'):
                if base.endswith(suf): base = base[:-len(suf)]
            self.is_trans = base in TRANS
            self.dpp = ('row_' in mods or 'quad_perm' in mods or 'wave_' in mods or op.endswith('_dpp'))
            if base.startswith('v_cmp'):
                self.dst = R[0]; self.src = sum(R[1:], [])
                if base.startswith('v_cmpx'): self.dst = self.dst + parse_reg('exec')
            elif base.startswith('v_permlane') and 'swap' in base:
                self.dst = R[0] + R[1]; self.src = R[0] + R[1]
            elif base in ('v_add_co_u32', 'v_sub_co_u32', 'v_addc_co_u32', 'v_subb_co_u32', 'v_subrev_co_u32', 'v_div_scale_f32', 'v_mad_u64_u32'):
                self.dst = R[0] + R[1]; self.src = sum(R[2:], [])
            elif base in ('v_fmac_f32', 'v_dot2c_f32_bf16', 'v_pk_fmac_f16', 'v_writelane_b32'):
                self.dst = R[0]; self.src = sum(R, [])
            else:
                self.dst = R[0]; self.src = sum(R[1:], [])
                if base == 'v_cndmask_b32' and len(ops) == 3: self.src += parse_reg('vcc')
            return
        if op.startswith('ds_'):
            self.kind = 'ds'
            if op.startswith('ds_read') or op.startswith('ds_bpermute') or op.startswith('ds_permute') or op.startswith('ds_swizzle'):
                self.dst = R[0]; self.src = sum(R[1:], [])
            else:
                self.src = sum(R, [])
            return
        if op.startswith('global_') or op.startswith('buffer_'):
            self.kind = 'vmem'
            if op in ('buffer_inv', 'buffer_wbl2'): return
            if '_lds_' in op or ' lds' in (' ' + mods):
                self.src = sum(R, []) + [('s', 'm0')]
            elif 'load' in op:
                self.dst = R[0]; self.src = sum(R[1:], [])
            elif 'atomic' in op:
                if 'sc0' in mods.split():
                    self.dst = R[0]; self.src = sum(R[1:], [])
                else:
                    self.src = sum(R, [])
            else:
                self.src = sum(R, [])
                if 'x4' in op or 'x3' in op:
                    self.wide_store_data = R[1] if op.startswith('global_') else R[0]
            return
        raise ValueError("unknown instruction: " + text)

def isv(r): return r[0] in ('v', 'a')

def required(p, c):
    need = 0
    pd = set(p.dst);
    csrc = set(c.src); cdst = set(c.dst); cC = set(c.srcC)
    if p.kind == 'valu':
        vw = {r for r in pd if isv(r)}; sw = {r for r in pd if r[0] == 's'}
        if vw:
            if c.kind == 'mfma' and vw & (csrc | cC): need = max(need, 2)
            if c.kind == 'valu':
                if c.op.startswith('v_permlane') and vw & csrc: need = max(need, 2)
                if c.dpp and vw & csrc: need = max(need, 2)
                if (c.op.startswith('v_readlane') or c.op.startswith('v_readfirstlane')) and vw & csrc: need = max(need, 1)
                if p.is_trans and not c.is_trans and vw & csrc: need = max(need, 1)
            if p.is_trans and c.kind in ('mfma', 'ds', 'vmem') and vw & csrc: need = max(need, 2 if c.kind == 'mfma' else 1)
        if sw:
            ex = {('s', 'exec_lo'), ('s', 'exec_hi')}
            if c.kind == 'valu' and (sw - ex) & csrc:
                need = max(need, 4 if c.op.startswith(('v_readlane', 'v_writelane')) else 2)
            if c.kind == 'vmem' and sw & csrc: need = max(need, 5)
            if c.kind in ('salu', 'branch', 'smem') and sw & csrc: need = max(need, 3)
            if sw & ex:
                if c.kind == 'valu' and (c.dpp or c.op.startswith(('v_readlane', 'v_readfirstlane', 'v_writelane', 'v_permlane'))): need = max(need, 5)
                if c.kind == 'mfma': need = max(need, 4)
    if p.kind == 'valu' and p.op.startswith('v_dot'):
        if pd & (csrc | cdst | cC):
            chain = (c.op == p.op)
            if chain:
                s2 = c.src[-1:]
                chain = (pd & csrc) <= set(s2)
            if not chain: need = max(need, 3)
    if p.kind == 'mfma':
        D = pd
        lat = {4: 8, 8: 12}[p.passes]
        if c.kind == 'mfma':
            if D & csrc: need = max(need, lat)
            if D & cC:
                same = (cC == D) and c.op == p.op
                if not same: need = max(need, {4: 6, 8: 10}[p.passes])
            if (D & cdst) and not (D & cC):
                need = max(need, lat)
        elif c.kind in ('valu',):
            if D & (csrc | cdst): need = max(need, lat)
        elif c.kind in ('ds', 'vmem'):
            if D & (csrc | cdst): need = max(need, lat)
        if c.kind == 'valu' and set(p.srcC) & cdst: need = max(need, {4: 3, 8: 7}[p.passes])
    if p.kind == 'salu' and ('s', 'm0') in pd:
        if c.kind == 'vmem' and ('s', 'm0') in csrc: need = max(need, 1)
    if p.kind == 'vmem' and p.wide_store_data:
        if c.kind in ('valu', 'mfma') and set(p.wide_store_data) & cdst: need = max(need, 2)
        if c.kind in ('ds', 'vmem') and set(p.wide_store_data) & cdst: need = max(need, 1)
    return need

MAXLOOK = 24

class Asm:
    def __init__(self):
        self.lines = []
        self.uid = 0
    def __call__(self, text):
        for l in text.split('\n'):
            self.lines.append(l)
    def label(self, name): self.lines.append(name + ':')
    def newlabel(self, p='L'):
        self.uid += 1
        return f"{p}_{self.uid}"
    def comment(self, t): self.lines.append('; ' + t)
    def defer(self, fn):
        if not hasattr(self, 'tail'): self.tail = []
        self.tail.append(fn)
    def flush(self):
        t = getattr(self, 'tail', []); self.tail = []
        for fn in t: fn()
    def retry(self, loop_label, spin_sreg, spin_max, cond='vccnz', sleep=0):
        stub = self.newlabel(loop_label + "_s")
        self(f"s_cbranch_{cond} {stub}")
        def fn():
            self.label(stub)
            if sleep: self(f"s_sleep {sleep}")
            self(f"s_add_u32 s{spin_sreg}, s{spin_sreg}, 1")
            self(f"s_cmp_lt_u32 s{spin_sreg}, {spin_max}")
            self(f"s_cbranch_scc1 {loop_label}")
            self("s_endpgm")
        self.defer(fn)
    def finish(self):
        out = []
        nins = 0
        for l in self.lines:
            ins = Ins(l)
            if ins.kind not in ('label', 'none'):
                dist = 0; need = 0
                for p in reversed(out):
                    if p.kind in ('label', 'none'): continue
                    if p.kind == 'branch' and p.op == 's_branch': break
                    if p.op == 's_endpgm': break
                    r = required(p, ins)
                    if r - dist > need: need = r - dist
                    dist += p.states
                    if dist >= MAXLOOK: break
                while need > 0:
                    k = min(need, 16)
                    out.append(Ins(f"s_nop {k-1}")); need -= k; nins += 1
            out.append(ins)
        labels = {}
        for i, p in enumerate(out):
            if p.kind == 'label': labels[p.op[:-1]] = i
        problems = []
        for i, b in enumerate(out):
            if b.kind != 'branch': continue
            if b.target not in labels: raise ValueError("undefined label " + b.target)
            j = labels[b.target]
            pre = []
            dist = 0
            for p in reversed(out[:i + 1]):
                if p.kind in ('label', 'none'): continue
                pre.append(p); dist += p.states
                if dist >= MAXLOOK: break
            d2 = 0
            for c in out[j:]:
                if c.kind in ('label', 'none'): continue
                dist = d2
                for p in pre:
                    r = required(p, c)
                    if r > dist: problems.append((p.text, c.text, r, dist, b.text))
                    dist += p.states
                    if dist >= MAXLOOK: break
                d2 += c.states
                if d2 >= MAXLOOK: break
                if c.kind == 'branch' and c.op == 's_branch': break
        if problems:
            for pr in problems: print("HAZARD across branch:", pr)
            raise ValueError("branch-edge hazards")
        self.nops_inserted = nins
        mx = {'v': -1, 'a': -1, 's': -1}
        for p in out:
            for r in list(p.dst) + list(p.src) + list(p.srcC):
                if isinstance(r[1], int): mx[r[0]] = max(mx[r[0]], r[1])
        self.maxreg = mx
        return [p.text for p in out]

def vr(b, n=1):
    return f"v{b}" if n == 1 else f"v[{b}:{b+n-1}]"
def ar(b, n=1):
    return f"a{b}" if n == 1 else f"a[{b}:{b+n-1}]"
def sr(b, n=1):
    return f"s{b}" if n == 1 else f"s[{b}:{b+n-1}]"

class Cnt:
    def __init__(self, a, name, maxv):
        self.a = a; self.name = name; self.maxv = maxv; self.ops = []
    def issue(self, tag, text):
        if len(self.ops) >= self.maxv:
            n = self.maxv - 1
            self.a(f"s_waitcnt {self.name}({n})"); self.ops = self.ops[len(self.ops) - n:]
        self.a(text); self.ops.append(tag)
    def wait(self, tag):
        if tag not in self.ops: return
        idx = max(i for i, t in enumerate(self.ops) if t == tag)
        n = len(self.ops) - 1 - idx
        n = min(n, self.maxv - 1)
        self.a(f"s_waitcnt {self.name}({n})")
        if n == len(self.ops) - 1 - idx:
            self.ops = self.ops[idx + 1:]
        else:
            self.ops = self.ops[len(self.ops) - n:]
    def waitall(self):
        self.a(f"s_waitcnt {self.name}(0)"); self.ops = []
    def done(self, tag):
        return tag not in self.ops
```

```python
from gen_common import *
from gen_init import f32bits
SPIN_MAX = 0x40000

def gen_att(a, opts={}):
    tl = opts.get('tl', 0)
    KR, QR, VR, XR, MR = 32, 64, 96, 128, 144
    SM0, SM1, S00, S01, S11 = 160, 164, 168, 172, 176
    OA = 180
    LA = 244
    ONES, CNEG, CTRI = 8, 12, 16
    L16, L8, FV, FOA = 1, 2, 3, 4
    T = 20
    S_S, S_NEED, S_SPIN, S_C = 36, 37, 38, 40
    S_K, S_Q, S_V, S_X, S_M, S_O = 44, 46, 48, 50, 52, 54
    a.label("L_A")
    a("v_and_b32 v5, 63, v0")
    a(f"v_lshlrev_b32 v{L16}, 4, v5"); a(f"v_lshlrev_b32 v{L8}, 3, v5")
    a(f"v_and_b32 v{T}, 15, v5"); a(f"v_lshrrev_b32 v{T+1}, 2, v{T}"); a(f"v_and_b32 v{T+2}, 3, v{T}")
    a(f"v_lshlrev_b32 v{T+3}, 12, v{T+1}"); a(f"v_lshl_add_u32 v{T+3}, v{T+2}, 2, v{T+3}")
    a("s_lshl_b32 s35, s34, 6"); a(f"v_add_u32 v{T+3}, s35, v{T+3}")
    a(f"v_and_b32 v{T+4}, 1, v{T}"); a(f"v_lshlrev_b32 v{T+4}, 6, v{T+4}"); a("s_lshl_b32 s35, s34, 7"); a(f"s_add_u32 s35, s35, {FM_OFF}"); a(f"v_add_u32 v{T+4}, s35, v{T+4}")
    a(f"v_cmp_gt_u32 vcc, 3, v{T+1}")
    a(f"v_cndmask_b32 v{FV}, v{T+4}, v{T+3}, vcc")
    a(f"v_cmp_le_u32 s[42:43], 3, v{T+1}")
    a("s_lshl_b32 s35, s32, 5"); a("s_add_u32 s35, s35, s34"); a("s_lshl_b32 s35, s35, 6"); a(f"s_add_u32 s35, s35, {FO_OFF}"); a(f"v_mov_b32 v{FOA}, s35")
    for r in range(4): a(f"v_mov_b32 v{ONES+r}, 0x3f803f80")
    a(f"v_lshrrev_b32 v{T}, 4, v5"); a(f"v_and_b32 v{T+1}, 15, v5")
    a(f"v_mov_b32 v{T+2}, 0xff800000"); a(f"v_mov_b32 v{T+3}, 0")
    a(f"v_cmp_gt_u32 vcc, 2, v{T}")
    for r in range(4): a(f"v_cndmask_b32 v{CNEG+r}, v{T+3}, v{T+2}, vcc")
    for r in range(4):
        a(f"v_lshl_add_u32 v{T+4}, v{T}, 2, {r}"); a(f"v_cmp_gt_u32 vcc, v{T+4}, v{T+1}")
        a(f"v_cndmask_b32 v{CTRI+r}, v{T+3}, v{T+2}, vcc")
    a(f"s_mov_b32 s{S_C}, 0x{f32bits(128**-0.5 * 1.4426950408889634):08x}"); a(f"s_mov_b32 s{S_C+1}, s{S_C}")
    a(f"s_mov_b32 s{S_S}, s32")
    a.label("L_A_loop")
    a(f"s_lshl_b32 s35, s{S_S}, 5"); a("s_add_u32 s35, s35, s34")
    a("s_lshl_b32 s39, s35, 13")
    for r, o in ((S_K, WS_KT), (S_Q, WS_QT), (S_V, WS_VT), (S_O, WS_OT)):
        sadd64(a, r, P_WS, o); sadd64(a, r, r, "s39")
    a("s_lshl_b32 s39, s35, 12")
    for r, o in ((S_X, WS_XM), (S_M, WS_VM)):
        sadd64(a, r, P_WS, o); sadd64(a, r, r, "s39")
    a(f"s_add_u32 s{S_NEED}, s{S_S}, 1")
    def wait_flags(tag, fm):
        lp = f"L_A_w{tag}"
        a(f"s_mov_b32 s{S_SPIN}, 0")
        a.label(lp)
        a(f"global_load_dword v{T}, v{FV}, {sp(P_WS)} sc1")
        a("s_waitcnt vmcnt(0)")
        a(f"v_cmp_gt_u32 vcc, s{S_NEED}, v{T}")
        if not fm: a("s_andn2_b64 vcc, vcc, s[42:43]")
        a.retry(lp, S_SPIN, SPIN_MAX, sleep=4)
    wait_flags("a", False)
    a(f"v_add_u32 v6, 4096, v{L16}")
    def ld8(base, sreg):
        for i in range(8):
            a(f"global_load_dwordx4 v[{base+4*i}:{base+4*i+3}], v{L16 if i < 4 else 6}, {sp(sreg)} offset:{1024*(i&3)} sc1")
    ld8(KR, S_K); ld8(QR, S_Q); ld8(VR, S_V)
    a("s_waitcnt vmcnt(8)")
    for ks in range(4):
        for (Sx, kt, qt) in ((S00, 0, 0), (S01, 0, 1), (S11, 1, 1)):
            c = (f"v[{CTRI}:{CTRI+3}]" if kt == qt else "0") if ks == 0 else f"v[{Sx}:{Sx+3}]"
            a(f"v_mfma_f32_16x16x32_bf16 v[{Sx}:{Sx+3}], v[{KR+4*(2*ks+kt)}:{KR+4*(2*ks+kt)+3}], v[{QR+4*(2*ks+qt)}:{QR+4*(2*ks+qt)+3}], {c}")
    wait_flags("b", True)
    for i in range(4): a(f"global_load_dwordx4 v[{XR+4*i}:{XR+4*i+3}], v{L16}, {sp(S_X)} offset:{1024*i} sc1")
    for i in range(8): a(f"global_load_dwordx2 v[{MR+2*i}:{MR+2*i+1}], v{L8}, {sp(S_M)} offset:{512*i} sc1")
    a("s_waitcnt vmcnt(8)")
    for ks in range(4):
        for (Sx, qt) in ((SM0, 0), (SM1, 1)):
            c = f"v[{CNEG}:{CNEG+3}]" if ks == 0 else f"v[{Sx}:{Sx+3}]"
            a(f"v_mfma_f32_16x16x32_bf16 v[{Sx}:{Sx+3}], v[{XR+4*ks}:{XR+4*ks+3}], v[{QR+4*(2*ks+qt)}:{QR+4*(2*ks+qt)+3}], {c}")
    PT = [KR, KR+4]; PM = [KR+8, KR+10]
    def softmax(tiles, mx, t1):
        vals = [t + r for t in tiles for r in range(4)]
        a(f"v_max3_f32 v{mx}, v{vals[0]}, v{vals[1]}, v{vals[2]}")
        i = 3
        while i < len(vals):
            if i + 1 < len(vals): a(f"v_max3_f32 v{mx}, v{mx}, v{vals[i]}, v{vals[i+1]}"); i += 2
            else: a(f"v_max_f32 v{mx}, v{mx}, v{vals[i]}"); i += 1
        a(f"v_mov_b32 v{t1}, v{mx}"); a(f"v_permlane32_swap_b32 v{mx}, v{t1}"); a(f"v_max_f32 v{mx}, v{mx}, v{t1}")
        a(f"v_mov_b32 v{t1}, v{mx}"); a(f"v_permlane16_swap_b32 v{mx}, v{t1}"); a(f"v_max_f32 v{mx}, v{mx}, v{t1}")
        a(f"v_mul_f32 v{mx}, s{S_C}, v{mx}")
        for v in vals: a(f"v_fma_f32 v{v}, v{v}, s{S_C}, -v{mx}")
        for v in vals: a(f"v_exp_f32 v{v}, v{v}")
    softmax([SM0, S00], T, T+1); softmax([SM1, S01, S11], T+2, T+3)
    a(f"v_cvt_pk_bf16_f32 v{PM[0]}, v{SM0}, v{SM0+1}"); a(f"v_cvt_pk_bf16_f32 v{PM[0]+1}, v{SM0+2}, v{SM0+3}")
    a(f"v_cvt_pk_bf16_f32 v{PM[1]}, v{SM1}, v{SM1+1}"); a(f"v_cvt_pk_bf16_f32 v{PM[1]+1}, v{SM1+2}, v{SM1+3}")
    a(f"v_cvt_pk_bf16_f32 v{PT[0]}, v{S00}, v{S00+1}"); a(f"v_cvt_pk_bf16_f32 v{PT[0]+1}, v{S00+2}, v{S00+3}")
    a(f"v_mov_b32 v{PT[0]+2}, 0"); a(f"v_mov_b32 v{PT[0]+3}, 0")
    a(f"v_cvt_pk_bf16_f32 v{PT[1]}, v{S01}, v{S01+1}"); a(f"v_cvt_pk_bf16_f32 v{PT[1]+1}, v{S01+2}, v{S01+3}")
    a(f"v_cvt_pk_bf16_f32 v{PT[1]+2}, v{S11}, v{S11+1}"); a(f"v_cvt_pk_bf16_f32 v{PT[1]+3}, v{S11+2}, v{S11+3}")
    a("s_waitcnt vmcnt(0)")
    for qt in range(2):
        a(f"v_mfma_f32_16x16x32_bf16 v[{LA+4*qt}:{LA+4*qt+3}], v[{ONES}:{ONES+3}], v[{PT[qt]}:{PT[qt]+3}], 0")
    for et in range(8):
        for qt in range(2):
            o = OA + 8*et + 4*qt
            a(f"v_mfma_f32_16x16x32_bf16 v[{o}:{o+3}], v[{VR+4*et}:{VR+4*et+3}], v[{PT[qt]}:{PT[qt]+3}], 0")
    for qt in range(2):
        a(f"v_mfma_f32_16x16x16_bf16 v[{LA+4*qt}:{LA+4*qt+3}], v[{ONES}:{ONES+1}], v[{PM[qt]}:{PM[qt]+1}], v[{LA+4*qt}:{LA+4*qt+3}]")
    for et in range(8):
        for qt in range(2):
            o = OA + 8*et + 4*qt
            a(f"v_mfma_f32_16x16x16_bf16 v[{o}:{o+3}], v[{MR+2*et}:{MR+2*et+1}], v[{PM[qt]}:{PM[qt]+1}], v[{o}:{o+3}]")
    a(f"v_rcp_f32 v{LA}, v{LA}"); a(f"v_rcp_f32 v{LA+4}, v{LA+4}")
    for et in range(8):
        R = QR + 4*et
        for qt in range(2):
            o = OA + 8*et + 4*qt; l = LA + 4*qt
            a(f"v_pk_mul_f32 v[{o}:{o+1}], v[{o}:{o+1}], v[{l}:{l+1}] op_sel_hi:[1,0]")
            a(f"v_pk_mul_f32 v[{o+2}:{o+3}], v[{o+2}:{o+3}], v[{l}:{l+1}] op_sel_hi:[1,0]")
            a(f"v_cvt_pk_bf16_f32 v{R+2*qt}, v{o}, v{o+1}"); a(f"v_cvt_pk_bf16_f32 v{R+2*qt+1}, v{o+2}, v{o+3}")
        a(f"v_permlane16_swap_b32 v{R}, v{R+2}"); a(f"v_permlane16_swap_b32 v{R+1}, v{R+3}")
        a(f"global_store_dwordx4 v{L16 if et < 4 else 6}, v[{R}:{R+3}], {sp(S_O)} offset:{1024*(et&3)} sc1")
    a("s_waitcnt vmcnt(0)")
    a("s_mov_b64 exec, 1")
    a(f"v_mov_b32 v{T}, s{S_NEED}")
    a(f"global_store_dword v{FOA}, v{T}, {sp(P_WS)} sc1")
    a("s_mov_b64 exec, -1")
    a(f"s_add_u32 s{S_S}, s{S_S}, 4"); a(f"s_cmp_lt_u32 s{S_S}, 64"); a("s_cbranch_scc1 L_A_loop")
    a("s_waitcnt vmcnt(0)")
    rt_stamp(a, 2, 24, tl)
    a("s_endpgm")
    a.flush()
```

```python
from asmlib import *

NAME = "parallel_sum__memory_aug_recurrent_mem_tr__dense_activation_mish__prompt"
S, D, H, E, M, SEG, NSEG, F = 2048, 640, 32, 128, 8, 32, 64, 1728

MB = 1 << 20
WS_FLAGS = 0
FK_OFF, FV_OFF, FQ_OFF, FH_OFF, FM_OFF, FO_OFF = 0, 4096, 8192, 12288, 16384, 20480
FLAGS_BYTES = 32768
WS_XN   = 1 * MB
WS_XPL  = 4 * MB
WS_XPR  = 4 * MB + 131072
WS_PART = 5 * MB
WS_KT   = 16 * MB
WS_VT   = 32 * MB
WS_QT   = 48 * MB
WS_XM   = 64 * MB
WS_VM   = 72 * MB
WS_OT   = 80 * MB
WS_H1   = 100 * MB

WS_PROF = 120 * MB

P_X, P_MEM0, P_WQ, P_WK, P_WV, P_WO, P_W1, P_B1, P_W2, P_OUT, P_DBG, P_WS = 8, 10, 12, 14, 16, 18, 20, 22, 24, 26, 28, 30

def sp(p): return f"s[{p}:{p+1}]"

def load_kernargs(a):
    a("s_load_dwordx8 s[8:15], s[0:1], 0")
    a("s_load_dwordx4 s[16:19], s[0:1], 32")
    a("s_load_dwordx4 s[20:23], s[0:1], 64")
    a("s_load_dwordx8 s[24:31], s[0:1], 80")

def sadd64(a, dst, src, imm):
    a(f"s_add_u32 s{dst}, s{src}, {imm}")
    a(f"s_addc_u32 s{dst+1}, s{src+1}, 0")
```

```python
from gen_common import *
SPIN_MAX = 0x40000

def gen_fin(a):
    L16, FOV, FHV, XO, LW, LR, OO = 1, 2, 3, 4, 5, 6, 7
    ACC, ACH, RING, NB = 8, 24, 40, 24
    T = 136
    W2 = 148
    S_S, S_NEED, S_SPIN, S_SET = 36, 37, 38, 39
    S_O, S_H, S_X, S_OUT = 44, 46, 48, 50
    a.label("L_F")
    a(f"s_mov_b32 s{S_SET}, s35")
    a("v_and_b32 v0, 63, v0")
    a(f"v_lshlrev_b32 v{L16}, 4, v0")
    a("v_lshrrev_b32 v2, 2, v0"); a("v_mul_u32_u24 v2, 1280, v2"); a("v_and_b32 v3, 3, v0"); a("v_lshl_add_u32 v2, v3, 4, v2")
    a("s_lshl_b32 s40, s34, 6")
    a("s_mul_i32 s41, s32, 1310720"); a("s_add_u32 s41, s41, s40")
    sadd64(a, 44, P_WO, "s41")
    a("s_mul_i32 s41, s32, 552960"); a("s_add_u32 s41, s41, s40")
    sadd64(a, 46, P_W2, "s41")
    a("s_lshl_b32 s41, s32, 13"); a(f"v_add_u32 v3, s41, v{L16}")
    a("v_lshrrev_b32 v4, 5, v0"); a("v_bfe_u32 v5, v0, 2, 2"); a("v_bfe_u32 v6, v0, 4, 1"); a("v_and_b32 v7, 3, v0")
    a("v_lshlrev_b32 v9, 5, v6"); a("v_lshl_add_u32 v9, v7, 3, v9"); a("v_lshl_add_u32 v9, v5, 6, v9"); a("v_add_u32 v9, s41, v9")
    a("v_lshl_add_u32 v10, v4, 9, v9")
    a("v_lshl_add_u32 v11, v4, 8, v9")
    chunks = [('o', c, 4) for c in range(16)] + [('f', c, 4 if c < 6 else 3) for c in range(7)]
    LAND = 16
    vm = Cnt(a, "vmcnt", 63)
    DEPTH = 7
    def issue(i):
        kind, c, n = chunks[i]
        base = LAND + 16*(i % 8)
        sreg = 44 if kind == 'o' else 46
        for q in range(n):
            vm.issue(i, f"global_load_dwordx4 v[{base+4*q}:{base+4*q+3}], v2, s[{sreg}:{sreg+1}]")
            sadd64(a, sreg, sreg, 20480)
    for i in range(DEPTH): issue(i)
    for i, (kind, c, n) in enumerate(chunks):
        base = LAND + 16*(i % 8); buf = 4096*(i & 1)
        vm.wait(i)
        for q in range(n): a(f"ds_write_b128 v3, v[{base+4*q}:{base+4*q+3}] offset:{buf+1024*q}")
        for kk in range(n):
            for jq in range(2):
                if kind == 'o':
                    ks = 4*c + kk
                    a(f"ds_read_b64_tr_b16 a[{4*ks+2*jq}:{4*ks+2*jq+1}], v10 offset:{buf+1024*kk+256*jq}")
                else:
                    ks = 4*c + kk
                    a(f"ds_read_b64_tr_b16 v[{W2+4*ks+2*jq}:{W2+4*ks+2*jq+1}], v11 offset:{buf+1024*kk+512*jq}")
        a("s_waitcnt lgkmcnt(0)")
        if i + DEPTH < len(chunks): issue(i + DEPTH)
    a("s_barrier")
    a(f"v_and_b32 v{FOV}, 31, v0"); a(f"v_lshlrev_b32 v{FOV}, 6, v{FOV}"); a(f"v_add_u32 v{FOV}, {FO_OFF}, v{FOV}")
    a(f"v_min_u32 v{T}, 55, v0"); a(f"v_lshrrev_b32 v{T+1}, 2, v{T}"); a(f"v_and_b32 v{T}, 3, v{T}"); a(f"v_lshlrev_b32 v{T}, 2, v{T}")
    a(f"v_lshl_add_u32 v{FHV}, v{T+1}, 6, v{T}"); a(f"v_add_u32 v{FHV}, {FH_OFF}, v{FHV}")
    a(f"v_and_b32 v{T}, 31, v0"); a(f"v_mul_u32_u24 v{T}, 1280, v{T}"); a(f"v_lshrrev_b32 v{T+1}, 5, v0"); a(f"v_lshl_add_u32 v{T}, v{T+1}, 3, v{T}")
    a("s_lshl_b32 s40, s34, 6"); a("s_lshl_b32 s41, s32, 4"); a("s_add_u32 s40, s40, s41"); a(f"v_add_u32 v{XO}, s40, v{T}")
    a("s_lshl_b32 s40, s32, 12"); a(f"v_add_u32 v{LW}, s40, v{L16}")
    a("s_lshl_b32 s40, s32, 10"); a(f"v_add_u32 v{LR}, s40, v{L16}")
    a(f"s_mov_b32 s{S_S}, s{S_SET}")
    def wait_flag(tag, voff, need, extra_sreg=None):
        lp = f"L_F_w{tag}"
        a(f"s_mov_b32 s{S_SPIN}, 0")
        a.label(lp)
        if extra_sreg is None: a(f"global_load_dword v{T}, v{voff}, {sp(P_WS)} sc1")
        else: a(f"global_load_dword v{T}, v{voff}, {sp(extra_sreg)} sc1")
        a("s_waitcnt vmcnt(0)")
        a(f"v_cmp_gt_u32 vcc, s{need}, v{T}")
        a.retry(lp, S_SPIN, SPIN_MAX, sleep=4)
    def hbase(sreg_seg):
        a(f"s_mul_i32 s40, s{sreg_seg}, {108*1024}"); a(f"s_mul_i32 s41, s32, {27*1024}"); a("s_add_u32 s40, s40, s41")
        sadd64(a, S_H, P_WS, WS_H1); sadd64(a, S_H, S_H, "s40")
    a(f"s_add_u32 s{S_NEED}, s{S_S}, 1")
    wait_flag("h0", FHV, S_NEED)
    hbase(S_S)
    def h_load(vm, i):
        b = RING + 4*(i % NB)
        vm.issue(('h', i), f"global_load_dwordx4 v[{b}:{b+3}], v{L16}, {sp(S_H)} offset:{1024*(i&3)} sc1")
        if (i & 3) == 3: sadd64(a, S_H, S_H, 4096)
    def h_mfma(vm, i, slot):
        b = RING + 4*(slot % NB)
        vm.wait(('h', i) if slot == i else ('h', i))
        c = "0" if i == 0 else f"v[{ACH}:{ACH+15}]"
        a(f"v_mfma_f32_32x32x16_bf16 v[{ACH}:{ACH+15}], v[{W2+4*i}:{W2+4*i+3}], v[{b}:{b+3}], {c}")
    vm = Cnt(a, "vmcnt", 63)
    for i in range(NB): h_load(vm, i)
    for i in range(27):
        h_mfma(vm, i, i)
        if i + NB < 27: h_load(vm, i + NB)
    a.label("L_F_loop")
    a(f"s_lshl_b32 s40, s{S_S}, 18"); a("s_lshl_b32 s41, s32, 16"); a("s_add_u32 s40, s40, s41")
    sadd64(a, S_O, P_WS, WS_OT); sadd64(a, S_O, S_O, "s40")
    a(f"s_mul_i32 s40, s{S_S}, 40960")
    sadd64(a, S_X, P_X, "s40"); sadd64(a, S_OUT, P_OUT, "s40")
    a(f"s_and_b32 s40, s{S_S}, 3"); a("s_lshl_b32 s40, s40, 11"); sadd64(a, 52, P_WS, "s40")
    a(f"s_add_u32 s{S_NEED}, s{S_S}, 1")
    a(f"s_add_u32 s54, s{S_S}, 2"); a("s_min_u32 s54, s54, 63"); a("s_add_u32 s55, s54, 1")
    wait_flag("h", FHV, 55)
    hbase(54)
    wait_flag("o", FOV, S_NEED, 52)
    vm = Cnt(a, "vmcnt", 63)
    vm.issue('x', f"global_load_dwordx2 v[{T+2}:{T+3}], v{XO}, {sp(S_X)}")
    seq = [('o', i) for i in range(64)] + [('h', i) for i in range(27)]
    def load(k):
        kind, i = seq[k]; b = RING + 4*(k % NB)
        sreg = S_O if kind == 'o' else S_H
        vm.issue(k, f"global_load_dwordx4 v[{b}:{b+3}], v{L16}, {sp(sreg)} offset:{1024*(i&3)} sc1")
        if (i & 3) == 3: sadd64(a, sreg, sreg, 4096)
    for k in range(NB): load(k)
    for k, (kind, i) in enumerate(seq):
        b = RING + 4*(k % NB)
        vm.wait(k)
        if kind == 'o':
            c = f"v[{ACH}:{ACH+15}]" if i == 0 else f"v[{ACC}:{ACC+15}]"
            a(f"v_mfma_f32_32x32x16_bf16 v[{ACC}:{ACC+15}], a[{4*i}:{4*i+3}], v[{b}:{b+3}], {c}")
        else:
            c = "0" if i == 0 else f"v[{ACH}:{ACH+15}]"
            a(f"v_mfma_f32_32x32x16_bf16 v[{ACH}:{ACH+15}], v[{W2+4*i}:{W2+4*i+3}], v[{b}:{b+3}], {c}")
        if k + NB < len(seq): load(k + NB)
        if k == 63:
            a(f"s_lshr_b32 s40, s{S_S}, 1"); a("s_and_b32 s40, s40, 1"); a("s_lshl_b32 s40, s40, 14"); a("s_add_u32 s40, s40, 32768")
            a(f"v_add_u32 v{T+4}, s40, v{LW}"); a(f"v_add_u32 v{T+5}, s40, v{LR}")
            for q in range(4): a(f"ds_write_b128 v{T+4}, v[{ACC+4*q}:{ACC+4*q+3}] offset:{1024*q}")
            a("s_waitcnt lgkmcnt(0)")
            a("s_barrier")
            for w2 in range(4): a(f"ds_read_b128 v[{ACC+4*w2}:{ACC+4*w2+3}], v{T+5} offset:{4096*w2}")
            a("s_waitcnt lgkmcnt(0)")
            for r in range(4):
                a(f"v_add_f32 v{ACC+r}, v{ACC+r}, v{ACC+4+r}"); a(f"v_add_f32 v{ACC+8+r}, v{ACC+8+r}, v{ACC+12+r}")
            for r in range(4): a(f"v_add_f32 v{ACC+r}, v{ACC+r}, v{ACC+8+r}")
            a(f"v_lshlrev_b32 v{ACC+4}, 16, v{T+2}"); a(f"v_and_b32 v{ACC+5}, 0xffff0000, v{T+2}")
            a(f"v_lshlrev_b32 v{ACC+6}, 16, v{T+3}"); a(f"v_and_b32 v{ACC+7}, 0xffff0000, v{T+3}")
            for r in range(4): a(f"v_add_f32 v{ACC+r}, v{ACC+r}, v{ACC+4+r}")
            a(f"v_cvt_pk_bf16_f32 v{T+6}, v{ACC}, v{ACC+1}"); a(f"v_cvt_pk_bf16_f32 v{T+7}, v{ACC+2}, v{ACC+3}")
            vm.issue('st', f"global_store_dwordx2 v{XO}, v[{T+6}:{T+7}], {sp(S_OUT)}")
    a(f"s_add_u32 s{S_S}, s{S_S}, 2"); a(f"s_cmp_lt_u32 s{S_S}, 64"); a("s_cbranch_scc1 L_F_loop")
    a("s_waitcnt vmcnt(0)")
    a("s_endpgm")
    a.flush()
```

```python
from gen_common import *

def gen_init(a):
    a("s_cmp_ge_u32 s2, 128")
    a("s_cbranch_scc1 L_init_exit")
    load_kernargs(a)
    a("s_waitcnt lgkmcnt(0)")
    a("s_cmp_ge_u32 s2, 64")
    a("s_cbranch_scc1 L_init_fill")
    a("s_mul_i32 s3, s2, 40960")
    sadd64(a, 32, P_X, "s3")
    sadd64(a, 34, P_WS, WS_XN)
    sadd64(a, 34, 34, "s3")
    a("v_and_b32 v1, 31, v0")
    a("v_lshrrev_b32 v2, 5, v0")
    a("v_mul_u32_u24 v3, 1280, v1")
    a("v_lshl_add_u32 v3, v2, 4, v3")
    for i in range(10):
        a(f"global_load_dwordx4 v[{16+4*i}:{19+4*i}], v3, s[32:33] offset:{128*i}")
    a("v_lshlrev_b32 v4, 2, v0")
    a("v_lshlrev_b32 v5, 2, v1")
    a("s_waitcnt vmcnt(0)")
    for i in range(40):
        a(f"v_lshlrev_b32 v{64+2*i}, 16, v{16+i}")
        a(f"v_and_b32 v{65+2*i}, 0xffff0000, v{16+i}")
    def reduce(src_regs, sq, ldsoff):
        a("v_mov_b32 v6, 0"); a("v_mov_b32 v7, 0")
        for k, r in enumerate(src_regs):
            acc = 6 + (k & 1)
            if sq:
                a(f"v_sub_f32 v8, v{r}, v10")
                a(f"v_fmac_f32 v{acc}, v8, v8")
            else:
                a(f"v_add_f32 v{acc}, v{acc}, v{r}")
        a("v_add_f32 v6, v6, v7")
        a(f"ds_write_b32 v4, v6 offset:{ldsoff}")
        a("s_waitcnt lgkmcnt(0)")
        a("s_barrier")
        for p in range(8):
            a(f"ds_read_b32 v{144+p}, v5 offset:{ldsoff + 128*p}")
        a("s_waitcnt lgkmcnt(0)")
        a("v_add_f32 v144, v144, v145"); a("v_add_f32 v146, v146, v147"); a("v_add_f32 v148, v148, v149"); a("v_add_f32 v150, v150, v151")
        a("v_add_f32 v144, v144, v146"); a("v_add_f32 v148, v148, v150"); a("v_add_f32 v144, v144, v148")
    regs = list(range(64, 144))
    reduce(regs, False, 0)
    a(f"v_mul_f32 v10, 0x{f32bits(1.0/640):08x}, v144")
    reduce(regs, True, 1024)
    a(f"v_mul_f32 v11, 0x{f32bits(1.0/640):08x}, v144")
    a("v_cvt_pk_bf16_f32 v12, v10, v11")
    a("v_lshlrev_b32 v10, 16, v12")
    a("v_and_b32 v11, 0xffff0000, v12")
    a(f"v_add_f32 v11, 0x{f32bits(1e-5):08x}, v11")
    a("v_cvt_pk_bf16_f32 v12, v11, v11")
    a("v_and_b32 v11, 0xffff0000, v12")
    a("v_sqrt_f32 v11, v11")
    a("v_cvt_pk_bf16_f32 v12, v11, v11")
    a("v_and_b32 v11, 0xffff0000, v12")
    a("v_rcp_f32 v13, v11")
    a("v_lshlrev_b32 v14, 4, v0")
    for i in range(10):
        for k in range(4):
            r0 = 64 + 8*i + 2*k; r1 = r0 + 1
            a(f"v_sub_f32 v{r0}, v{r0}, v10"); a(f"v_sub_f32 v{r1}, v{r1}, v10")
            a(f"v_cvt_pk_bf16_f32 v8, v{r0}, v{r1}")
            a(f"v_lshlrev_b32 v{r0}, 16, v8"); a(f"v_and_b32 v{r1}, 0xffff0000, v8")
            a(f"v_mul_f32 v8, v{r0}, v13"); a(f"v_mul_f32 v9, v{r1}, v13")
            a(f"v_fma_f32 v{r0}, -v8, v11, v{r0}"); a(f"v_fma_f32 v{r1}, -v9, v11, v{r1}")
            a(f"v_fma_f32 v8, v{r0}, v13, v8"); a(f"v_fma_f32 v9, v{r1}, v13, v9")
            a(f"v_cvt_pk_bf16_f32 v{16+4*i+k}, v8, v9")
        a(f"global_store_dwordx4 v14, v[{16+4*i}:{19+4*i}], s[34:35]")
        a("v_add_u32 v14, 4096, v14")
    a("s_waitcnt vmcnt(0)")
    a("s_endpgm")
    a.label("L_init_fill")
    a("s_sub_u32 s3, s2, 64")
    for r in range(4, 8): a(f"v_mov_b32 v{r}, -1")
    for r in range(8, 12): a(f"v_mov_b32 v{r}, 0")
    a("v_lshlrev_b32 v1, 4, v0")
    a("s_mul_i32 s4, s3, 20480")
    sadd64(a, 32, P_WS, WS_PART); sadd64(a, 32, 32, "s4")
    a("v_mov_b32 v2, v1")
    for i in range(5):
        a("global_store_dwordx4 v2, v[4:7], s[32:33]")
        a("v_add_u32 v2, 4096, v2")
    a("s_mul_i32 s4, s3, 1280")
    sadd64(a, 34, P_WS, WS_XPL); sadd64(a, 34, 34, "s4")
    sadd64(a, 36, P_WS, WS_XPR); sadd64(a, 36, 36, "s4")
    a("s_lshl_b32 s4, s3, 9")
    sadd64(a, 38, P_WS, "s4")
    a("s_movk_i32 s5, 80"); a("v_cmp_gt_u32 vcc, s5, v0")
    a("s_and_saveexec_b64 s[40:41], vcc")
    a("s_cbranch_execz L_init_f2")
    a("global_store_dwordx4 v1, v[4:7], s[34:35]")
    a("global_store_dwordx4 v1, v[4:7], s[36:37]")
    a.label("L_init_f2")
    a("s_mov_b64 exec, s[40:41]")
    a("v_cmp_gt_u32 vcc, 32, v0")
    a("s_and_saveexec_b64 s[40:41], vcc")
    a("s_cbranch_execz L_init_f3")
    a("global_store_dwordx4 v1, v[8:11], s[38:39]")
    a.label("L_init_f3")
    a("s_mov_b64 exec, s[40:41]")
    a("s_waitcnt vmcnt(0)")
    a.label("L_init_exit")
    a("s_endpgm")

import struct
def f32bits(x): return struct.unpack("<I", struct.pack("<f", x))[0]
```

```python
from gen_common import *
from gen_init import f32bits

def flag_store(a, sflag_pair, voff_reg, sval, vtmp):
    a("s_mov_b64 exec, 1")
    a(f"v_mov_b32 v{vtmp}, {sval}")
    a(f"global_store_dword v{voff_reg}, v{vtmp}, {sp(sflag_pair)} sc1")
    a("s_mov_b64 exec, -1")

def gen_proj(a, kind):
    L = f"L_{kind}"
    wptr = {'K': P_WK, 'Q': P_WQ, 'V': P_WV, 'H': P_W1}[kind]
    rstride = 3456 if kind == 'H' else 8192
    a.label(L)
    a("v_and_b32 v1, 63, v0")
    a("s_lshl_b32 s35, s34, 8")
    sadd64(a, 36, wptr, "s35")
    a("v_lshrrev_b32 v4, 2, v0")
    a(f"s_mov_b32 s35, {rstride}")
    a("v_mul_lo_u32 v2, v4, s35")
    a("v_and_b32 v5, 3, v0")
    a("v_lshl_add_u32 v2, v5, 4, v2")
    if kind == 'H':
        a("s_cmp_eq_u32 s34, 13"); a("s_cselect_b32 s35, 0, 128")
        a("v_add_u32 v3, s35, v2")
    else:
        a("v_add_u32 v3, 128, v2")
    for c in range(10):
        for i in range(4):
            d = 64 + 16*c + 4*i
            a(f"global_load_dwordx4 v[{d}:{d+3}], v{2 if i < 2 else 3}, s[36:37] offset:{64*(i&1)}")
        if c != 9:
            sadd64(a, 36, 36, 64*rstride)
    a("v_and_b32 v10, 3, v4")
    a("v_bfe_u32 v11, v0, 1, 1")
    a("v_and_b32 v12, 1, v0")
    a("v_lshlrev_b32 v13, 8, v4")
    a("v_lshl_add_u32 v13, v12, 4, v13")
    a("v_lshl_add_u32 v13, v11, 5, v13")
    for i in range(4):
        a(f"v_xor_b32 v14, {i}, v10")
        a(f"v_lshl_add_u32 v{6+i}, v14, 6, v13")
    a("v_lshrrev_b32 v10, 5, v1")
    a("v_bfe_u32 v11, v1, 2, 2")
    a("v_lshl_add_u32 v12, v10, 3, v11")
    a("v_lshlrev_b32 v12, 8, v12")
    a("v_bfe_u32 v13, v1, 4, 1")
    a("s_lshl_b32 s35, s32, 1")
    a("v_add_u32 v13, s35, v13")
    a("v_lshlrev_b32 v14, 1, v11")
    a("v_xor_b32 v13, v13, v14")
    a("v_lshl_add_u32 v12, v13, 5, v12")
    a("v_and_b32 v13, 3, v1")
    a("v_lshl_add_u32 v15, v13, 3, v12")
    rounds = [[0, 1, 2, 3], [4, 5, 6, 7], [8, 9]]
    for ri, rd in enumerate(rounds):
        rem = 4 * (9 - rd[-1])
        a(f"s_waitcnt vmcnt({rem})")
        if ri: a("s_barrier")
        for k, c in enumerate(rd):
            for i in range(4):
                d = 64 + 16*c + 4*i
                a(f"ds_write_b128 v{6+i}, v[{d}:{d+3}] offset:{16384*k}")
        a("s_waitcnt lgkmcnt(0)")
        a("s_barrier")
        for k, c in enumerate(rd):
            for kk in range(4):
                for jq in range(2):
                    ks = 4*c + kk
                    a(f"ds_read_b64_tr_b16 a[{4*ks+2*jq}:{4*ks+2*jq+1}], v15 offset:{16384*k + 4096*kk + 1024*jq}")
            a("s_waitcnt lgkmcnt(0)")
    a("s_barrier")
    if kind == 'H':
        a("s_lshl_b32 s35, s34, 7"); a("s_lshl_b32 s38, s32, 5"); a("s_add_u32 s35, s35, s38")
        a("v_lshrrev_b32 v10, 5, v1"); a("v_lshlrev_b32 v10, 2, v10"); a("v_add_u32 v10, s35, v10")
        a("v_min_u32 v10, 1700, v10")
        a("v_lshlrev_b32 v10, 1, v10")
        for q in range(4):
            a(f"global_load_dwordx2 v[{64+2*q}:{65+2*q}], v10, {sp(P_B1)} offset:{16*q}")
        a("s_waitcnt vmcnt(0)")
        for q in range(4):
            for k in range(2):
                a(f"v_lshlrev_b32 v{80+4*q+2*k}, 16, v{64+2*q+k}")
                a(f"v_and_b32 v{81+4*q+2*k}, 0xffff0000, v{64+2*q+k}")
        a(f"s_mov_b32 s60, 0x{f32bits(-1.4426950408889634):08x}")
    a("s_mul_i32 s35, s32, 10240")
    a("v_lshlrev_b32 v5, 4, v1")
    a("v_add_u32 v2, s35, v5"); a("v_add_u32 v3, 4096, v2"); a("v_add_u32 v4, 8192, v2")
    sadd64(a, 36, P_WS, WS_XN)
    a("s_mov_b32 s40, s35")
    if kind in ('K', 'Q', 'V'):
        ob = {'K': WS_KT, 'Q': WS_QT, 'V': WS_VT}[kind]
        a("s_lshl_b32 s35, s34, 13")
        sadd64(a, 38, P_WS, ob); sadd64(a, 38, 38, "s35")
        a("v_bfe_u32 v10, v1, 4, 1"); a("v_lshlrev_b32 v10, 10, v10")
        a("v_lshrrev_b32 v11, 5, v1"); a("v_lshl_add_u32 v10, v11, 8, v10")
        a("v_and_b32 v11, 15, v1"); a("v_lshl_add_u32 v10, v11, 4, v10")
        a("s_lshl_b32 s35, s32, 11"); a("v_add_u32 v6, s35, v10")
        ostep = 32*8192
        fo = {'K': FK_OFF, 'Q': FQ_OFF, 'V': FV_OFF}[kind]
    else:
        a("s_lshl_b32 s35, s34, 13"); a("s_lshl_b32 s41, s32, 11"); a("s_add_u32 s35, s35, s41")
        sadd64(a, 38, P_WS, WS_H1); sadd64(a, 38, 38, "s35")
        a("v_lshlrev_b32 v6, 4, v1")
        ostep = 108*1024
        fo = FH_OFF
    a("s_lshl_b32 s35, s34, 6"); a("s_lshl_b32 s41, s32, 2"); a("s_add_u32 s35, s35, s41"); a(f"s_add_u32 s35, s35, {fo}")
    a("v_mov_b32 v7, s35")
    if kind == 'H':
        a("s_cmp_eq_u32 s34, 13"); a("s_cselect_b32 s61, 1, 0"); a("s_lshr_b32 s41, s32, 1"); a("s_and_b32 s61, s61, s41"); a("s_xor_b32 s61, s61, 1")
    def dma():
        for g in range(3):
            a(f"s_add_u32 m0, s40, {4096*g}") if g else a("s_mov_b32 m0, s40")
            for i in range(4 if g < 2 else 2):
                a(f"global_load_lds_dwordx4 v{2+g}, s[36:37] offset:{1024*i}")
    dma()
    a("s_mov_b32 s42, 0")
    a("s_waitcnt vmcnt(0)")
    a.label(L + "_loop")
    a("s_waitcnt vmcnt(3)")
    a("s_barrier")
    a("s_cmp_lt_u32 s42, 63"); a("s_cselect_b32 s35, 40960, 0")
    sadd64(a, 36, 36, "s35")
    a("s_xor_b32 s43, s42, 1"); a("s_and_b32 s43, s43, 1"); a("s_mul_i32 s43, s43, 40960")
    a("s_mul_i32 s40, s32, 10240"); a("s_add_u32 s40, s40, s43")
    dma()
    NR = 8
    def rd(ks): a(f"ds_read_b128 v[{32+4*(ks%NR)}:{35+4*(ks%NR)}], v5 offset:{1024*ks}")
    for ks in range(NR): rd(ks)
    for ks in range(40):
        left = min(NR - 1, 39 - ks)
        a(f"s_waitcnt lgkmcnt({left})")
        f = f"v[{32+4*(ks%NR)}:{35+4*(ks%NR)}]"; wv = f"a[{4*ks}:{4*ks+3}]"
        c = "0" if ks == 0 else "v[16:31]"
        if kind == 'V': a(f"v_mfma_f32_32x32x16_bf16 v[16:31], {f}, {wv}, {c}")
        else: a(f"v_mfma_f32_32x32x16_bf16 v[16:31], {wv}, {f}, {c}")
        if ks + NR < 40: rd(ks + NR)
    a("v_xor_b32 v5, 0xa000, v5")
    a("s_waitcnt vmcnt(10)")
    flag_store(a, P_WS, 7, "s42", 8)
    if kind == 'H':
        a("s_cmp_eq_u32 s61, 0"); a(f"s_cbranch_scc1 {L}_skip")
        for g0 in (0, 8):
            R = range(g0, g0 + 8)
            for r in R: a(f"v_add_f32 v{16+r}, v{16+r}, v{80+r}")
            for r in R: a(f"v_mul_f32 v{96+r}, s60, abs(v{16+r})")
            for r in R: a(f"v_exp_f32 v{96+r}, v{96+r}")
            for k, r in enumerate(R): a(f"v_cmp_lt_f32 s[{44+2*k}:{45+2*k}], 0, v{16+r}")
            for r in R: a(f"v_mul_f32 v{112+r}, v{96+r}, v{96+r}")
            for r in R: a(f"v_fma_f32 v{128+r}, 2.0, v{96+r}, 1.0")
            for r in R: a(f"v_fma_f32 v{96+r}, 2.0, v{96+r}, v{112+r}")
            for r in R: a(f"v_add_f32 v{112+r}, v{112+r}, v{112+r}")
            for k, r in enumerate(R): a(f"v_cndmask_b32 v{96+r}, v{96+r}, v{128+r}, s[{44+2*k}:{45+2*k}]")
            for k, r in enumerate(R): a(f"v_cndmask_b32 v{112+r}, 2.0, v{112+r}, s[{44+2*k}:{45+2*k}]")
            for r in R: a(f"v_add_f32 v{112+r}, v{112+r}, v{96+r}")
            for r in R: a(f"v_rcp_f32 v{112+r}, v{112+r}")
            for r in R: a(f"v_mul_f32 v{16+r}, v{16+r}, v{96+r}")
            for r in R: a(f"v_mul_f32 v{16+r}, v{16+r}, v{112+r}")
        for k in range(8): a(f"v_cvt_pk_bf16_f32 v{64+k}, v{16+2*k}, v{17+2*k}")
        a("global_store_dwordx4 v6, v[64:67], s[38:39] sc1")
        a("global_store_dwordx4 v6, v[68:71], s[38:39] offset:1024 sc1")
        a(f"s_branch {L}_done")
        a.label(L + "_skip")
        a(f"global_load_dword v64, v7, {sp(P_WS)} sc1")
        a(f"global_load_dword v65, v7, {sp(P_WS)} sc1")
        a.label(L + "_done")
    else:
        order = [0, 1, 4, 5, 2, 3, 6, 7]
        for pos, dd in enumerate(order):
            a(f"v_cvt_pk_bf16_f32 v{64+pos}, v{16+2*dd}, v{17+2*dd}")
        a("global_store_dwordx4 v6, v[64:67], s[38:39] sc1")
        a("global_store_dwordx4 v6, v[68:71], s[38:39] offset:512 sc1")
    sadd64(a, 38, 38, ostep)
    a("s_add_u32 s42, s42, 1")
    a("s_cmp_lt_u32 s42, 64")
    a(f"s_cbranch_scc1 {L}_loop")
    a("s_waitcnt vmcnt(0)")
    flag_store(a, P_WS, 7, 64, 8)
    a("s_waitcnt vmcnt(0)")
    a("s_endpgm")
```

```python
from gen_common import *
from gen_init import f32bits
from gen_proj import flag_store

L_WO  = 0
L_WS  = 81920
L_IMG = 131072
L_KTB = 141312
L_XIM = 157696
L_OEX = 161792
L_VEX = 162816
L_STG = 81920

V_IDX, V_L16, V_L8, V_AT0, V_AT1, V_XWQ, V_XWK, V_XR, V_KT, V_WO, V_WS, V_OEW, V_OER, V_VEW, V_VER, V_IW0, V_IW2, V_RL = range(1, 19)
V_ONES = 20
V_SEL  = 24
V_CNEG = 28
ACC = 32
V_VT = 52
POOL = 56
AF = POOL; VS = POOL + 40; KT = POOL + 56; XF = POOL + 88
WREG = 160

def wfrag(tile, c):
    order = []
    for cc in range(10):
        for t in ('q0', 'q1', 'k0'): order.append((t, cc))
    for cc in range(4): order.append(('k1', cc))
    for cc in range(10): order.append(('v', cc))
    if (tile, c) not in order: return None
    f = order.index((tile, c))
    return ('a', 8*f) if f < 32 else ('v', WREG + 8*(f - 32))
def wr(tile, c, lo=0, n=8):
    k, b = wfrag(tile, c)
    return f"{k}[{b+lo}:{b+lo+n-1}]"

S_W, S_J, S_G = 32, 34, 35
S_H, S_HF, S_PROD, S_RID, S_RACT, S_STEP = 36, 37, 38, 39, 40, 41
S_T0, S_T1, S_T2, S_T3 = 44, 45, 46, 47
S_PST = 48
S_RL  = 50
S_PUBR, S_PUBL = 58, 60
S_GL, S_GR = 62, 64
S_KT, S_VT, S_XM, S_VM = 66, 68, 70, 72
S_SPIN = 74
S_POI = 76
S_PXR, S_PXL = 84, 86
S_C = 88
S_LO, S_HI = 90, 91
S_EXO = 92
S_NEED = 94
S_XMW = 95
S_DUM = 42

SPIN_MAX = 0x20000

def gen_r(a, opts):
    D_RED = opts.get('d_red', 5); D_LOC = opts.get('d_loc', 2); D_REM = opts.get('d_rem', 1)
    prof = opts.get('prof', False)
    a.label("L_R")
    a("v_and_b32 v1, 63, v0")
    a(f"s_lshr_b32 s{S_T0}, s{S_J}, 1"); a(f"s_lshl_b32 s{S_H}, s{S_G}, 4"); a(f"s_add_u32 s{S_H}, s{S_H}, s{S_T0}")
    a(f"s_and_b32 s{S_HF}, s{S_J}, 1")
    a(f"s_lshl_b32 s{S_PROD}, s{S_G}, 5"); a(f"s_add_u32 s{S_PROD}, s{S_PROD}, s{S_J}")
    a(f"s_lshl_b32 s{S_RID}, s{S_W}, 5"); a(f"s_add_u32 s{S_RID}, s{S_RID}, s{S_J}")
    a(f"s_cmp_lt_u32 s{S_RID}, 80"); a(f"s_cselect_b32 s{S_RACT}, 1, 0")
    prologue_weights(a)
    setup_regs(a)
    load_mem0(a)
    census(a)
    body(a, opts, slow=False)
    body(a, opts, slow=True)

def prologue_weights(a):
    lane = 1
    a(f"s_lshl_b32 s{S_T0}, s{S_H}, 7"); a(f"s_lshl_b32 s{S_T1}, s{S_HF}, 6"); a(f"s_add_u32 s{S_T0}, s{S_T0}, s{S_T1}")
    a(f"s_mul_i32 s{S_T0}, s{S_T0}, 1280")
    sadd64(a, 48, P_WO, f"s{S_T0}")
    a("v_lshrrev_b32 v2, 2, v0")
    a("v_mul_u32_u24 v3, 1280, v2")
    a("v_and_b32 v4, 3, v0")
    a("v_lshl_add_u32 v3, v4, 4, v3")
    for i in range(20):
        a(f"global_load_dwordx4 v[{30+4*i}:{33+4*i}], v3, s[48:49] offset:{64*i}")
    a("v_and_b32 v5, 1, v2"); a("v_bfe_u32 v6, v2, 2, 2"); a("v_lshl_add_u32 v5, v6, 1, v5")
    a("v_bfe_u32 v6, v0, 1, 1")
    a("v_and_b32 v7, 1, v0")
    a("v_mul_u32_u24 v8, 1280, v2"); a("v_lshl_add_u32 v8, v7, 4, v8"); a(f"v_add_u32 v8, {L_STG}, v8")
    for q in range(4):
        a(f"v_add_u32 v9, {2*q}, v6"); a("v_xor_b32 v9, v9, v5"); a(f"v_lshl_add_u32 v{10+q}, v9, 5, v8")
    a("s_waitcnt vmcnt(0)")
    for i in range(20):
        a(f"ds_write_b128 v{10+(i&3)}, v[{30+4*i}:{33+4*i}] offset:{256*(i>>2)}")
    a("s_waitcnt lgkmcnt(0)")
    a(f"s_lshl_b32 s{S_T0}, s{S_H}, 8")
    sadd64(a, 50, P_WQ, f"s{S_T0}"); sadd64(a, 52, P_WK, f"s{S_T0}")
    a(f"s_lshl_b32 s{S_T1}, s{S_HF}, 7"); a(f"s_add_u32 s{S_T0}, s{S_T0}, s{S_T1}")
    sadd64(a, 54, P_WV, f"s{S_T0}")
    a("v_lshlrev_b32 v3, 13, v2"); a("v_lshl_add_u32 v3, v4, 4, v3")
    def qkv_loads(base):
        for i in range(4): a(f"global_load_dwordx4 v[{base+4*i}:{base+4*i+3}], v3, s[50:51] offset:{64*i}")
        for i in range(4): a(f"global_load_dwordx4 v[{base+16+4*i}:{base+16+4*i+3}], v3, s[52:53] offset:{64*i}")
        for i in range(2): a(f"global_load_dwordx4 v[{base+32+4*i}:{base+32+4*i+3}], v3, s[54:55] offset:{64*i}")
        for p in (50, 52, 54): sadd64(a, p, p, 64*8192)
    qkv_loads(30); qkv_loads(70)
    a("s_barrier")
    a("v_lshrrev_b32 v5, 4, v1")
    a("v_bfe_u32 v6, v1, 2, 2")
    a("v_lshrrev_b32 v7, 1, v5"); a("v_lshlrev_b32 v7, 4, v7")
    a("v_and_b32 v8, 1, v5"); a("v_lshl_add_u32 v7, v8, 2, v7")
    a("v_and_b32 v9, 1, v6"); a("v_add_u32 v7, v7, v9")
    a("v_lshrrev_b32 v10, 1, v6"); a("v_lshl_add_u32 v7, v10, 3, v7")
    a("v_mul_u32_u24 v7, 1280, v7")
    a("v_and_b32 v11, 3, v1"); a("v_lshl_add_u32 v7, v11, 3, v7"); a(f"v_add_u32 v7, {L_STG}, v7")
    a("v_lshl_add_u32 v9, v8, 1, v9"); a("v_lshl_add_u32 v9, v10, 2, v9")
    a(f"s_mul_i32 s{S_T0}, s{S_W}, 20480"); a("v_lshlrev_b32 v12, 4, v1"); a(f"v_add_u32 v12, s{S_T0}, v12")
    for tt in range(10):
        a(f"s_mul_i32 s{S_T0}, s{S_W}, 10"); a(f"s_add_u32 s{S_T0}, s{S_T0}, {tt}")
        a(f"s_and_b32 s{S_T1}, s{S_T0}, 7"); a(f"s_and_b32 s{S_T2}, s{S_T0}, 0xf8")
        a(f"v_xor_b32 v13, s{S_T1}, v9"); a(f"v_add_u32 v13, s{S_T2}, v13"); a("v_lshl_add_u32 v13, v13, 5, v7")
        d = 110 + 8*(tt & 1)
        for hi in range(2):
            for jq in range(2):
                a(f"ds_read_b64_tr_b16 v[{d+4*hi+2*jq}:{d+4*hi+2*jq+1}], v13 offset:{40960*hi + 2560*jq}")
        a("s_waitcnt lgkmcnt(0)")
        a(f"ds_write_b128 v12, v[{d}:{d+3}] offset:{2048*tt}")
        a(f"ds_write_b128 v12, v[{d+4}:{d+7}] offset:{2048*tt+1024}")
    a("s_waitcnt lgkmcnt(0)")
    a("s_barrier")
    a("v_and_b32 v5, 1, v2"); a("v_bfe_u32 v6, v2, 2, 1"); a("v_bfe_u32 v7, v2, 4, 1")
    a("v_lshl_add_u32 v8, v6, 1, v5"); a("v_lshl_add_u32 v8, v7, 2, v8")
    a("v_lshl_add_u32 v9, v7, 1, v6")
    a("v_bfe_u32 v6, v0, 1, 1"); a("v_and_b32 v7, 1, v0")
    a("v_lshlrev_b32 v16, 8, v2"); a("v_lshl_add_u32 v16, v7, 4, v16"); a(f"v_add_u32 v16, {L_STG}, v16")
    for i in range(4):
        a(f"v_add_u32 v17, {2*i}, v6"); a("v_xor_b32 v17, v17, v8"); a(f"v_lshl_add_u32 v{10+i}, v17, 5, v16")
    a("v_lshlrev_b32 v16, 7, v2"); a("v_lshl_add_u32 v16, v7, 4, v16"); a(f"v_add_u32 v16, {L_STG + 32768}, v16")
    for i in range(2):
        a(f"v_add_u32 v17, {2*i}, v6"); a("v_xor_b32 v17, v17, v9"); a(f"v_lshl_add_u32 v{14+i}, v17, 5, v16")
    a("v_lshrrev_b32 v5, 4, v1"); a("v_bfe_u32 v6, v1, 2, 2")
    a("v_lshlrev_b32 v7, 2, v5"); a("v_and_b32 v8, 1, v6"); a("v_add_u32 v7, v7, v8"); a("v_lshrrev_b32 v9, 1, v6"); a("v_lshl_add_u32 v7, v9, 4, v7")
    a("v_and_b32 v16, 1, v5")
    a("v_lshl_add_u32 v17, v16, 1, v8"); a("v_lshl_add_u32 v17, v9, 2, v17")
    a("v_lshl_add_u32 v21, v9, 1, v16")
    a("v_and_b32 v22, 3, v1")
    a("v_lshlrev_b32 v23, 8, v7"); a("v_lshl_add_u32 v23, v22, 3, v23"); a(f"v_add_u32 v23, {L_STG}, v23")
    for t in range(2):
        a(f"s_lshl_b32 s{S_T0}, s{S_W}, 1"); a(f"s_add_u32 s{S_T0}, s{S_T0}, {t}")
        a(f"v_xor_b32 v24, s{S_T0}, v17"); a(f"v_lshl_add_u32 v{18+t}, v24, 5, v23")
    a("v_lshlrev_b32 v23, 7, v7"); a("v_lshl_add_u32 v23, v22, 3, v23"); a(f"v_add_u32 v23, {L_STG + 32768}, v23")
    a(f"v_xor_b32 v24, s{S_W}, v21"); a("v_lshl_add_u32 v20, v24, 5, v23")
    KTMP = 110
    for c in range(10):
        base = 30 if (c & 1) == 0 else 70
        a(f"s_waitcnt vmcnt({10 if c < 9 else 0})")
        for i in range(4): a(f"ds_write_b128 v{10+i}, v[{base+4*i}:{base+4*i+3}]")
        for i in range(4): a(f"ds_write_b128 v{10+i}, v[{base+16+4*i}:{base+16+4*i+3}] offset:16384")
        for i in range(2): a(f"ds_write_b128 v{14+i}, v[{base+32+4*i}:{base+32+4*i+3}]")
        a("s_waitcnt lgkmcnt(0)")
        if c + 2 < 10: qkv_loads(base)
        a("s_barrier")
        for tile, areg, img in (('q0', 18, 0), ('q1', 19, 0), ('k0', 18, 16384), ('k1', 19, 16384), ('v', 20, 0)):
            for hi in range(2):
                for jq in range(2):
                    lo = 4*hi + 2*jq
                    if wfrag(tile, c) is None: dst = f"v[{KTMP+8*(c-4)+lo}:{KTMP+8*(c-4)+lo+1}]"
                    else: dst = wr(tile, c, lo, 2)
                    off = img + (hi*4096 + jq*256 if tile == 'v' else hi*8192 + jq*512)
                    a(f"ds_read_b64_tr_b16 {dst}, v{areg} offset:{off}")
            a("s_waitcnt lgkmcnt(0)")
        dlt = 40960 if (c & 1) == 0 else -40960
        a(f"s_mov_b32 s{S_T0}, {dlt}")
        for r in (10, 11, 12, 13, 14, 15, 18, 19, 20): a(f"v_add_u32 v{r}, s{S_T0}, v{r}")
    a("s_barrier")
    a(f"s_mul_i32 s{S_T0}, s{S_W}, 12288"); a(f"s_add_u32 s{S_T0}, s{S_T0}, {L_WS}")
    a("v_lshlrev_b32 v12, 4, v1"); a(f"v_add_u32 v12, s{S_T0}, v12")
    for k in range(6):
        a(f"ds_write_b128 v12, v[{KTMP+8*k}:{KTMP+8*k+3}] offset:{2048*k}")
        a(f"ds_write_b128 v12, v[{KTMP+8*k+4}:{KTMP+8*k+7}] offset:{2048*k+1024}")
    a("s_waitcnt lgkmcnt(0)")

def setup_regs(a):
    LN = 19
    a(f"v_mov_b32 v{LN}, v1")
    T = 56
    a(f"v_lshrrev_b32 v{T}, 4, v{LN}")
    a(f"v_and_b32 v{T+1}, 15, v{LN}")
    a(f"v_bfe_u32 v{T+2}, v{LN}, 2, 2")
    a(f"v_and_b32 v{T+3}, 3, v{LN}")
    G, N, R_, CC = T, T+1, T+2, T+3
    t0, t1, t2 = T+4, T+5, T+6
    a(f"v_and_b32 v{t0}, 2, v{LN}"); a(f"v_cmp_eq_u32 vcc, 0, v{t0}")
    a(f"v_mov_b32 v{t1}, 0xeeeeeeee"); a(f"v_mov_b32 v{t2}, 0x44444444")
    a(f"v_cndmask_b32 v{V_IDX}, v{t1}, v{t2}, vcc")
    a(f"v_lshlrev_b32 v{V_L16}, 4, v{LN}"); a(f"v_lshlrev_b32 v{V_L8}, 3, v{LN}")
    a(f"v_lshrrev_b32 v{t0}, 1, v{G}"); a(f"v_lshlrev_b32 v{t0}, 9, v{t0}")
    a(f"v_lshl_add_u32 v{t0}, v{CC}, 7, v{t0}")
    a(f"v_and_b32 v{t1}, 1, v{G}"); a(f"v_lshl_add_u32 v{t0}, v{t1}, 6, v{t0}")
    a(f"v_lshl_add_u32 v{t0}, v{R_}, 3, v{t0}"); a(f"v_add_u32 v{t0}, {L_IMG}, v{t0}")
    a(f"v_lshrrev_b32 v{t1}, 1, v{CC}")
    a(f"v_lshl_add_u32 v{V_AT0}, v{t1}, 5, v{t0}")
    a(f"v_xor_b32 v{t1}, 1, v{t1}"); a(f"v_lshl_add_u32 v{V_AT1}, v{t1}, 5, v{t0}")
    a(f"s_lshl_b32 s{S_T0}, s{S_W}, 5"); a(f"v_add_u32 v{t0}, s{S_T0}, v{N}")
    a(f"v_lshrrev_b32 v{t1}, 2, v{t0}"); a(f"v_lshrrev_b32 v{t2}, 1, v{G}"); a(f"v_add_u32 v{t1}, v{t1}, v{t2}")
    a(f"v_lshlrev_b32 v{t0}, 5, v{t0}"); a(f"v_and_b32 v{t2}, 1, v{G}"); a(f"v_lshl_add_u32 v{t0}, v{t2}, 2, v{t0}"); a(f"v_add_u32 v{t0}, {L_XIM}, v{t0}")
    a(f"v_and_b32 v{t2}, 3, v{t1}"); a(f"v_lshl_add_u32 v{V_XWQ}, v{t2}, 3, v{t0}")
    a(f"v_add_u32 v{t1}, 2, v{t1}"); a(f"v_and_b32 v{t2}, 3, v{t1}"); a(f"v_lshl_add_u32 v{V_XWK}, v{t2}, 3, v{t0}")
    a(f"v_lshl_add_u32 v{t0}, v{G}, 2, v{R_}"); a(f"v_lshlrev_b32 v{t0}, 5, v{t0}")
    a(f"v_add_u32 v{t1}, v{CC}, v{G}"); a(f"v_and_b32 v{t1}, 3, v{t1}"); a(f"v_lshl_add_u32 v{t0}, v{t1}, 3, v{t0}")
    a(f"v_add_u32 v{V_XR}, {L_XIM}, v{t0}")
    a(f"v_add_u32 v{V_KT}, {L_KTB}, v{V_L16}")
    a(f"s_mul_i32 s{S_T0}, s{S_W}, 20480"); a(f"v_add_u32 v{V_WO}, s{S_T0}, v{V_L16}")
    a(f"s_mul_i32 s{S_T0}, s{S_W}, 12288"); a(f"s_add_u32 s{S_T0}, s{S_T0}, {L_WS}"); a(f"v_add_u32 v{V_WS}, s{S_T0}, v{V_L16}")
    a(f"s_lshl_b32 s{S_T0}, s{S_W}, 1"); a(f"v_lshrrev_b32 v{t0}, 1, v{G}"); a(f"v_add_u32 v{t0}, s{S_T0}, v{t0}")
    a(f"v_and_b32 v{t1}, 6, v{N}"); a(f"v_xor_b32 v{t0}, v{t0}, v{t1}"); a(f"v_lshlrev_b32 v{t0}, 4, v{t0}")
    a(f"v_and_b32 v{t1}, 7, v{N}"); a(f"v_lshl_add_u32 v{t0}, v{t1}, 7, v{t0}")
    a(f"v_and_b32 v{t1}, 1, v{G}"); a(f"v_lshl_add_u32 v{t0}, v{t1}, 3, v{t0}"); a(f"v_add_u32 v{V_OEW}, {L_OEX}, v{t0}")
    a(f"v_lshrrev_b32 v{t0}, 2, v{N}"); a(f"v_lshlrev_b32 v{t0}, 1, v{t0}"); a(f"v_and_b32 v{t1}, 1, v{N}"); a(f"v_add_u32 v{t0}, v{t0}, v{t1}")
    a(f"v_bfe_u32 v{t1}, v{N}, 1, 1"); a(f"v_lshl_add_u32 v{t1}, v{G}, 1, v{t1}")
    a(f"v_and_b32 v{t2}, 6, v{t0}"); a(f"v_xor_b32 v{t1}, v{t1}, v{t2}"); a(f"v_lshlrev_b32 v{t1}, 4, v{t1}")
    a(f"v_lshl_add_u32 v{t1}, v{t0}, 7, v{t1}"); a(f"v_add_u32 v{V_OER}, {L_OEX}, v{t1}")
    a(f"s_lshl_b32 s{S_T0}, s{S_W}, 8"); a(f"s_add_u32 s{S_T0}, s{S_T0}, {L_VEX}")
    a(f"v_lshlrev_b32 v{t0}, 4, v{N}"); a(f"v_add_u32 v{t0}, s{S_T0}, v{t0}")
    a(f"v_lshl_add_u32 v{V_VEW}, v{G}, 2, v{t0}")
    a(f"v_and_b32 v{t1}, 1, v{G}"); a(f"v_lshl_add_u32 v{V_VER}, v{t1}, 3, v{t0}")
    a(f"s_mul_i32 s{S_T0}, s{S_W}, 2560"); a(f"s_add_u32 s{S_T0}, s{S_T0}, {L_IMG}")
    a(f"v_lshrrev_b32 v{t0}, 5, v{LN}"); a(f"v_lshlrev_b32 v{t0}, 9, v{t0}")
    a(f"v_bfe_u32 v{t1}, v{LN}, 3, 2"); a(f"v_lshl_add_u32 v{t0}, v{t1}, 7, v{t0}")
    a(f"v_lshrrev_b32 v{t1}, 1, v{t1}"); a(f"v_lshlrev_b32 v{t1}, 5, v{t1}")
    a(f"v_and_b32 v{t2}, 7, v{LN}"); a(f"v_lshlrev_b32 v{t2}, 4, v{t2}"); a(f"v_xor_b32 v{t2}, v{t2}, v{t1}")
    a(f"v_add_u32 v{t0}, v{t0}, v{t2}"); a(f"v_add_u32 v{V_IW0}, s{S_T0}, v{t0}")
    a(f"v_lshrrev_b32 v{t1}, 1, v{G}"); a(f"v_lshlrev_b32 v{t1}, 5, v{t1}"); a(f"v_lshlrev_b32 v{t2}, 3, v{N}"); a(f"v_xor_b32 v{t2}, v{t2}, v{t1}")
    a(f"v_lshl_add_u32 v{t0}, v{G}, 7, v{t2}"); a(f"v_add_u32 v{V_IW2}, s{S_T0}, v{t0}")
    a(f"v_lshrrev_b32 v{t0}, 3, v{N}"); a(f"v_lshl_add_u32 v{t0}, v{G}, 1, v{t0}"); a(f"v_mul_u32_u24 v{t0}, 10240, v{t0}")
    a(f"v_and_b32 v{t1}, 7, v{N}"); a(f"v_lshl_add_u32 v{t0}, v{t1}, 4, v{t0}")
    a(f"s_min_u32 s{S_T0}, s{S_RID}, 79"); a(f"s_lshl_b32 s{S_T0}, s{S_T0}, 7"); a(f"v_add_u32 v{V_RL}, s{S_T0}, v{t0}")
    for r in range(4): a(f"v_mov_b32 v{V_ONES+r}, 0x3f803f80")
    for k in range(4):
        a(f"v_mov_b32 v{t0}, 0")
        a(f"v_cmp_eq_u32 vcc, {2*k}, v{N}"); a(f"v_mov_b32 v{t1}, 0x3f80"); a(f"v_cndmask_b32 v{t0}, v{t0}, v{t1}, vcc")
        a(f"v_cmp_eq_u32 vcc, {2*k+1}, v{N}"); a(f"v_mov_b32 v{t1}, 0x3f800000"); a(f"v_cndmask_b32 v{V_SEL+k}, v{t0}, v{t1}, vcc")
    a(f"v_cmp_gt_u32 vcc, 2, v{G}"); a(f"v_mov_b32 v{t1}, 0xff800000"); a(f"v_mov_b32 v{t0}, 0")
    for r in range(4): a(f"v_cndmask_b32 v{V_CNEG+r}, v{t0}, v{t1}, vcc")
    a(f"s_mov_b32 s{S_C}, 0x{f32bits(128**-0.5 * 1.4426950408889634):08x}"); a(f"s_mov_b32 s{S_C+1}, s{S_C}")
    a(f"s_mov_b32 s{S_LO}, 0x00003f80"); a(f"s_mov_b32 s{S_HI}, 0x3f800000")
    a(f"s_mov_b32 s{S_EXO}, 0x00ff00ff"); a(f"s_mov_b32 s{S_EXO+1}, 0x00ff00ff")

def load_mem0(a):
    LN = 19
    T = 56
    a(f"v_bfe_u32 v{T}, v{LN}, 4, 2"); a(f"v_and_b32 v{T+1}, 15, v{LN}")
    a(f"v_mul_u32_u24 v{T+2}, 2560, v{T}")
    a(f"s_lshl_b32 s{S_T0}, s{S_W}, 5"); a(f"v_add_u32 v{T+3}, s{S_T0}, v{T+1}"); a(f"v_lshl_add_u32 v{T+2}, v{T+3}, 1, v{T+2}")
    B = 64
    for i in range(5):
        for q, off in enumerate((0, 1280, 32, 1312)):
            a(f"global_load_ushort v{B+4*i+q}, v{T+2}, {sp(P_MEM0)} offset:{256*i+off}")
    a(f"v_lshrrev_b32 v{T+3}, 1, v{T}"); a(f"v_lshlrev_b32 v{T+3}, 5, v{T+3}"); a(f"v_lshlrev_b32 v{T+4}, 3, v{T+1}"); a(f"v_xor_b32 v{T+4}, v{T+4}, v{T+3}")
    a(f"v_lshl_add_u32 v{T+4}, v{T}, 7, v{T+4}"); a(f"s_lshl_b32 s{S_T0}, s{S_W}, 9"); a(f"s_add_u32 s{S_T0}, s{S_T0}, {L_IMG}"); a(f"v_add_u32 v{T+4}, s{S_T0}, v{T+4}")
    a("s_waitcnt vmcnt(0)")
    for i in range(5):
        a(f"v_lshl_or_b32 v{B+4*i}, v{B+4*i+1}, 16, v{B+4*i}")
        a(f"v_lshl_or_b32 v{B+4*i+1}, v{B+4*i+3}, 16, v{B+4*i+2}")
        a(f"ds_write_b64 v{T+4}, v[{B+4*i}:{B+4*i+1}] offset:{2048*i}")
    a("s_waitcnt lgkmcnt(0)")

def census(a):
    from gen import XA, XB
    a(f"s_mov_b32 s{S_SPIN}, 0")
    a.label("L_R_census")
    a("v_lshlrev_b32 v56, 2, v19"); a("v_min_u32 v56, 40, v56")
    a(f"global_load_dword v57, v56, {sp(P_DBG)} sc1")
    a("s_waitcnt vmcnt(0)")
    a(f"v_readlane_b32 s{S_T0}, v57, 8")
    a(f"s_cmp_ge_u32 s{S_T0}, 256"); a("s_cbranch_scc1 L_R_census_ok")
    a("s_sleep 4")
    a(f"s_add_u32 s{S_SPIN}, s{S_SPIN}, 1"); a(f"s_cmp_lt_u32 s{S_SPIN}, {SPIN_MAX}"); a("s_cbranch_scc1 L_R_census")
    a("s_endpgm")
    a.label("L_R_census_ok")
    a(f"v_readlane_b32 s{S_T0}, v57, {XA}"); a(f"v_readlane_b32 s{S_T1}, v57, {XB}")
    a(f"s_min_u32 s{S_T0}, s{S_T0}, s{S_T1}")
    a(f"s_cmp_ge_u32 s{S_T0}, 32")
    a("s_cbranch_scc0 L_Rslow_start")
    a("s_branch L_Rfast_start")

WS_DUMMY = 8 * MB
V_FLG = 0
V_FV = 19
S_OFFP = 96
S_OFFX = 97
S_M0KT = 98
S_FM = 100

def weave(a, mains, fillers, per=2):
    fi = 0
    for m in mains:
        m()
        k = 0
        while k < per and fi < len(fillers):
            f = fillers[fi]; fi += 1
            if f is None: break
            n = f()
            k += n if n else 1
    while fi < len(fillers):
        if fillers[fi] is not None: fillers[fi]()
        fi += 1

def body(a, opts, slow):
    P = "L_Rslow" if slow else "L_Rfast"
    LS = "sc1" if slow else ""
    D_RED = opts.get('d_red', 3); D_LOC = opts.get('d_loc', 2); D_REM = opts.get('d_rem', 1)
    prof = opts.get('prof', False)
    PL = 33
    def stamp(i):
        if not prof: return
        a("s_memtime s[44:45]"); a("s_waitcnt lgkmcnt(0)")
        if i is not None:
            a("s_sub_u32 s45, s44, s33"); a(f"s_add_u32 s{PROF[i]}, s{PROF[i]}, s45")
        a("s_mov_b32 s33, s44")
    PROF = [2, 3, 4, 5, 6, 7]
    I = lambda t: (lambda: a(t))
    a.label(P + "_start")
    if prof:
        for r in PROF + [8, 9]: a(f"s_mov_b32 s{r}, 0")
    a(f"s_mov_b32 s{S_STEP}, 0"); a(f"s_mov_b32 s{S_OFFP}, 0"); a(f"s_mov_b32 s{S_OFFX}, 0")
    a(f"s_lshl_b32 s{S_T0}, s{S_H}, 13")
    sadd64(a, S_KT, P_WS, WS_KT); sadd64(a, S_KT, S_KT, f"s{S_T0}"); a(f"s_lshl_b32 s{S_T1}, s{S_W}, 11"); sadd64(a, S_KT, S_KT, f"s{S_T1}")
    sadd64(a, S_VT, P_WS, WS_VT); sadd64(a, S_VT, S_VT, f"s{S_T0}")
    a(f"s_lshl_b32 s{S_T1}, s{S_HF}, 2"); a(f"s_add_u32 s{S_T1}, s{S_T1}, s{S_W}"); a(f"s_lshl_b32 s{S_T2}, s{S_T1}, 10"); sadd64(a, S_VT, S_VT, f"s{S_T2}")
    a(f"s_lshl_b32 s{S_T0}, s{S_H}, 12")
    sadd64(a, S_XM, P_WS, WS_XM); sadd64(a, S_XM, S_XM, f"s{S_T0}")
    sadd64(a, S_VM, P_WS, WS_VM); sadd64(a, S_VM, S_VM, f"s{S_T0}"); a(f"s_lshl_b32 s{S_T2}, s{S_T1}, 9"); sadd64(a, S_VM, S_VM, f"s{S_T2}")
    a(f"s_lshl_b32 s{S_T0}, s{S_H}, 1"); a(f"s_add_u32 s{S_T0}, s{S_T0}, s{S_HF}"); a(f"s_lshl_b32 s{S_T0}, s{S_T0}, 6"); a(f"s_add_u32 s{S_T0}, s{S_T0}, {FM_OFF}")
    sadd64(a, S_FM, P_WS, f"s{S_T0}")
    a(f"s_or_b32 s{S_T0}, s{S_HF}, s{S_W}"); a(f"s_cmp_eq_u32 s{S_T0}, 0"); a(f"s_cselect_b32 s{S_XMW}, 1, 0")
    a(f"v_lshrrev_b32 v56, 4, v{V_L16}")
    a(f"v_and_b32 v57, 3, v56"); a("v_lshlrev_b32 v57, 2, v57"); a("v_bfe_u32 v58, v56, 2, 1"); a(f"v_mul_u32_u24 v58, {FV_OFF}, v58"); a("v_add_u32 v57, v57, v58")
    a(f"s_lshl_b32 s{S_T0}, s{S_H}, 6"); a(f"v_add_u32 v{V_FV}, s{S_T0}, v57")
    a(f"s_lshl_b32 s{S_T0}, s{S_PROD}, 2"); a(f"s_add_u32 s{S_T0}, s{S_T0}, s{S_W}"); a(f"s_lshl_b32 s{S_T0}, s{S_T0}, 8")
    sadd64(a, S_DUM, P_WS, WS_DUMMY); sadd64(a, S_DUM, S_DUM, f"s{S_T0}")
    for r in [S_POI, S_POI+2, S_POI+4, S_POI+6, S_PXR, S_PXL]:
        a(f"s_mov_b32 s{r}, s{S_DUM}"); a(f"s_mov_b32 s{r+1}, s{S_DUM+1}")
    def flags_load(): a(f"global_load_dword v{V_FLG}, v{V_FV}, {sp(P_WS)} sc1")
    def flags_spin(need, ret):
        stub = a.newlabel(P + "_fs")
        def fn():
            a.label(stub)
            a(f"s_mov_b32 s{S_SPIN}, 0")
            a.label(stub + "_l")
            flags_load()
            a("s_waitcnt vmcnt(0)")
            a(f"v_cmp_gt_u32 vcc, s{need}, v{V_FLG}")
            a(f"s_cbranch_vccz {ret}")
            a("s_sleep 2")
            a(f"s_add_u32 s{S_SPIN}, s{S_SPIN}, 1"); a(f"s_cmp_lt_u32 s{S_SPIN}, {SPIN_MAX}"); a(f"s_cbranch_scc1 {stub}_l")
            a("s_endpgm")
        a.defer(fn)
        return stub
    def step_bases():
        a(f"s_mul_i32 s{S_T1}, s{S_PROD}, 10240"); a(f"s_mul_i32 s{S_T2}, s{S_W}, 2560"); a(f"s_add_u32 s{S_T1}, s{S_T1}, s{S_T2}"); a(f"s_add_u32 s{S_T1}, s{S_T1}, s{S_OFFP}")
        sadd64(a, S_PST, P_WS, WS_PART); sadd64(a, S_PST, S_PST, f"s{S_T1}")
        a(f"s_mul_i32 s{S_T1}, s{S_G}, {32*10240}"); a(f"s_add_u32 s{S_T1}, s{S_T1}, s{S_OFFP}")
        sadd64(a, S_RL, P_WS, WS_PART); sadd64(a, S_RL, S_RL, f"s{S_T1}")
        for t in range(1, 4): sadd64(a, S_RL+2*t, S_RL+2*t-2, 81920)
        a(f"s_add_u32 s{S_T1}, s{S_STEP}, 1"); a(f"s_and_b32 s{S_T1}, s{S_T1}, 1"); a(f"s_lshl_b32 s{S_T1}, s{S_T1}, 13")
        a(f"s_lshl_b32 s{S_T2}, s{S_W}, 11"); a(f"s_add_u32 s{S_T1}, s{S_T1}, s{S_T2}"); a(f"s_add_u32 s{S_M0KT}, s{S_T1}, {L_KTB}")
        a(f"s_add_u32 s{S_NEED}, s{S_STEP}, 2"); a(f"s_min_u32 s{S_NEED}, s{S_NEED}, 64")
    a(f"s_mov_b32 s{S_NEED}, 1")
    pr = a.newlabel(P + "_prime")
    a(f"s_branch {flags_spin(S_NEED, pr)}")
    a.label(pr)
    a(f"s_lshl_b32 s{S_T0}, s{S_W}, 11"); a(f"s_add_u32 m0, s{S_T0}, {L_KTB}")
    a(f"global_load_lds_dwordx4 v{V_L16}, {sp(S_KT)} sc1")
    a(f"global_load_lds_dwordx4 v{V_L16}, {sp(S_KT)} offset:1024 sc1")
    sadd64(a, S_KT, S_KT, 32*8192)
    step_bases()
    for r in range(0, 20, 2): a(f"v_mov_b64 v[{ACC+r}:{ACC+r+1}], 0")
    a("s_waitcnt vmcnt(0)")
    a("s_barrier")
    stamp(None)
    a.label(P + "_loop")
    if prof:
        sk = a.newlabel("L_pr")
        a(f"s_cmp_eq_u32 s{S_STEP}, 32"); a(f"s_cbranch_scc0 {sk}")
        for r in PROF + [8, 9]: a(f"s_mov_b32 s{r}, 0")
        a.label(sk)
    lg = Cnt(a, "lgkmcnt", 15)
    def af_read(c, h):
        v = V_AT0 if h == 0 else V_AT1
        return lambda: lg.issue(('af', c), f"ds_read_b64_tr_b16 v[{AF+4*c+2*h}:{AF+4*c+2*h+1}], v{v} offset:{1024*c}")
    def ks_read(c, h):
        b = VS + 8*(c & 1) + 4*h
        return lambda: lg.issue(('ks', c), f"ds_read_b128 v[{b}:{b+3}], v{V_WS} offset:{2048*(c-4)+1024*h}")
    def kt_read(i):
        return lambda: lg.issue(('kt', i), f"ds_read_b128 v[{KT+4*i}:{KT+4*i+3}], v{V_KT} offset:{1024*i}")
    for c in range(4):
        af_read(c, 0)(); af_read(c, 1)()
    def smf(acc, c, w): a(f"v_smfmac_f32_16x16x64_bf16 v[{acc}:{acc+3}], v[{AF+4*c}:{AF+4*c+3}], {w}, v{V_IDX}")
    fret = a.newlabel(P + "_fret"); fstub = flags_spin(S_NEED, fret)
    def f_flagchk():
        a(f"v_cmp_gt_u32 vcc, s{S_NEED}, v{V_FLG}")
        a(f"s_cbranch_vccnz {fstub}")
        a.label(fret)
        return 2
    def f_fm():
        a(f"v_mov_b32 v{XF+2}, s{S_STEP}")
        a("s_mov_b64 exec, 1")
        a(f"global_store_dword v{V_L8}, v{XF+2}, {sp(S_FM)} sc1")
        a("s_mov_b64 exec, -1")
        return 2
    def f_xpoi():
        a("s_mov_b64 exec, 0xff")
        a(f"global_store_dwordx4 v{V_L16}, v[{XF+4}:{XF+7}], {sp(S_PXR)} sc1")
        a(f"global_store_dwordx4 v{V_L16}, v[{XF+4}:{XF+7}], {sp(S_PXL)} {LS}")
        a("s_mov_b64 exec, -1")
        return 2
    def f_dma():
        a(f"s_mov_b32 m0, s{S_M0KT}")
        a(f"global_load_lds_dwordx4 v{V_L16}, {sp(S_KT)} sc1")
        return 2
    start = [f_flagchk,
             I(f"global_load_dwordx4 v[{V_VT}:{V_VT+3}], v{V_L16}, {sp(S_VT)} sc1"),
             f_dma, I(f"global_load_lds_dwordx4 v{V_L16}, {sp(S_KT)} offset:1024 sc1"),
             I(f"global_load_dword v{V_FLG}, v{V_FV}, {sp(P_WS)} sc1"),
             I(f"v_mov_b64 v[{XF+4}:{XF+5}], -1"), I(f"v_mov_b64 v[{XF+6}:{XF+7}], -1"),
             f_fm]
    start += [I(f"global_store_dwordx4 v{V_RL}, v[{XF+4}:{XF+7}], {sp(S_POI+2*t)} {LS}") for t in range(4)]
    start += [f_xpoi]
    mains = []; plan = []
    fill = {c: [] for c in range(10)}
    fill[0] = [af_read(4, 0), af_read(4, 1), ks_read(4, 0), ks_read(4, 1), start[0], start[1]]
    fill[1] = [af_read(5, 0), af_read(5, 1), ks_read(5, 0), ks_read(5, 1), start[2]]
    fill[2] = [af_read(6, 0), af_read(6, 1), start[3], start[5], start[6]]
    fill[3] = [af_read(7, 0), af_read(7, 1), start[8], kt_read(0), kt_read(1)]
    keep_af = [af_read(8, 0), af_read(8, 1), af_read(9, 0), af_read(9, 1)]
    fill[4] = [keep_af[0], keep_af[1], start[9], kt_read(2)]
    fill[5] = [keep_af[2], keep_af[3], start[10], kt_read(3)]
    fill[6] = [kt_read(4), start[11], kt_read(5)]
    fill[7] = [kt_read(6), start[12], kt_read(7)]
    fill[8] = [start[4], start[7]]
    if opts.get('x_nostart'):
        for c in range(10): fill[c] = [f for f in fill[c] if f not in start[1:]]
    if opts.get('x_nokt'):
        for c in range(4, 8): fill[c] = [f for f in fill[c] if f in start or f in keep_af]
    for c in range(10):
        def m0(c=c): lg.wait(('af', c)); smf(ACC+0, c, wr('q0', c))
        def m1(c=c): smf(ACC+4, c, wr('q1', c))
        def m2(c=c): smf(ACC+8, c, wr('k0', c))
        def m3(c=c):
            if c >= 4:
                lg.wait(('ks', c)); b = VS + 8*(c & 1)
                smf(ACC+12, c, f"v[{b}:{b+7}]")
                if c + 2 <= 9: ks_read(c + 2, 0)(); ks_read(c + 2, 1)()
            else:
                smf(ACC+12, c, wr('k1', c))
        fl = fill[c]
        if c >= 4:
            weave(a, [m0, m1, m2], fl, per=2); m3()
        else:
            weave(a, [m0, m1, m2, m3], fl, per=2)
    for t in range(4): a(f"v_pk_add_f32 v[{ACC+4*t}:{ACC+4*t+1}], v[{ACC+4*t}:{ACC+4*t+1}], v[{ACC+4*t+2}:{ACC+4*t+3}]")
    for t in range(4): a(f"v_cvt_pk_bf16_f32 v{ACC+4*t+2}, v{ACC+4*t}, v{ACC+4*t+1}")
    lg.issue('xw', f"ds_write2st64_b32 v{V_XWQ}, v{ACC+2}, v{ACC+6} offset0:0 offset1:2")
    lg.issue('xw', f"ds_write2st64_b32 v{V_XWK}, v{ACC+10}, v{ACC+14} offset0:0 offset1:2")
    for c in range(3): smf(ACC+16, c, wr('v', c))
    lg.waitall()
    a("s_barrier")
    stamp(0)
    for ks in range(4):
        lg.issue(('x', ks), f"ds_read_b64_tr_b16 v[{XF+4*ks}:{XF+4*ks+1}], v{V_XR} offset:{1024*ks}")
        lg.issue(('x', ks), f"ds_read_b64_tr_b16 v[{XF+4*ks+2}:{XF+4*ks+3}], v{V_XR} offset:{1024*ks+512}")
    for c in range(3, 10): smf(ACC+16, c, wr('v', c))
    SM, S0, S1 = ACC, ACC+4, ACC+8
    VACC = ACC+16; VM_ = ACC+12
    def wo_read(tt, h):
        b = WOB[tt] + 4*h
        return lambda: lg.issue(('wo', tt), f"ds_read_b128 v[{b}:{b+3}], v{V_WO} offset:{2048*tt+1024*h}")
    WOB = {0: AF, 1: AF+8, 2: AF+16, 3: AF+24, 4: AF+32, 5: VS, 6: VS+8, 7: XF+8, 8: AF, 9: AF+8}
    mains = []
    for ks in range(4):
        x = f"v[{XF+4*ks}:{XF+4*ks+3}]"
        def ma(ks=ks, x=x):
            lg.wait(('x', ks))
            cm = f"v[{V_CNEG}:{V_CNEG+3}]" if ks == 0 else f"v[{SM}:{SM+3}]"
            a(f"v_mfma_f32_16x16x32_bf16 v[{SM}:{SM+3}], {x}, {x}, {cm}")
        mains.append(ma)
        for kt, Sx in ((0, S0), (1, S1)):
            def mb(ks=ks, kt=kt, Sx=Sx, x=x):
                k = f"v[{KT+4*(2*ks+kt)}:{KT+4*(2*ks+kt)+3}]"
                cs = "0" if ks == 0 else f"v[{Sx}:{Sx+3}]"
                a(f"v_mfma_f32_16x16x32_bf16 v[{Sx}:{Sx+3}], {k}, {x}, {cs}")
            mains.append(mb)
    def f_xm():
        sk = a.newlabel(P + "_noxm")
        a(f"s_cmp_eq_u32 s{S_XMW}, 0"); a(f"s_cbranch_scc1 {sk}")
        for ks in range(4): a(f"global_store_dwordx4 v{V_L16}, v[{XF+4*ks}:{XF+4*ks+3}], {sp(S_XM)} offset:{1024*ks} sc1")
        a.label(sk)
        return 2
    fillers = [wo_read(0, 0), wo_read(0, 1), wo_read(1, 0), wo_read(1, 1), wo_read(2, 0), wo_read(2, 1),
               I(f"v_pk_add_f32 v[{VACC}:{VACC+1}], v[{VACC}:{VACC+1}], v[{VACC+2}:{VACC+3}]"), wo_read(3, 0),
               I(f"v_cvt_pk_bf16_f32 v{VACC+2}, v{VACC}, v{VACC+1}"), wo_read(3, 1),
               lambda: lg.issue('vw', f"ds_write_b32 v{V_VEW}, v{VACC+2}"),
               lambda: lg.issue('vm', f"ds_read_b64 v[{VM_}:{VM_+1}], v{V_VER}"),
               wo_read(4, 0), wo_read(4, 1), wo_read(5, 0), wo_read(5, 1), wo_read(6, 0), wo_read(6, 1)]
    weave(a, mains[:10], fillers, per=2)
    mains[10](); f_xm(); mains[11]()
    lg.wait('vm')
    a(f"global_store_dwordx2 v{V_L8}, v[{VM_}:{VM_+1}], {sp(S_VM)} sc1")
    a(f"s_cmp_eq_u32 s{S_STEP}, {opts.get('last', 63)}"); a(f"s_cbranch_scc1 {P}_finish")
    wo_read(7, 0)(); wo_read(7, 1)()
    MX = ACC+14; T1 = ACC+15
    a(f"v_max3_f32 v{MX}, v{SM}, v{SM+1}, v{SM+2}")
    a(f"v_max3_f32 v{T1}, v{SM+3}, v{S0}, v{S0+1}")
    a(f"v_max3_f32 v{MX}, v{MX}, v{S0+2}, v{S0+3}")
    a(f"v_max3_f32 v{T1}, v{T1}, v{S1}, v{S1+1}")
    a(f"v_max3_f32 v{MX}, v{MX}, v{S1+2}, v{S1+3}")
    a(f"v_max_f32 v{MX}, v{MX}, v{T1}")
    OUT = [KT+4*t for t in range(8)] + [XF, XF+4]
    zero = [I(f"v_mov_b64 v[{OUT[t]+2*h}:{OUT[t]+2*h+1}], 0") for t in range(10) for h in range(2)]
    a(f"v_mov_b32 v{T1}, v{MX}"); zero.pop(0)(); zero.pop(0)()
    a(f"v_permlane32_swap_b32 v{MX}, v{T1}")
    a(f"v_max_f32 v{MX}, v{MX}, v{T1}")
    a(f"v_mov_b32 v{T1}, v{MX}"); zero.pop(0)(); zero.pop(0)()
    a(f"v_permlane16_swap_b32 v{MX}, v{T1}")
    a(f"v_max_f32 v{MX}, v{MX}, v{T1}")
    a(f"v_mul_f32 v{MX}, s{S_C}, v{MX}")
    for r in range(0, 12, 2):
        a(f"v_pk_fma_f32 v[{ACC+r}:{ACC+r+1}], v[{ACC+r}:{ACC+r+1}], s[{S_C}:{S_C+1}], v[{MX}:{MX+1}] op_sel_hi:[1,1,0] neg_lo:[0,0,1] neg_hi:[0,0,1]")
    for r in range(12): a(f"v_exp_f32 v{ACC+r}, v{ACC+r}")
    PT = VACC; PM = ACC+14
    a(f"v_cvt_pk_bf16_f32 v{PM}, v{SM}, v{SM+1}"); a(f"v_cvt_pk_bf16_f32 v{PM+1}, v{SM+2}, v{SM+3}")
    a(f"v_cvt_pk_bf16_f32 v{PT}, v{S0}, v{S0+1}"); a(f"v_cvt_pk_bf16_f32 v{PT+1}, v{S0+2}, v{S0+3}")
    a(f"v_cvt_pk_bf16_f32 v{PT+2}, v{S1}, v{S1+1}"); a(f"v_cvt_pk_bf16_f32 v{PT+3}, v{S1+2}, v{S1+3}")
    LL, OO = ACC, ACC+4
    a("s_waitcnt vmcnt(5)")
    a(f"v_mfma_f32_16x16x32_bf16 v[{LL}:{LL+3}], v[{V_ONES}:{V_ONES+3}], v[{PT}:{PT+3}], 0")
    a(f"v_mfma_f32_16x16x32_bf16 v[{OO}:{OO+3}], v[{V_VT}:{V_VT+3}], v[{PT}:{PT+3}], 0")
    for _ in range(5): zero.pop(0)()
    a(f"v_mfma_f32_16x16x16_bf16 v[{LL}:{LL+3}], v[{V_ONES}:{V_ONES+1}], v[{PM}:{PM+1}], v[{LL}:{LL+3}]")
    a(f"v_mfma_f32_16x16x16_bf16 v[{OO}:{OO+3}], v[{VM_}:{VM_+1}], v[{PM}:{PM+1}], v[{OO}:{OO+3}]")
    for _ in range(3): zero.pop(0)()
    a(f"v_rcp_f32 v{LL}, v{LL}")
    for _ in range(2): zero.pop(0)()
    a(f"v_pk_mul_f32 v[{OO}:{OO+1}], v[{OO}:{OO+1}], v[{LL}:{LL+1}] op_sel_hi:[1,0]")
    a(f"v_pk_mul_f32 v[{OO+2}:{OO+3}], v[{OO+2}:{OO+3}], v[{LL}:{LL+1}] op_sel_hi:[1,0]")
    a(f"v_cvt_pk_bf16_f32 v{OO}, v{OO}, v{OO+1}"); a(f"v_cvt_pk_bf16_f32 v{OO+1}, v{OO+2}, v{OO+3}")
    a(f"s_mov_b64 exec, {sp(S_EXO)}")
    lg.issue('ow', f"ds_write_b64 v{V_OEW}, v[{OO}:{OO+1}]")
    a("s_mov_b64 exec, -1")
    while zero: zero.pop(0)()
    lg.waitall()
    a("s_barrier")
    stamp(1)
    OA = ACC+8
    lg.issue('oa', f"ds_read_b128 v[{OA}:{OA+3}], v{V_OER}")
    lg.wait('oa')
    def osm(tt):
        b = WOB[tt]
        a(f"v_smfmac_f32_16x16x64_bf16 v[{OUT[tt]}:{OUT[tt]+3}], v[{OA}:{OA+3}], v[{b}:{b+7}], v{V_IDX}")
    DST = {0: OUT[0], 1: OUT[0]+2, 2: OUT[4], 3: OUT[4]+2, 4: OUT[8]}
    def post(t):
        o0, o1 = OUT[2*t], OUT[2*t+1]
        d = DST[t]
        L = [I(f"v_pk_add_f32 v[{o0}:{o0+1}], v[{o0}:{o0+1}], v[{o0+2}:{o0+3}]"),
             I(f"v_pk_add_f32 v[{o1}:{o1+1}], v[{o1}:{o1+1}], v[{o1+2}:{o1+3}]"),
             I(f"v_cvt_pk_bf16_f32 v{d}, v{o0}, v{o0+1}"),
             I(f"v_cvt_pk_bf16_f32 v{d+1}, v{o1}, v{o1+1}")]
        if t in (1, 3): L.append(I(f"global_store_dwordx4 v{V_L16}, v[{DST[t-1]}:{DST[t-1]+3}], {sp(S_PST)} offset:{1024*(t//2)} {LS}"))
        elif t == 4: L.append(I(f"global_store_dwordx2 v{V_L8}, v[{d}:{d+1}], {sp(S_PST)} offset:2048 {LS}"))
        return L
    osm(0); wo_read(8, 0)(); wo_read(8, 1)()
    osm(1); wo_read(9, 0)(); wo_read(9, 1)()
    osm(2); osm(3); osm(4); osm(5)
    p0, p1 = post(0), post(1)
    p0[0](); osm(6); p0[1](); p0[2](); osm(7); p0[3](); p1[0]()
    lg.wait(('wo', 8)); osm(8); p1[1](); p1[2]()
    lg.wait(('wo', 9)); osm(9); p1[3](); p1[4]()
    for t in (2, 3, 4):
        for f in post(t): f()
    stamp(2)
    a(f"s_mul_i32 s{S_T1}, s{S_G}, 10240"); a(f"s_add_u32 s{S_T2}, s{S_OFFX}, s{S_T1}")
    a(f"s_min_u32 s{S_T3}, s{S_RID}, 79"); a(f"s_lshl_b32 s{S_T3}, s{S_T3}, 7"); a(f"s_add_u32 s{S_T3}, s{S_T3}, s{S_T2}")
    sadd64(a, S_PUBR, P_WS, WS_XPR); sadd64(a, S_PUBR, S_PUBR, f"s{S_T3}")
    sadd64(a, S_PUBL, P_WS, WS_XPL); sadd64(a, S_PUBL, S_PUBL, f"s{S_T3}")
    a(f"s_mul_i32 s{S_T3}, s{S_W}, 2560"); a(f"s_add_u32 s{S_T2}, s{S_T2}, s{S_T3}")
    sadd64(a, S_GL, P_WS, WS_XPL); sadd64(a, S_GL, S_GL, f"s{S_T2}")
    a(f"s_xor_b32 s{S_T1}, s{S_G}, 1"); a(f"s_mul_i32 s{S_T1}, s{S_T1}, 10240"); a(f"s_add_u32 s{S_T0}, s{S_OFFX}, s{S_T1}"); a(f"s_add_u32 s{S_T0}, s{S_T0}, s{S_T3}")
    sadd64(a, S_GR, P_WS, WS_XPR); sadd64(a, S_GR, S_GR, f"s{S_T0}")
    nored = a.newlabel(P + "_nored")
    a(f"s_cmp_eq_u32 s{S_RACT}, 0"); a(f"s_cbranch_scc1 {nored}")
    for _ in range(D_RED): a("s_nop 7")
    RD = AF; RA = AF + 16; TM = AF + 20
    a(f"s_mov_b32 s{S_SPIN}, 0")
    rp = a.newlabel(P + "_rpoll")
    a.label(rp)
    for t in range(4): a(f"global_load_dwordx4 v[{RD+4*t}:{RD+4*t+3}], v{V_RL}, {sp(S_RL+2*t)} sc1")
    for t in range(4):
        a(f"s_waitcnt vmcnt({3-t})")
        c = "0" if t == 0 else f"v[{RA}:{RA+3}]"
        a(f"v_mfma_f32_16x16x32_bf16 v[{RA}:{RA+3}], v[{V_SEL}:{V_SEL+3}], v[{RD+4*t}:{RD+4*t+3}], {c}")
        if t == 0: a(f"v_max_u32 v{TM}, v{RD}, v{RD+2}")
        else: a(f"v_max3_u32 v{TM}, v{TM}, v{RD+4*t}, v{RD+4*t+2}")
    a(f"v_cmp_eq_u32 vcc, -1, v{TM}")
    a.retry(rp, S_SPIN, SPIN_MAX)
    for r in range(4): a(f"v_add_f32_dpp v{RA+r}, v{RA+r}, v{RA+r} row_ror:8 row_mask:0xf bank_mask:0xf")
    PB = AF + 24
    a(f"v_cvt_pk_bf16_f32 v{PB}, v{RA}, v{RA+1}"); a(f"v_cvt_pk_bf16_f32 v{PB+1}, v{RA+2}, v{RA+3}")
    a(f"v_permlane16_swap_b32 v{PB}, v{PB+2}"); a(f"v_permlane16_swap_b32 v{PB+1}, v{PB+3}")
    a("s_mov_b64 exec, 0xff")
    a(f"global_store_dwordx4 v{V_L16}, v[{PB}:{PB+3}], {sp(S_PUBR)} sc1")
    a(f"global_store_dwordx4 v{V_L16}, v[{PB}:{PB+3}], {sp(S_PUBL)} {LS}")
    a("s_mov_b64 exec, -1")
    a.label(nored)
    a("s_barrier")
    stamp(3)
    a(f"s_cmp_eq_u32 s{S_RACT}, 0")
    for t in range(4):
        a(f"s_cselect_b32 s{S_POI+2*t}, s{S_DUM}, s{S_RL+2*t}"); a(f"s_cselect_b32 s{S_POI+2*t+1}, s{S_DUM+1}, s{S_RL+2*t+1}")
    a(f"s_add_u32 s{S_T0}, s{S_STEP}, 3"); a(f"s_and_b32 s{S_T0}, s{S_T0}, 3"); a(f"s_mul_i32 s{S_T0}, s{S_T0}, 20480")
    a(f"s_mul_i32 s{S_T1}, s{S_G}, 10240"); a(f"s_add_u32 s{S_T0}, s{S_T0}, s{S_T1}")
    a(f"s_min_u32 s{S_T3}, s{S_RID}, 79"); a(f"s_lshl_b32 s{S_T3}, s{S_T3}, 7"); a(f"s_add_u32 s{S_T0}, s{S_T0}, s{S_T3}")
    sadd64(a, S_PXR, P_WS, WS_XPR); sadd64(a, S_PXR, S_PXR, f"s{S_T0}")
    sadd64(a, S_PXL, P_WS, WS_XPL); sadd64(a, S_PXL, S_PXL, f"s{S_T0}")
    a(f"s_cmp_eq_u32 s{S_RACT}, 0")
    for r in (S_PXR, S_PXL):
        a(f"s_cselect_b32 s{r}, s{S_DUM}, s{r}"); a(f"s_cselect_b32 s{r+1}, s{S_DUM+1}, s{r+1}")
    for _ in range(D_LOC): a("s_nop 7")
    GLc = AF; GRm = AF + 12; GF = AF + 24; TMG = AF + 44
    def gl_loads(base, sb):
        a(f"global_load_dwordx4 v[{base}:{base+3}], v{V_L16}, {sp(sb)} sc1")
        a(f"global_load_dwordx4 v[{base+4}:{base+7}], v{V_L16}, {sp(sb)} offset:1024 sc1")
        a(f"global_load_dwordx2 v[{base+8}:{base+9}], v{V_L8}, {sp(sb)} offset:2048 sc1")
    def chk(base):
        a(f"v_max3_u32 v{TMG}, v{base}, v{base+4}, v{base+8}")
        a(f"v_cmp_eq_u32 vcc, -1, v{TMG}")
    def poll_fix(base, sb, tag):
        back = a.newlabel(P + tag + "_ok"); stub = a.newlabel(P + tag + "_re")
        a.label(back + "_chk")
        chk(base)
        a(f"s_cbranch_vccnz {stub}")
        def fn():
            a.label(stub)
            a(f"s_add_u32 s{S_SPIN}, s{S_SPIN}, 1"); a(f"s_cmp_lt_u32 s{S_SPIN}, {SPIN_MAX}"); a(f"s_cbranch_scc0 {stub}_die")
            if prof: a(f"s_add_u32 s{8 if tag == '_l' else 9}, s{8 if tag == '_l' else 9}, 1")
            gl_loads(base, sb)
            a("s_waitcnt vmcnt(0)")
            a(f"s_branch {back}_chk")
            a.label(stub + "_die")
            a("s_endpgm")
        a.defer(fn)
    a(f"s_mov_b32 s{S_SPIN}, 0")
    gl_loads(GLc, S_GL)
    for _ in range(D_REM): a("s_nop 7")
    gl_loads(GRm, S_GR)
    a(f"s_add_u32 s{S_STEP}, s{S_STEP}, 1")
    a(f"s_xor_b32 s{S_OFFP}, s{S_OFFP}, {64*10240}")
    a(f"s_and_b32 s{S_T0}, s{S_STEP}, 3"); a(f"s_mul_i32 s{S_OFFX}, s{S_T0}, 20480")
    step_bases()
    sadd64(a, S_VT, S_VT, 32*8192); sadd64(a, S_XM, S_XM, 32*4096); sadd64(a, S_VM, S_VM, 32*4096)
    a(f"s_cmp_lt_u32 s{S_STEP}, 63"); a(f"s_cselect_b32 s{S_T0}, {32*8192}, 0")
    sadd64(a, S_KT, S_KT, f"s{S_T0}")
    for r in range(0, 20, 2): a(f"v_mov_b64 v[{ACC+r}:{ACC+r+1}], 0")
    a(f"s_and_b32 s{S_T0}, s{S_STEP}, 1"); a(f"s_lshl_b32 s{S_T0}, s{S_T0}, 13"); a(f"s_add_u32 s{S_T0}, s{S_T0}, {L_KTB}")
    a(f"v_add_u32 v{V_KT}, s{S_T0}, v{V_L16}")
    a("s_waitcnt vmcnt(3)")
    poll_fix(GLc, S_GL, "_l")
    for i in range(10):
        a(f"v_lshlrev_b32 v{GF+2*i}, 16, v{GLc+i}"); a(f"v_and_b32 v{GF+2*i+1}, 0xffff0000, v{GLc+i}")
    a("s_waitcnt vmcnt(0)")
    poll_fix(GRm, S_GR, "_g")
    stamp(4)
    def dots(i):
        a(f"v_dot2_f32_bf16 v{GF+2*i}, v{GRm+i}, s{S_LO}, v{GF+2*i}")
        a(f"v_dot2_f32_bf16 v{GF+2*i+1}, v{GRm+i}, s{S_HI}, v{GF+2*i+1}")
    def cv(i): a(f"v_cvt_pk_bf16_f32 v{GLc+i}, v{GF+2*i}, v{GF+2*i+1}")
    for i in range(4): dots(i)
    for t in range(5):
        cv(2*t); cv(2*t+1)
        a(f"ds_write_b64 v{V_IW2}, v[{GLc+2*t}:{GLc+2*t+1}] offset:{512*t}")
        for i in (2*t+4, 2*t+5):
            if i < 10: dots(i)
    a("s_waitcnt lgkmcnt(0)")
    a("s_barrier")
    stamp(5)
    a(f"s_branch {P}_loop")
    a.label(P + "_finish")
    if prof:
        a(f"s_lshl_b32 s44, s{S_PROD}, 2"); a(f"s_add_u32 s44, s44, s{S_W}"); a("s_lshl_b32 s44, s44, 5"); a(f"s_add_u32 s44, s44, {WS_PROF}")
        a("s_mov_b64 exec, 1")
        a(f"v_mov_b32 v{XF}, s44")
        for i, r in enumerate(PROF + [8, 9]):
            a(f"v_mov_b32 v{XF+1}, s{r}"); a(f"global_store_dword v{XF}, v{XF+1}, {sp(P_WS)} offset:{4*i}"); a("s_nop 1")
        a("s_mov_b64 exec, -1")
    a("s_waitcnt vmcnt(0)")
    a("s_barrier")
    a(f"s_cmp_eq_u32 s{S_W}, 0"); a(f"s_cbranch_scc0 {P}_end")
    a("s_mov_b64 exec, 1")
    a(f"v_mov_b32 v{XF+2}, 64")
    a(f"global_store_dword v{V_L8}, v{XF+2}, {sp(S_FM)} sc1")
    a("s_waitcnt vmcnt(0)")
    a.label(P + "_end")
    a("s_endpgm")
    a.flush()
```

```python
import sys
from gen_common import *
from gen_init import gen_init
from gen_proj import gen_proj

XA, XB = 0, 4

def gen_dispatch(a, roles, fake_xcc=None):
    a("s_cmp_ge_u32 s2, 256")
    a("s_cbranch_scc1 L_exit")
    load_kernargs(a)
    a("v_lshrrev_b32 v1, 6, v0")
    a("v_readfirstlane_b32 s32, v1")
    if fake_xcc is None:
        a("s_getreg_b32 s36, hwreg(HW_REG_XCC_ID)")
        a("s_and_b32 s36, s36, 15")
    else:
        fake_xcc(a)
    a("s_waitcnt lgkmcnt(0)")
    a("s_cmp_eq_u32 s32, 0")
    a("s_cbranch_scc0 L_tk_wait")
    a("s_mov_b64 exec, 1")
    a("v_mov_b32 v2, 1")
    a("s_min_u32 s37, s36, 10")
    a("s_lshl_b32 s37, s37, 2")
    a("v_mov_b32 v3, s37")
    a(f"global_atomic_add v4, v3, v2, {sp(P_DBG)} sc0")
    a("s_waitcnt vmcnt(0)")
    a("v_mov_b32 v3, 32")
    a(f"global_atomic_add v3, v2, {sp(P_DBG)}")
    a("v_readfirstlane_b32 s37, v4")
    a("s_cmp_lt_u32 s36, 8"); a("s_cselect_b32 s38, 1, 0")
    a("s_cmp_lt_u32 s37, 32"); a("s_cselect_b32 s39, 1, 0")
    a("s_and_b32 s38, s38, s39")
    a("s_cmp_eq_u32 s38, 1")
    a("s_cbranch_scc0 L_tk_float")
    a("s_lshl_b32 s33, s36, 5"); a("s_add_u32 s33, s33, s37")
    a("s_branch L_tk_have")
    a.label("L_tk_float")
    a("s_mov_b32 s38, 0")
    a.label("L_tk_spin")
    a("v_mov_b32 v3, 32")
    a(f"global_load_dword v5, v3, {sp(P_DBG)} sc1")
    a("s_waitcnt vmcnt(0)")
    a("v_readfirstlane_b32 s39, v5")
    a("s_cmp_ge_u32 s39, 256"); a("s_cbranch_scc1 L_tk_all")
    a("s_sleep 8")
    a("s_add_u32 s38, s38, 1"); a("s_cmp_lt_u32 s38, 0x40000"); a("s_cbranch_scc1 L_tk_spin")
    a("s_endpgm")
    a.label("L_tk_all")
    a("v_mov_b32 v3, 36")
    a(f"global_atomic_add v4, v3, v2, {sp(P_DBG)} sc0")
    a("s_waitcnt vmcnt(0)")
    a("v_readfirstlane_b32 s37, v4")
    a("s_mov_b32 s33, 0x7fffffff")
    for x in range(8):
        nx = a.newlabel("L_tk_x")
        a(f"v_mov_b32 v3, {4*x}")
        a(f"global_load_dword v5, v3, {sp(P_DBG)} sc1")
        a("s_waitcnt vmcnt(0)")
        a("v_readfirstlane_b32 s39, v5")
        a("s_min_u32 s39, s39, 32")
        a("s_sub_u32 s40, 32, s39")
        a("s_cmp_lt_u32 s37, s40"); a(f"s_cbranch_scc0 {nx}")
        a(f"s_add_u32 s33, s39, {32*x}"); a("s_add_u32 s33, s33, s37")
        a("s_branch L_tk_have")
        a.label(nx)
        a("s_sub_u32 s37, s37, s40")
    a.label("L_tk_have")
    a("v_mov_b32 v3, 0"); a("v_mov_b32 v4, s33")
    a("ds_write_b32 v3, v4")
    a("s_waitcnt lgkmcnt(0)")
    a("s_mov_b64 exec, -1")
    a.label("L_tk_wait")
    a("s_barrier")
    a("v_mov_b32 v3, 0")
    a("ds_read_b32 v4, v3")
    a("s_waitcnt lgkmcnt(0)")
    a("v_readfirstlane_b32 s33, v4")
    a("s_barrier")
    a("s_cmp_ge_u32 s33, 256"); a("s_cbranch_scc1 L_exit")
    a("s_lshr_b32 s35, s33, 5")
    a("s_and_b32 s34, s33, 31")
    table = {XA: 'RA', XB: 'RB'}
    rest = [x for x in range(8) if x not in (XA, XB)]
    for x, r in zip(rest, ['K', 'V', 'Q', 'F0', 'F1', 'A']): table[x] = r
    def go(role):
        return f"s_branch L_{role}" if role in roles else "s_endpgm"
    for x in range(8):
        nx = a.newlabel("L_dx")
        a(f"s_cmp_eq_u32 s35, {x}"); a(f"s_cbranch_scc0 {nx}")
        r = table[x]
        if r in ('K', 'V', 'Q'): a(go(r))
        elif r == 'A': a(go('A'))
        elif r == 'RA': a("s_mov_b32 s35, 0"); a(go('R'))
        elif r == 'RB': a("s_mov_b32 s35, 1"); a(go('R'))
        elif r in ('F0', 'F1'):
            st = int(r[1]); n2 = a.newlabel("L_dh")
            a("s_cmp_lt_u32 s34, 20"); a(f"s_cbranch_scc0 {n2}")
            a(f"s_mov_b32 s35, {st}"); a(go('F'))
            a.label(n2)
            a(f"s_sub_u32 s34, s34, {20 if st == 0 else 8}")
            a("s_cmp_lt_u32 s34, 14"); a("s_cbranch_scc0 L_exit")
            a(go('H'))
        a.label(nx)
    a.label("L_exit")
    a("s_endpgm")

def build(roles=('K', 'V', 'Q', 'H', 'R', 'A', 'F'), fake_xcc=None, opts=None):
    opts = opts or {}
    a = Asm()
    gen_init(a)
    init_lines = a.finish(); init_max = a.maxreg
    b = Asm()
    gen_dispatch(b, roles, fake_xcc)
    for k in ('K', 'V', 'Q', 'H'):
        if k in roles: gen_proj(b, k)
    if 'R' in roles:
        from gen_r import gen_r
        gen_r(b, opts)
    if 'A' in roles:
        from gen_att import gen_att
        gen_att(b)
    if 'F' in roles:
        from gen_fin import gen_fin
        gen_fin(b)
    mega_lines = b.finish()
    hdr = open('cdna_kernels/' + NAME + '.s.ref').read().split('\n')
    top = []
    for l in hdr:
        if l.startswith('; @launch') or l.startswith('; Override') or l.startswith('; grid=ceil'): continue
        if not l.startswith(';'): break
        top.append(l)
    top.append("; @launch kernel=init_kernel grid=(128,1,1) block=(256,1,1) lds=2048")
    top.append("; @launch kernel=mega_kernel grid=(256,1,1) block=(256,1,1) lds=163840")
    out = top + ['.amdgcn_target "amdgcn-amd-amdhsa--gfx950"', '.text']
    def kern(name, lines):
        return ['.globl ' + name, '.p2align 8', f'.type {name},@function', name + ':'] + lines
    out += kern('init_kernel', init_lines)
    out += kern('mega_kernel', mega_lines)
    def desc(name, nv, acc):
        return [f'.amdhsa_kernel {name}', f'  .amdhsa_next_free_vgpr {nv}', '  .amdhsa_next_free_sgpr 102', f'  .amdhsa_accum_offset {acc}',
                '  .amdhsa_group_segment_fixed_size 0', '  .amdhsa_kernarg_size 112', '  .amdhsa_user_sgpr_count 2',
                '  .amdhsa_user_sgpr_kernarg_segment_ptr 1', '  .amdhsa_system_sgpr_workgroup_id_x 1', '.end_amdhsa_kernel']
    out += ['.section .rodata,"a"', '.p2align 6'] + desc('init_kernel', 160, 160) + ['.p2align 6'] + desc('mega_kernel', 512, 256)
    print(f"; init max {init_max}  mega max {b.maxreg} nops {b.nops_inserted} lines {len(out)}", file=sys.stderr)
    return '\n'.join(out) + '\n'

if __name__ == '__main__':
    roles = sys.argv[2].split(',') if len(sys.argv) > 2 else ['K', 'V', 'Q', 'H', 'R', 'A', 'F']
    opts = {}
    for kv in sys.argv[3:]:
        k, v = kv.split('='); opts[k] = int(v)
    src = build(roles, opts=opts)
    open(sys.argv[1], 'w').write(src)
```

```python
from asmlib import *

NAME = "parallel_sum__memory_aug_recurrent_mem_tr__dense_activation_mish__prompt"
S, D, H, E, M, SEG, NSEG, F = 2048, 640, 32, 128, 8, 32, 64, 1728

MB = 1 << 20
WS_FLAGS = 0
FK_OFF, FV_OFF, FQ_OFF, FH_OFF, FM_OFF, FO_OFF = 0, 4096, 8192, 12288, 16384, 20480
HINT_OFF = 28672
FLAGS_BYTES = 32768
WS_XN   = 1 * MB
WS_XPL  = 4 * MB
WS_XPR  = 4 * MB + 131072
WS_PART = 5 * MB
WS_KT   = 16 * MB
WS_VT   = 32 * MB
WS_QT   = 48 * MB
WS_XM   = 64 * MB
WS_VM   = 72 * MB
WS_OT   = 80 * MB
WS_H1   = 100 * MB

WS_PROF = 120 * MB

P_X, P_MEM0, P_WQ, P_WK, P_WV, P_WO, P_W1, P_B1, P_W2, P_OUT, P_DBG, P_WS = 8, 10, 12, 14, 16, 18, 20, 22, 24, 26, 28, 30

def sp(p): return f"s[{p}:{p+1}]"

def load_kernargs(a):
    a("s_load_dwordx8 s[8:15], s[0:1], 0")
    a("s_load_dwordx4 s[16:19], s[0:1], 32")
    a("s_load_dwordx4 s[20:23], s[0:1], 64")
    a("s_load_dwordx8 s[24:31], s[0:1], 80")

def sadd64(a, dst, src, imm):
    a(f"s_add_u32 s{dst}, s{src}, {imm}")
    a(f"s_addc_u32 s{dst+1}, s{src+1}, 0")

WS_TL = 121 * MB
def rt_stamp(a, idx, vtmp=254, enable=True):
    if not enable: return
    lab = a.newlabel("L_rt")
    a("s_cmp_eq_u32 s32, 0"); a(f"s_cbranch_scc0 {lab}")
    a("s_memrealtime s[4:5]"); a("s_memtime s[6:7]"); a("s_waitcnt lgkmcnt(0)")
    a("s_mov_b32 s7, s6")
    a("s_lshl_b32 s5, s3, 7"); a(f"s_add_u32 s5, s5, {WS_TL + 4*idx}")
    a(f"v_mov_b32 v{vtmp}, s5"); a(f"v_mov_b32 v{vtmp+1}, s4")
    a("s_mov_b32 s4, s7")
    a("s_mov_b64 s[6:7], exec"); a("s_mov_b64 exec, 1")
    a(f"global_store_dword v{vtmp}, v{vtmp+1}, s[30:31]")
    a(f"v_mov_b32 v{vtmp+1}, s4")
    a(f"global_store_dword v{vtmp}, v{vtmp+1}, s[30:31] offset:64")
    a("s_waitcnt vmcnt(0)")
    a("s_mov_b64 exec, s[6:7]")
    a.label(lab)
```

```python
from gen_common import *
SPIN_MAX = 0x40000

def gen_fin(a, opts={}):
    tl = opts.get('tl', 0)
    L16, FOV, FHV, XO, LW, LR, OO = 1, 2, 3, 4, 5, 6, 7
    ACC, ACH, RING, NB = 8, 24, 40, 24
    T = 136
    W2 = 148
    S_S, S_NEED, S_SPIN, S_SET = 36, 37, 38, 39
    S_O, S_H, S_X, S_OUT = 44, 46, 48, 50
    a.label("L_F")
    a(f"s_mov_b32 s{S_SET}, s35")
    a("v_and_b32 v0, 63, v0")
    a(f"v_lshlrev_b32 v{L16}, 4, v0")
    a("v_lshrrev_b32 v2, 2, v0"); a("v_mul_u32_u24 v2, 1280, v2"); a("v_and_b32 v3, 3, v0"); a("v_lshl_add_u32 v2, v3, 4, v2")
    a("s_lshl_b32 s40, s34, 6")
    a("s_mul_i32 s41, s32, 1310720"); a("s_add_u32 s41, s41, s40")
    sadd64(a, 44, P_WO, "s41")
    a("s_mul_i32 s41, s32, 552960"); a("s_add_u32 s41, s41, s40")
    sadd64(a, 46, P_W2, "s41")
    a("s_lshl_b32 s41, s32, 13"); a(f"v_add_u32 v3, s41, v{L16}")
    a("v_lshrrev_b32 v4, 5, v0"); a("v_bfe_u32 v5, v0, 2, 2"); a("v_bfe_u32 v6, v0, 4, 1"); a("v_and_b32 v7, 3, v0")
    a("v_lshlrev_b32 v9, 5, v6"); a("v_lshl_add_u32 v9, v7, 3, v9"); a("v_lshl_add_u32 v9, v5, 6, v9"); a("v_add_u32 v9, s41, v9")
    a("v_lshl_add_u32 v10, v4, 9, v9")
    a("v_lshl_add_u32 v11, v4, 8, v9")
    chunks = [('o', c, 4) for c in range(16)] + [('f', c, 4 if c < 6 else 3) for c in range(7)]
    LAND = 16
    vm = Cnt(a, "vmcnt", 63)
    DEPTH = 7
    def issue(i):
        kind, c, n = chunks[i]
        base = LAND + 16*(i % 8)
        sreg = 44 if kind == 'o' else 46
        for q in range(n):
            vm.issue(i, f"global_load_dwordx4 v[{base+4*q}:{base+4*q+3}], v2, s[{sreg}:{sreg+1}]")
            sadd64(a, sreg, sreg, 20480)
    for i in range(DEPTH): issue(i)
    for i, (kind, c, n) in enumerate(chunks):
        base = LAND + 16*(i % 8); buf = 4096*(i & 1)
        vm.wait(i)
        for q in range(n): a(f"ds_write_b128 v3, v[{base+4*q}:{base+4*q+3}] offset:{buf+1024*q}")
        for kk in range(n):
            for jq in range(2):
                if kind == 'o':
                    ks = 4*c + kk
                    a(f"ds_read_b64_tr_b16 a[{4*ks+2*jq}:{4*ks+2*jq+1}], v10 offset:{buf+1024*kk+256*jq}")
                else:
                    ks = 4*c + kk
                    a(f"ds_read_b64_tr_b16 v[{W2+4*ks+2*jq}:{W2+4*ks+2*jq+1}], v11 offset:{buf+1024*kk+512*jq}")
        a("s_waitcnt lgkmcnt(0)")
        if i + DEPTH < len(chunks): issue(i + DEPTH)
    a("s_barrier")
    a(f"v_and_b32 v{FOV}, 31, v0"); a(f"v_lshlrev_b32 v{FOV}, 6, v{FOV}"); a(f"v_add_u32 v{FOV}, {FO_OFF}, v{FOV}")
    a(f"v_min_u32 v{T}, 55, v0"); a(f"v_lshrrev_b32 v{T+1}, 2, v{T}"); a(f"v_and_b32 v{T}, 3, v{T}"); a(f"v_lshlrev_b32 v{T}, 2, v{T}")
    a(f"v_lshl_add_u32 v{FHV}, v{T+1}, 6, v{T}"); a(f"v_add_u32 v{FHV}, {FH_OFF}, v{FHV}")
    a(f"v_and_b32 v{T}, 31, v0"); a(f"v_mul_u32_u24 v{T}, 1280, v{T}"); a(f"v_lshrrev_b32 v{T+1}, 5, v0"); a(f"v_lshl_add_u32 v{T}, v{T+1}, 3, v{T}")
    a("s_lshl_b32 s40, s34, 6"); a("s_lshl_b32 s41, s32, 4"); a("s_add_u32 s40, s40, s41"); a(f"v_add_u32 v{XO}, s40, v{T}")
    a("s_lshl_b32 s40, s32, 12"); a(f"v_add_u32 v{LW}, s40, v{L16}")
    a("s_lshl_b32 s40, s32, 10"); a(f"v_add_u32 v{LR}, s40, v{L16}")
    a(f"s_mov_b32 s{S_S}, s{S_SET}")
    def wait_flag(tag, voff, need, extra_sreg=None):
        lp = f"L_F_w{tag}"
        a(f"s_mov_b32 s{S_SPIN}, 0")
        a.label(lp)
        if extra_sreg is None: a(f"global_load_dword v{T}, v{voff}, {sp(P_WS)} sc1")
        else: a(f"global_load_dword v{T}, v{voff}, {sp(extra_sreg)} sc1")
        a("s_waitcnt vmcnt(0)")
        a(f"v_cmp_gt_u32 vcc, s{need}, v{T}")
        a.retry(lp, S_SPIN, SPIN_MAX, sleep=4)
    def hbase(sreg_seg):
        a(f"s_mul_i32 s40, s{sreg_seg}, {108*1024}"); a(f"s_mul_i32 s41, s32, {27*1024}"); a("s_add_u32 s40, s40, s41")
        sadd64(a, S_H, P_WS, WS_H1); sadd64(a, S_H, S_H, "s40")
    rt_stamp(a, 1, 136, tl)
    a(f"s_add_u32 s{S_NEED}, s{S_S}, 1")
    wait_flag("h0", FHV, S_NEED)
    hbase(S_S)
    def h_load(vm, i):
        b = RING + 4*(i % NB)
        vm.issue(('h', i), f"global_load_dwordx4 v[{b}:{b+3}], v{L16}, {sp(S_H)} offset:{1024*(i&3)} sc1")
        if (i & 3) == 3: sadd64(a, S_H, S_H, 4096)
    def h_mfma(vm, i, slot):
        b = RING + 4*(slot % NB)
        vm.wait(('h', i) if slot == i else ('h', i))
        c = "0" if i == 0 else f"v[{ACH}:{ACH+15}]"
        a(f"v_mfma_f32_32x32x16_bf16 v[{ACH}:{ACH+15}], v[{W2+4*i}:{W2+4*i+3}], v[{b}:{b+3}], {c}")
    vm = Cnt(a, "vmcnt", 63)
    for i in range(NB): h_load(vm, i)
    for i in range(27):
        h_mfma(vm, i, i)
        if i + NB < 27: h_load(vm, i + NB)
    a.label("L_F_loop")
    a(f"s_lshl_b32 s40, s{S_S}, 18"); a("s_lshl_b32 s41, s32, 16"); a("s_add_u32 s40, s40, s41")
    sadd64(a, S_O, P_WS, WS_OT); sadd64(a, S_O, S_O, "s40")
    a(f"s_mul_i32 s40, s{S_S}, 40960")
    sadd64(a, S_X, P_X, "s40"); sadd64(a, S_OUT, P_OUT, "s40")
    a(f"s_and_b32 s40, s{S_S}, 3"); a("s_lshl_b32 s40, s40, 11"); sadd64(a, 52, P_WS, "s40")
    a(f"s_add_u32 s{S_NEED}, s{S_S}, 1")
    a(f"s_add_u32 s54, s{S_S}, 2"); a("s_min_u32 s54, s54, 63"); a("s_add_u32 s55, s54, 1")
    wait_flag("h", FHV, 55)
    hbase(54)
    wait_flag("o", FOV, S_NEED, 52)
    vm = Cnt(a, "vmcnt", 63)
    vm.issue('x', f"global_load_dwordx2 v[{T+2}:{T+3}], v{XO}, {sp(S_X)}")
    seq = [('o', i) for i in range(64)] + [('h', i) for i in range(27)]
    def load(k):
        kind, i = seq[k]; b = RING + 4*(k % NB)
        sreg = S_O if kind == 'o' else S_H
        vm.issue(k, f"global_load_dwordx4 v[{b}:{b+3}], v{L16}, {sp(sreg)} offset:{1024*(i&3)} sc1")
        if (i & 3) == 3: sadd64(a, sreg, sreg, 4096)
    for k in range(NB): load(k)
    for k, (kind, i) in enumerate(seq):
        b = RING + 4*(k % NB)
        vm.wait(k)
        if kind == 'o':
            c = f"v[{ACH}:{ACH+15}]" if i == 0 else f"v[{ACC}:{ACC+15}]"
            a(f"v_mfma_f32_32x32x16_bf16 v[{ACC}:{ACC+15}], a[{4*i}:{4*i+3}], v[{b}:{b+3}], {c}")
        else:
            c = "0" if i == 0 else f"v[{ACH}:{ACH+15}]"
            a(f"v_mfma_f32_32x32x16_bf16 v[{ACH}:{ACH+15}], v[{W2+4*i}:{W2+4*i+3}], v[{b}:{b+3}], {c}")
        if k + NB < len(seq): load(k + NB)
        if k == 63:
            a(f"s_lshr_b32 s40, s{S_S}, 1"); a("s_and_b32 s40, s40, 1"); a("s_lshl_b32 s40, s40, 14"); a("s_add_u32 s40, s40, 32768")
            a(f"v_add_u32 v{T+4}, s40, v{LW}"); a(f"v_add_u32 v{T+5}, s40, v{LR}")
            for q in range(4): a(f"ds_write_b128 v{T+4}, v[{ACC+4*q}:{ACC+4*q+3}] offset:{1024*q}")
            a("s_waitcnt lgkmcnt(0)")
            a("s_barrier")
            for w2 in range(4): a(f"ds_read_b128 v[{ACC+4*w2}:{ACC+4*w2+3}], v{T+5} offset:{4096*w2}")
            a("s_waitcnt lgkmcnt(0)")
            for r in range(4):
                a(f"v_add_f32 v{ACC+r}, v{ACC+r}, v{ACC+4+r}"); a(f"v_add_f32 v{ACC+8+r}, v{ACC+8+r}, v{ACC+12+r}")
            for r in range(4): a(f"v_add_f32 v{ACC+r}, v{ACC+r}, v{ACC+8+r}")
            a(f"v_lshlrev_b32 v{ACC+4}, 16, v{T+2}"); a(f"v_and_b32 v{ACC+5}, 0xffff0000, v{T+2}")
            a(f"v_lshlrev_b32 v{ACC+6}, 16, v{T+3}"); a(f"v_and_b32 v{ACC+7}, 0xffff0000, v{T+3}")
            for r in range(4): a(f"v_add_f32 v{ACC+r}, v{ACC+r}, v{ACC+4+r}")
            a(f"v_cvt_pk_bf16_f32 v{T+6}, v{ACC}, v{ACC+1}"); a(f"v_cvt_pk_bf16_f32 v{T+7}, v{ACC+2}, v{ACC+3}")
            vm.issue('st', f"global_store_dwordx2 v{XO}, v[{T+6}:{T+7}], {sp(S_OUT)}")
    a(f"s_add_u32 s{S_S}, s{S_S}, 2"); a(f"s_cmp_lt_u32 s{S_S}, 64"); a("s_cbranch_scc1 L_F_loop")
    a("s_waitcnt vmcnt(0)")
    rt_stamp(a, 2, 136, tl)
    a("s_endpgm")
    a.flush()
```

```python
from gen_common import *

def gen_init(a):
    a("s_cmp_ge_u32 s2, 128")
    a("s_cbranch_scc1 L_init_exit")
    load_kernargs(a)
    a("s_waitcnt lgkmcnt(0)")
    a("s_cmp_ge_u32 s2, 64")
    a("s_cbranch_scc1 L_init_fill")
    a("s_mul_i32 s3, s2, 40960")
    sadd64(a, 32, P_X, "s3")
    sadd64(a, 34, P_WS, WS_XN)
    sadd64(a, 34, 34, "s3")
    a("v_and_b32 v1, 31, v0")
    a("v_lshrrev_b32 v2, 5, v0")
    a("v_mul_u32_u24 v3, 1280, v1")
    a("v_lshl_add_u32 v3, v2, 4, v3")
    for i in range(10):
        a(f"global_load_dwordx4 v[{16+4*i}:{19+4*i}], v3, s[32:33] offset:{128*i}")
    a("v_lshlrev_b32 v4, 2, v0")
    a("v_lshlrev_b32 v5, 2, v1")
    a("s_waitcnt vmcnt(0)")
    for i in range(40):
        a(f"v_lshlrev_b32 v{64+2*i}, 16, v{16+i}")
        a(f"v_and_b32 v{65+2*i}, 0xffff0000, v{16+i}")
    def reduce(src_regs, sq, ldsoff):
        a("v_mov_b32 v6, 0"); a("v_mov_b32 v7, 0")
        for k, r in enumerate(src_regs):
            acc = 6 + (k & 1)
            if sq:
                a(f"v_sub_f32 v8, v{r}, v10")
                a(f"v_fmac_f32 v{acc}, v8, v8")
            else:
                a(f"v_add_f32 v{acc}, v{acc}, v{r}")
        a("v_add_f32 v6, v6, v7")
        a(f"ds_write_b32 v4, v6 offset:{ldsoff}")
        a("s_waitcnt lgkmcnt(0)")
        a("s_barrier")
        for p in range(8):
            a(f"ds_read_b32 v{144+p}, v5 offset:{ldsoff + 128*p}")
        a("s_waitcnt lgkmcnt(0)")
        a("v_add_f32 v144, v144, v145"); a("v_add_f32 v146, v146, v147"); a("v_add_f32 v148, v148, v149"); a("v_add_f32 v150, v150, v151")
        a("v_add_f32 v144, v144, v146"); a("v_add_f32 v148, v148, v150"); a("v_add_f32 v144, v144, v148")
    regs = list(range(64, 144))
    reduce(regs, False, 0)
    a(f"v_mul_f32 v10, 0x{f32bits(1.0/640):08x}, v144")
    reduce(regs, True, 1024)
    a(f"v_mul_f32 v11, 0x{f32bits(1.0/640):08x}, v144")
    a("v_cvt_pk_bf16_f32 v12, v10, v11")
    a("v_lshlrev_b32 v10, 16, v12")
    a("v_and_b32 v11, 0xffff0000, v12")
    a(f"v_add_f32 v11, 0x{f32bits(1e-5):08x}, v11")
    a("v_cvt_pk_bf16_f32 v12, v11, v11")
    a("v_and_b32 v11, 0xffff0000, v12")
    a("v_sqrt_f32 v11, v11")
    a("v_cvt_pk_bf16_f32 v12, v11, v11")
    a("v_and_b32 v11, 0xffff0000, v12")
    a("v_rcp_f32 v13, v11")
    a("v_lshlrev_b32 v14, 4, v0")
    for i in range(10):
        for k in range(4):
            r0 = 64 + 8*i + 2*k; r1 = r0 + 1
            a(f"v_sub_f32 v{r0}, v{r0}, v10"); a(f"v_sub_f32 v{r1}, v{r1}, v10")
            a(f"v_cvt_pk_bf16_f32 v8, v{r0}, v{r1}")
            a(f"v_lshlrev_b32 v{r0}, 16, v8"); a(f"v_and_b32 v{r1}, 0xffff0000, v8")
            a(f"v_mul_f32 v8, v{r0}, v13"); a(f"v_mul_f32 v9, v{r1}, v13")
            a(f"v_fma_f32 v{r0}, -v8, v11, v{r0}"); a(f"v_fma_f32 v{r1}, -v9, v11, v{r1}")
            a(f"v_fma_f32 v8, v{r0}, v13, v8"); a(f"v_fma_f32 v9, v{r1}, v13, v9")
            a(f"v_cvt_pk_bf16_f32 v{16+4*i+k}, v8, v9")
        a(f"global_store_dwordx4 v14, v[{16+4*i}:{19+4*i}], s[34:35]")
        a("v_add_u32 v14, 4096, v14")
    a("s_waitcnt vmcnt(0)")
    a("s_endpgm")
    a.label("L_init_fill")
    a("s_sub_u32 s3, s2, 64")
    for r in range(4, 8): a(f"v_mov_b32 v{r}, -1")
    for r in range(8, 12): a(f"v_mov_b32 v{r}, 0")
    a("v_lshlrev_b32 v1, 4, v0")
    a("s_mul_i32 s4, s3, 20480")
    sadd64(a, 32, P_WS, WS_PART); sadd64(a, 32, 32, "s4")
    a("v_mov_b32 v2, v1")
    for i in range(5):
        a("global_store_dwordx4 v2, v[4:7], s[32:33]")
        a("v_add_u32 v2, 4096, v2")
    a("s_mul_i32 s4, s3, 640")
    sadd64(a, 34, P_WS, WS_XPL); sadd64(a, 34, 34, "s4")
    a("s_lshl_b32 s4, s3, 11")
    sadd64(a, 36, P_WS, WS_XPR); sadd64(a, 36, 36, "s4")
    a("s_lshl_b32 s4, s3, 9")
    sadd64(a, 38, P_WS, "s4")
    a("v_cmp_gt_u32 vcc, 40, v0")
    a("s_and_saveexec_b64 s[40:41], vcc")
    a("s_cbranch_execz L_init_f2")
    a("global_store_dwordx4 v1, v[4:7], s[34:35]")
    a.label("L_init_f2")
    a("s_mov_b64 exec, s[40:41]")
    a("s_movk_i32 s5, 128"); a("v_cmp_gt_u32 vcc, s5, v0")
    a("s_and_saveexec_b64 s[40:41], vcc")
    a("s_cbranch_execz L_init_f2b")
    a("global_store_dwordx4 v1, v[4:7], s[36:37]")
    a.label("L_init_f2b")
    a("s_mov_b64 exec, s[40:41]")
    a("v_cmp_gt_u32 vcc, 32, v0")
    a("s_and_saveexec_b64 s[40:41], vcc")
    a("s_cbranch_execz L_init_f3")
    a("global_store_dwordx4 v1, v[8:11], s[38:39]")
    a.label("L_init_f3")
    a("s_mov_b64 exec, s[40:41]")
    a("s_waitcnt vmcnt(0)")
    a.label("L_init_exit")
    a("s_endpgm")

import struct
def f32bits(x): return struct.unpack("<I", struct.pack("<f", x))[0]
```

```python
from gen_common import *
from gen_init import f32bits

def flag_store(a, sflag_pair, voff_reg, sval, vtmp):
    a("s_mov_b64 exec, 1")
    a(f"v_mov_b32 v{vtmp}, {sval}")
    a(f"global_store_dword v{voff_reg}, v{vtmp}, {sp(sflag_pair)} sc1")
    a("s_mov_b64 exec, -1")

def gen_proj(a, kind, opts={}):
    tl = opts.get('tl', 0)
    L = f"L_{kind}"
    wptr = {'K': P_WK, 'Q': P_WQ, 'V': P_WV, 'H': P_W1}[kind]
    rstride = 3456 if kind == 'H' else 8192
    a.label(L)
    a("v_and_b32 v1, 63, v0")
    if kind == 'Q':
        a("s_cmp_eq_u32 s34, 0"); a("s_cbranch_scc0 L_Q_noprobe")
        a("s_cmp_eq_u32 s32, 0"); a("s_cbranch_scc0 L_Q_probed")
        a("s_mov_b64 exec, 1")
        a("v_mov_b32 v3, -1")
        for cand in range(2):
            a(f"v_mov_b32 v2, {WS_XPR + 7680 + 8192*cand}")
            a(f"s_mov_b32 s{40+cand}, -1")
            for rep in range(3):
                a(f"global_store_dword v2, v3, {sp(P_WS)} sc1"); a("s_waitcnt vmcnt(0)")
                a("s_memtime s[42:43]"); a("s_waitcnt lgkmcnt(0)")
                a(f"global_load_dword v4, v2, {sp(P_WS)} sc1"); a("s_waitcnt vmcnt(0)")
                a("s_memtime s[44:45]"); a("s_waitcnt lgkmcnt(0)")
                a("s_sub_u32 s46, s44, s42"); a(f"s_min_u32 s{40+cand}, s{40+cand}, s46")
        a("s_cmp_lt_u32 s41, s40"); a("s_cselect_b32 s40, 2, 1")
        a("v_mov_b32 v2, 44"); a("v_mov_b32 v3, s40")
        a(f"global_store_dword v2, v3, {sp(P_DBG)} sc1")
        a("s_waitcnt vmcnt(0)")
        a("s_mov_b64 exec, -1")
        a.label("L_Q_probed")
        a("s_barrier")
        a.label("L_Q_noprobe")
    a("s_lshl_b32 s35, s34, 8")
    sadd64(a, 36, wptr, "s35")
    a("v_lshrrev_b32 v4, 2, v0")
    a(f"s_mov_b32 s35, {rstride}")
    a("v_mul_lo_u32 v2, v4, s35")
    a("v_and_b32 v5, 3, v0")
    a("v_lshl_add_u32 v2, v5, 4, v2")
    if kind == 'H':
        a("s_cmp_eq_u32 s34, 13"); a("s_cselect_b32 s35, 0, 128")
        a("v_add_u32 v3, s35, v2")
    else:
        a("v_add_u32 v3, 128, v2")
    for c in range(10):
        for i in range(4):
            d = 64 + 16*c + 4*i
            a(f"global_load_dwordx4 v[{d}:{d+3}], v{2 if i < 2 else 3}, s[36:37] offset:{64*(i&1)}")
        if c != 9:
            sadd64(a, 36, 36, 64*rstride)
    a("v_and_b32 v10, 3, v4")
    a("v_bfe_u32 v11, v0, 1, 1")
    a("v_and_b32 v12, 1, v0")
    a("v_lshlrev_b32 v13, 8, v4")
    a("v_lshl_add_u32 v13, v12, 4, v13")
    a("v_lshl_add_u32 v13, v11, 5, v13")
    for i in range(4):
        a(f"v_xor_b32 v14, {i}, v10")
        a(f"v_lshl_add_u32 v{6+i}, v14, 6, v13")
    a("v_lshrrev_b32 v10, 5, v1")
    a("v_bfe_u32 v11, v1, 2, 2")
    a("v_lshl_add_u32 v12, v10, 3, v11")
    a("v_lshlrev_b32 v12, 8, v12")
    a("v_bfe_u32 v13, v1, 4, 1")
    a("s_lshl_b32 s35, s32, 1")
    a("v_add_u32 v13, s35, v13")
    a("v_lshlrev_b32 v14, 1, v11")
    a("v_xor_b32 v13, v13, v14")
    a("v_lshl_add_u32 v12, v13, 5, v12")
    a("v_and_b32 v13, 3, v1")
    a("v_lshl_add_u32 v15, v13, 3, v12")
    rounds = [[0, 1, 2, 3], [4, 5, 6, 7], [8, 9]]
    for ri, rd in enumerate(rounds):
        rem = 4 * (9 - rd[-1])
        a(f"s_waitcnt vmcnt({rem})")
        if ri: a("s_barrier")
        for k, c in enumerate(rd):
            for i in range(4):
                d = 64 + 16*c + 4*i
                a(f"ds_write_b128 v{6+i}, v[{d}:{d+3}] offset:{16384*k}")
        a("s_waitcnt lgkmcnt(0)")
        a("s_barrier")
        for k, c in enumerate(rd):
            for kk in range(4):
                for jq in range(2):
                    ks = 4*c + kk
                    a(f"ds_read_b64_tr_b16 a[{4*ks+2*jq}:{4*ks+2*jq+1}], v15 offset:{16384*k + 4096*kk + 1024*jq}")
            a("s_waitcnt lgkmcnt(0)")
    a("s_barrier")
    if kind == 'H':
        a("s_lshl_b32 s35, s34, 7"); a("s_lshl_b32 s38, s32, 5"); a("s_add_u32 s35, s35, s38")
        a("v_lshrrev_b32 v10, 5, v1"); a("v_lshlrev_b32 v10, 2, v10"); a("v_add_u32 v10, s35, v10")
        a("v_min_u32 v10, 1700, v10")
        a("v_lshlrev_b32 v10, 1, v10")
        for q in range(4):
            a(f"global_load_dwordx2 v[{64+2*q}:{65+2*q}], v10, {sp(P_B1)} offset:{16*q}")
        a("s_waitcnt vmcnt(0)")
        for q in range(4):
            for k in range(2):
                a(f"v_lshlrev_b32 v{80+4*q+2*k}, 16, v{64+2*q+k}")
                a(f"v_and_b32 v{81+4*q+2*k}, 0xffff0000, v{64+2*q+k}")
        a(f"s_mov_b32 s60, 0x{f32bits(-1.4426950408889634):08x}")
    a("s_mul_i32 s35, s32, 10240")
    a("v_lshlrev_b32 v5, 4, v1")
    a("v_add_u32 v2, s35, v5"); a("v_add_u32 v3, 4096, v2"); a("v_add_u32 v4, 8192, v2")
    sadd64(a, 36, P_WS, WS_XN)
    a("s_mov_b32 s40, s35")
    if kind in ('K', 'Q', 'V'):
        ob = {'K': WS_KT, 'Q': WS_QT, 'V': WS_VT}[kind]
        a("s_lshl_b32 s35, s34, 13")
        sadd64(a, 38, P_WS, ob); sadd64(a, 38, 38, "s35")
        a("v_bfe_u32 v10, v1, 4, 1"); a("v_lshlrev_b32 v10, 10, v10")
        a("v_lshrrev_b32 v11, 5, v1"); a("v_lshl_add_u32 v10, v11, 8, v10")
        a("v_and_b32 v11, 15, v1"); a("v_lshl_add_u32 v10, v11, 4, v10")
        a("s_lshl_b32 s35, s32, 11"); a("v_add_u32 v6, s35, v10")
        ostep = 32*8192
        fo = {'K': FK_OFF, 'Q': FQ_OFF, 'V': FV_OFF}[kind]
    else:
        a("s_lshl_b32 s35, s34, 13"); a("s_lshl_b32 s41, s32, 11"); a("s_add_u32 s35, s35, s41")
        sadd64(a, 38, P_WS, WS_H1); sadd64(a, 38, 38, "s35")
        a("v_lshlrev_b32 v6, 4, v1")
        ostep = 108*1024
        fo = FH_OFF
    a("s_lshl_b32 s35, s34, 6"); a("s_lshl_b32 s41, s32, 2"); a("s_add_u32 s35, s35, s41"); a(f"s_add_u32 s35, s35, {fo}")
    a("v_mov_b32 v7, s35")
    if kind == 'H':
        a("s_cmp_eq_u32 s34, 13"); a("s_cselect_b32 s61, 1, 0"); a("s_lshr_b32 s41, s32, 1"); a("s_and_b32 s61, s61, s41"); a("s_xor_b32 s61, s61, 1")
    def dma():
        for g in range(3):
            a(f"s_add_u32 m0, s40, {4096*g}") if g else a("s_mov_b32 m0, s40")
            for i in range(4 if g < 2 else 2):
                a(f"global_load_lds_dwordx4 v{2+g}, s[36:37] offset:{1024*i}")
    rt_stamp(a, 1, 250, tl)
    dma()
    a("s_mov_b32 s42, 0")
    a("s_waitcnt vmcnt(0)")
    a.label(L + "_loop")
    a("s_waitcnt vmcnt(3)")
    a("s_barrier")
    a("s_cmp_lt_u32 s42, 63"); a("s_cselect_b32 s35, 40960, 0")
    sadd64(a, 36, 36, "s35")
    a("s_xor_b32 s43, s42, 1"); a("s_and_b32 s43, s43, 1"); a("s_mul_i32 s43, s43, 40960")
    a("s_mul_i32 s40, s32, 10240"); a("s_add_u32 s40, s40, s43")
    dma()
    NR = 8
    def rd(ks): a(f"ds_read_b128 v[{32+4*(ks%NR)}:{35+4*(ks%NR)}], v5 offset:{1024*ks}")
    for ks in range(NR): rd(ks)
    for ks in range(40):
        left = min(NR - 1, 39 - ks)
        a(f"s_waitcnt lgkmcnt({left})")
        f = f"v[{32+4*(ks%NR)}:{35+4*(ks%NR)}]"; wv = f"a[{4*ks}:{4*ks+3}]"
        c = "0" if ks == 0 else "v[16:31]"
        if kind == 'V': a(f"v_mfma_f32_32x32x16_bf16 v[16:31], {f}, {wv}, {c}")
        else: a(f"v_mfma_f32_32x32x16_bf16 v[16:31], {wv}, {f}, {c}")
        if ks + NR < 40: rd(ks + NR)
    a("v_xor_b32 v5, 0xa000, v5")
    a("s_waitcnt vmcnt(10)")
    flag_store(a, P_WS, 7, "s42", 8)
    if kind == 'H':
        a("s_cmp_eq_u32 s61, 0"); a(f"s_cbranch_scc1 {L}_skip")
        for g0 in (0, 8):
            R = range(g0, g0 + 8)
            for r in R: a(f"v_add_f32 v{16+r}, v{16+r}, v{80+r}")
            for r in R: a(f"v_mul_f32 v{96+r}, s60, abs(v{16+r})")
            for r in R: a(f"v_exp_f32 v{96+r}, v{96+r}")
            for k, r in enumerate(R): a(f"v_cmp_lt_f32 s[{44+2*k}:{45+2*k}], 0, v{16+r}")
            for r in R: a(f"v_mul_f32 v{112+r}, v{96+r}, v{96+r}")
            for r in R: a(f"v_fma_f32 v{128+r}, 2.0, v{96+r}, 1.0")
            for r in R: a(f"v_fma_f32 v{96+r}, 2.0, v{96+r}, v{112+r}")
            for r in R: a(f"v_add_f32 v{112+r}, v{112+r}, v{112+r}")
            for k, r in enumerate(R): a(f"v_cndmask_b32 v{96+r}, v{96+r}, v{128+r}, s[{44+2*k}:{45+2*k}]")
            for k, r in enumerate(R): a(f"v_cndmask_b32 v{112+r}, 2.0, v{112+r}, s[{44+2*k}:{45+2*k}]")
            for r in R: a(f"v_add_f32 v{112+r}, v{112+r}, v{96+r}")
            for r in R: a(f"v_rcp_f32 v{112+r}, v{112+r}")
            for r in R: a(f"v_mul_f32 v{16+r}, v{16+r}, v{96+r}")
            for r in R: a(f"v_mul_f32 v{16+r}, v{16+r}, v{112+r}")
        for k in range(8): a(f"v_cvt_pk_bf16_f32 v{64+k}, v{16+2*k}, v{17+2*k}")
        a("global_store_dwordx4 v6, v[64:67], s[38:39] sc1")
        a("global_store_dwordx4 v6, v[68:71], s[38:39] offset:1024 sc1")
        a(f"s_branch {L}_done")
        a.label(L + "_skip")
        a(f"global_load_dword v64, v7, {sp(P_WS)} sc1")
        a(f"global_load_dword v65, v7, {sp(P_WS)} sc1")
        a.label(L + "_done")
    else:
        order = [0, 1, 4, 5, 2, 3, 6, 7]
        for pos, dd in enumerate(order):
            a(f"v_cvt_pk_bf16_f32 v{64+pos}, v{16+2*dd}, v{17+2*dd}")
        a("global_store_dwordx4 v6, v[64:67], s[38:39] sc1")
        a("global_store_dwordx4 v6, v[68:71], s[38:39] offset:512 sc1")
    sadd64(a, 38, 38, ostep)
    a("s_add_u32 s42, s42, 1")
    a("s_cmp_lt_u32 s42, 64")
    a(f"s_cbranch_scc1 {L}_loop")
    a("s_waitcnt vmcnt(0)")
    flag_store(a, P_WS, 7, 64, 8)
    a("s_waitcnt vmcnt(0)")
    rt_stamp(a, 2, 250, tl)
    a("s_endpgm")
```

```python
from gen_common import *
from gen_init import f32bits
from gen_proj import flag_store

L_WO  = 0
L_WS  = 81920
L_IMG = 131072
L_KTB = 141312
L_XIM = 157696
L_OEX = 161792
L_VEX = 162816
L_STG = 81920

V_IDX, V_L16, V_L8, V_AT0, V_AT1, V_XWQ, V_XWK, V_XR, V_KT, V_WO, V_WS, V_OEW, V_OER, V_VEW, V_VER, V_IW0, V_IW2, V_RL = range(1, 19)
V_ONES = 20
V_SEL  = 24
V_CNEG = 28
ACC = 32
V_VT = 52
POOL = 56
AF = POOL; VS = POOL + 40; KT = POOL + 56; XF = POOL + 88
WREG = 160

def wfrag(tile, c):
    order = []
    for cc in range(10):
        for t in ('q0', 'q1', 'k0'): order.append((t, cc))
    for cc in range(4): order.append(('k1', cc))
    for cc in range(10): order.append(('v', cc))
    if (tile, c) not in order: return None
    f = order.index((tile, c))
    return ('a', 8*f) if f < 32 else ('v', WREG + 8*(f - 32))
def wr(tile, c, lo=0, n=8):
    k, b = wfrag(tile, c)
    return f"{k}[{b+lo}:{b+lo+n-1}]"

S_W, S_J, S_G = 32, 34, 35
S_H, S_HF, S_PROD, S_RID, S_RACT, S_STEP = 36, 37, 38, 39, 40, 41
S_T0, S_T1, S_T2, S_T3 = 44, 45, 46, 47
S_PST = 48
S_RL  = 50
S_PUBR, S_PUBL = 58, 60
S_GL, S_GR = 62, 64
S_KT, S_VT, S_XM, S_VM = 66, 68, 70, 72
S_SPIN = 74
S_XMN, S_VMN = 76, 78
S_POI_OLD = 76
S_PXR, S_PXL = 84, 86
S_C = 88
S_LO, S_HI = 90, 91
S_EXO = 92
S_NEED = 94
S_XMW = 95
S_WBIT = 87
S_EXX = 84
S_HW, S_HR = 80, 82
S_POL = 86
S_OFFR = 85
S_DUM = 42

SPIN_MAX = 0x20000

def gen_r(a, opts):
    D_RED = opts.get('d_red', 5); D_LOC = opts.get('d_loc', 2); D_REM = opts.get('d_rem', 1)
    prof = opts.get('prof', False)
    a.label("L_R")
    a("v_and_b32 v1, 63, v0")
    a(f"s_lshr_b32 s{S_T0}, s{S_J}, 1"); a(f"s_lshl_b32 s{S_H}, s{S_G}, 4"); a(f"s_add_u32 s{S_H}, s{S_H}, s{S_T0}")
    a(f"s_and_b32 s{S_HF}, s{S_J}, 1")
    a(f"s_lshl_b32 s{S_PROD}, s{S_G}, 5"); a(f"s_add_u32 s{S_PROD}, s{S_PROD}, s{S_J}")
    a(f"s_lshl_b32 s{S_RID}, s{S_W}, 5"); a(f"s_add_u32 s{S_RID}, s{S_RID}, s{S_J}")
    a(f"s_cmp_lt_u32 s{S_RID}, 80"); a(f"s_cselect_b32 s{S_RACT}, 1, 0")
    prologue_weights(a)
    setup_regs(a)
    load_mem0(a)
    rt_stamp(a, 1, 140, opts.get('tl', 0))
    census(a)
    body(a, opts, slow=False)
    body(a, opts, slow=True)

def prologue_weights(a):
    lane = 1
    a(f"s_lshl_b32 s{S_T0}, s{S_H}, 7"); a(f"s_lshl_b32 s{S_T1}, s{S_HF}, 6"); a(f"s_add_u32 s{S_T0}, s{S_T0}, s{S_T1}")
    a(f"s_mul_i32 s{S_T0}, s{S_T0}, 1280")
    sadd64(a, 48, P_WO, f"s{S_T0}")
    a("v_lshrrev_b32 v2, 2, v0")
    a("v_mul_u32_u24 v3, 1280, v2")
    a("v_and_b32 v4, 3, v0")
    a("v_lshl_add_u32 v3, v4, 4, v3")
    for i in range(20):
        a(f"global_load_dwordx4 v[{30+4*i}:{33+4*i}], v3, s[48:49] offset:{64*i}")
    a("v_and_b32 v5, 1, v2"); a("v_bfe_u32 v6, v2, 2, 2"); a("v_lshl_add_u32 v5, v6, 1, v5")
    a("v_bfe_u32 v6, v0, 1, 1")
    a("v_and_b32 v7, 1, v0")
    a("v_mul_u32_u24 v8, 1280, v2"); a("v_lshl_add_u32 v8, v7, 4, v8"); a(f"v_add_u32 v8, {L_STG}, v8")
    for q in range(4):
        a(f"v_add_u32 v9, {2*q}, v6"); a("v_xor_b32 v9, v9, v5"); a(f"v_lshl_add_u32 v{10+q}, v9, 5, v8")
    a("s_waitcnt vmcnt(0)")
    for i in range(20):
        a(f"ds_write_b128 v{10+(i&3)}, v[{30+4*i}:{33+4*i}] offset:{256*(i>>2)}")
    a("s_waitcnt lgkmcnt(0)")
    a(f"s_lshl_b32 s{S_T0}, s{S_H}, 8")
    sadd64(a, 50, P_WQ, f"s{S_T0}"); sadd64(a, 52, P_WK, f"s{S_T0}")
    a(f"s_lshl_b32 s{S_T1}, s{S_HF}, 7"); a(f"s_add_u32 s{S_T0}, s{S_T0}, s{S_T1}")
    sadd64(a, 54, P_WV, f"s{S_T0}")
    a("v_lshlrev_b32 v3, 13, v2"); a("v_lshl_add_u32 v3, v4, 4, v3")
    def qkv_loads(base):
        for i in range(4): a(f"global_load_dwordx4 v[{base+4*i}:{base+4*i+3}], v3, s[50:51] offset:{64*i}")
        for i in range(4): a(f"global_load_dwordx4 v[{base+16+4*i}:{base+16+4*i+3}], v3, s[52:53] offset:{64*i}")
        for i in range(2): a(f"global_load_dwordx4 v[{base+32+4*i}:{base+32+4*i+3}], v3, s[54:55] offset:{64*i}")
        for p in (50, 52, 54): sadd64(a, p, p, 64*8192)
    qkv_loads(30); qkv_loads(70)
    a("s_barrier")
    a("v_lshrrev_b32 v5, 4, v1")
    a("v_bfe_u32 v6, v1, 2, 2")
    a("v_lshrrev_b32 v7, 1, v5"); a("v_lshlrev_b32 v7, 4, v7")
    a("v_and_b32 v8, 1, v5"); a("v_lshl_add_u32 v7, v8, 2, v7")
    a("v_and_b32 v9, 1, v6"); a("v_add_u32 v7, v7, v9")
    a("v_lshrrev_b32 v10, 1, v6"); a("v_lshl_add_u32 v7, v10, 3, v7")
    a("v_mul_u32_u24 v7, 1280, v7")
    a("v_and_b32 v11, 3, v1"); a("v_lshl_add_u32 v7, v11, 3, v7"); a(f"v_add_u32 v7, {L_STG}, v7")
    a("v_lshl_add_u32 v9, v8, 1, v9"); a("v_lshl_add_u32 v9, v10, 2, v9")
    a(f"s_mul_i32 s{S_T0}, s{S_W}, 20480"); a("v_lshlrev_b32 v12, 4, v1"); a(f"v_add_u32 v12, s{S_T0}, v12")
    for tt in range(10):
        a(f"s_mul_i32 s{S_T0}, s{S_W}, 10"); a(f"s_add_u32 s{S_T0}, s{S_T0}, {tt}")
        a(f"s_and_b32 s{S_T1}, s{S_T0}, 7"); a(f"s_and_b32 s{S_T2}, s{S_T0}, 0xf8")
        a(f"v_xor_b32 v13, s{S_T1}, v9"); a(f"v_add_u32 v13, s{S_T2}, v13"); a("v_lshl_add_u32 v13, v13, 5, v7")
        d = 110 + 8*(tt & 1)
        for hi in range(2):
            for jq in range(2):
                a(f"ds_read_b64_tr_b16 v[{d+4*hi+2*jq}:{d+4*hi+2*jq+1}], v13 offset:{40960*hi + 2560*jq}")
        a("s_waitcnt lgkmcnt(0)")
        a(f"ds_write_b128 v12, v[{d}:{d+3}] offset:{2048*tt}")
        a(f"ds_write_b128 v12, v[{d+4}:{d+7}] offset:{2048*tt+1024}")
    a("s_waitcnt lgkmcnt(0)")
    a("s_barrier")
    a("v_and_b32 v5, 1, v2"); a("v_bfe_u32 v6, v2, 2, 1"); a("v_bfe_u32 v7, v2, 4, 1")
    a("v_lshl_add_u32 v8, v6, 1, v5"); a("v_lshl_add_u32 v8, v7, 2, v8")
    a("v_lshl_add_u32 v9, v7, 1, v6")
    a("v_bfe_u32 v6, v0, 1, 1"); a("v_and_b32 v7, 1, v0")
    a("v_lshlrev_b32 v16, 8, v2"); a("v_lshl_add_u32 v16, v7, 4, v16"); a(f"v_add_u32 v16, {L_STG}, v16")
    for i in range(4):
        a(f"v_add_u32 v17, {2*i}, v6"); a("v_xor_b32 v17, v17, v8"); a(f"v_lshl_add_u32 v{10+i}, v17, 5, v16")
    a("v_lshlrev_b32 v16, 7, v2"); a("v_lshl_add_u32 v16, v7, 4, v16"); a(f"v_add_u32 v16, {L_STG + 32768}, v16")
    for i in range(2):
        a(f"v_add_u32 v17, {2*i}, v6"); a("v_xor_b32 v17, v17, v9"); a(f"v_lshl_add_u32 v{14+i}, v17, 5, v16")
    a("v_lshrrev_b32 v5, 4, v1"); a("v_bfe_u32 v6, v1, 2, 2")
    a("v_lshlrev_b32 v7, 2, v5"); a("v_and_b32 v8, 1, v6"); a("v_add_u32 v7, v7, v8"); a("v_lshrrev_b32 v9, 1, v6"); a("v_lshl_add_u32 v7, v9, 4, v7")
    a("v_and_b32 v16, 1, v5")
    a("v_lshl_add_u32 v17, v16, 1, v8"); a("v_lshl_add_u32 v17, v9, 2, v17")
    a("v_lshl_add_u32 v21, v9, 1, v16")
    a("v_and_b32 v22, 3, v1")
    a("v_lshlrev_b32 v23, 8, v7"); a("v_lshl_add_u32 v23, v22, 3, v23"); a(f"v_add_u32 v23, {L_STG}, v23")
    for t in range(2):
        a(f"s_lshl_b32 s{S_T0}, s{S_W}, 1"); a(f"s_add_u32 s{S_T0}, s{S_T0}, {t}")
        a(f"v_xor_b32 v24, s{S_T0}, v17"); a(f"v_lshl_add_u32 v{18+t}, v24, 5, v23")
    a("v_lshlrev_b32 v23, 7, v7"); a("v_lshl_add_u32 v23, v22, 3, v23"); a(f"v_add_u32 v23, {L_STG + 32768}, v23")
    a(f"v_xor_b32 v24, s{S_W}, v21"); a("v_lshl_add_u32 v20, v24, 5, v23")
    KTMP = 110
    for c in range(10):
        base = 30 if (c & 1) == 0 else 70
        a(f"s_waitcnt vmcnt({10 if c < 9 else 0})")
        for i in range(4): a(f"ds_write_b128 v{10+i}, v[{base+4*i}:{base+4*i+3}]")
        for i in range(4): a(f"ds_write_b128 v{10+i}, v[{base+16+4*i}:{base+16+4*i+3}] offset:16384")
        for i in range(2): a(f"ds_write_b128 v{14+i}, v[{base+32+4*i}:{base+32+4*i+3}]")
        a("s_waitcnt lgkmcnt(0)")
        if c + 2 < 10: qkv_loads(base)
        a("s_barrier")
        for tile, areg, img in (('q0', 18, 0), ('q1', 19, 0), ('k0', 18, 16384), ('k1', 19, 16384), ('v', 20, 0)):
            for hi in range(2):
                for jq in range(2):
                    lo = 4*hi + 2*jq
                    if wfrag(tile, c) is None: dst = f"v[{KTMP+8*(c-4)+lo}:{KTMP+8*(c-4)+lo+1}]"
                    else: dst = wr(tile, c, lo, 2)
                    off = img + (hi*4096 + jq*256 if tile == 'v' else hi*8192 + jq*512)
                    a(f"ds_read_b64_tr_b16 {dst}, v{areg} offset:{off}")
            a("s_waitcnt lgkmcnt(0)")
        dlt = 40960 if (c & 1) == 0 else -40960
        a(f"s_mov_b32 s{S_T0}, {dlt}")
        for r in (10, 11, 12, 13, 14, 15, 18, 19, 20): a(f"v_add_u32 v{r}, s{S_T0}, v{r}")
    a("s_barrier")
    a(f"s_mul_i32 s{S_T0}, s{S_W}, 12288"); a(f"s_add_u32 s{S_T0}, s{S_T0}, {L_WS}")
    a("v_lshlrev_b32 v12, 4, v1"); a(f"v_add_u32 v12, s{S_T0}, v12")
    for k in range(6):
        a(f"ds_write_b128 v12, v[{KTMP+8*k}:{KTMP+8*k+3}] offset:{2048*k}")
        a(f"ds_write_b128 v12, v[{KTMP+8*k+4}:{KTMP+8*k+7}] offset:{2048*k+1024}")
    a("s_waitcnt lgkmcnt(0)")

def setup_regs(a):
    LN = 19
    a(f"v_mov_b32 v{LN}, v1")
    T = 56
    a(f"v_lshrrev_b32 v{T}, 4, v{LN}")
    a(f"v_and_b32 v{T+1}, 15, v{LN}")
    a(f"v_bfe_u32 v{T+2}, v{LN}, 2, 2")
    a(f"v_and_b32 v{T+3}, 3, v{LN}")
    G, N, R_, CC = T, T+1, T+2, T+3
    t0, t1, t2 = T+4, T+5, T+6
    a(f"v_and_b32 v{t0}, 2, v{LN}"); a(f"v_cmp_eq_u32 vcc, 0, v{t0}")
    a(f"v_mov_b32 v{t1}, 0xeeeeeeee"); a(f"v_mov_b32 v{t2}, 0x44444444")
    a(f"v_cndmask_b32 v{V_IDX}, v{t1}, v{t2}, vcc")
    a(f"v_lshlrev_b32 v{V_L16}, 4, v{LN}"); a(f"v_lshlrev_b32 v{V_L8}, 3, v{LN}")
    a(f"v_lshrrev_b32 v{t0}, 1, v{G}"); a(f"v_lshlrev_b32 v{t0}, 9, v{t0}")
    a(f"v_lshl_add_u32 v{t0}, v{CC}, 7, v{t0}")
    a(f"v_and_b32 v{t1}, 1, v{G}"); a(f"v_lshl_add_u32 v{t0}, v{t1}, 6, v{t0}")
    a(f"v_lshl_add_u32 v{t0}, v{R_}, 3, v{t0}"); a(f"v_add_u32 v{t0}, {L_IMG}, v{t0}")
    a(f"v_lshrrev_b32 v{t1}, 1, v{CC}")
    a(f"v_lshl_add_u32 v{V_AT0}, v{t1}, 5, v{t0}")
    a(f"v_xor_b32 v{t1}, 1, v{t1}"); a(f"v_lshl_add_u32 v{V_AT1}, v{t1}, 5, v{t0}")
    a(f"s_lshl_b32 s{S_T0}, s{S_W}, 5"); a(f"v_add_u32 v{t0}, s{S_T0}, v{N}")
    a(f"v_lshrrev_b32 v{t1}, 2, v{t0}"); a(f"v_lshrrev_b32 v{t2}, 1, v{G}"); a(f"v_add_u32 v{t1}, v{t1}, v{t2}")
    a(f"v_lshlrev_b32 v{t0}, 5, v{t0}"); a(f"v_and_b32 v{t2}, 1, v{G}"); a(f"v_lshl_add_u32 v{t0}, v{t2}, 2, v{t0}"); a(f"v_add_u32 v{t0}, {L_XIM}, v{t0}")
    a(f"v_and_b32 v{t2}, 3, v{t1}"); a(f"v_lshl_add_u32 v{V_XWQ}, v{t2}, 3, v{t0}")
    a(f"v_add_u32 v{t1}, 2, v{t1}"); a(f"v_and_b32 v{t2}, 3, v{t1}"); a(f"v_lshl_add_u32 v{V_XWK}, v{t2}, 3, v{t0}")
    a(f"v_lshl_add_u32 v{t0}, v{G}, 2, v{R_}"); a(f"v_lshlrev_b32 v{t0}, 5, v{t0}")
    a(f"v_add_u32 v{t1}, v{CC}, v{G}"); a(f"v_and_b32 v{t1}, 3, v{t1}"); a(f"v_lshl_add_u32 v{t0}, v{t1}, 3, v{t0}")
    a(f"v_add_u32 v{V_XR}, {L_XIM}, v{t0}")
    a(f"v_add_u32 v{V_KT}, {L_KTB}, v{V_L16}")
    a(f"s_mul_i32 s{S_T0}, s{S_W}, 20480"); a(f"v_add_u32 v{V_WO}, s{S_T0}, v{V_L16}")
    a(f"s_mul_i32 s{S_T0}, s{S_W}, 12288"); a(f"s_add_u32 s{S_T0}, s{S_T0}, {L_WS}"); a(f"v_add_u32 v{V_WS}, s{S_T0}, v{V_L16}")
    a(f"s_lshl_b32 s{S_T0}, s{S_W}, 1"); a(f"v_lshrrev_b32 v{t0}, 1, v{G}"); a(f"v_add_u32 v{t0}, s{S_T0}, v{t0}")
    a(f"v_and_b32 v{t1}, 6, v{N}"); a(f"v_xor_b32 v{t0}, v{t0}, v{t1}"); a(f"v_lshlrev_b32 v{t0}, 4, v{t0}")
    a(f"v_and_b32 v{t1}, 7, v{N}"); a(f"v_lshl_add_u32 v{t0}, v{t1}, 7, v{t0}")
    a(f"v_and_b32 v{t1}, 1, v{G}"); a(f"v_lshl_add_u32 v{t0}, v{t1}, 3, v{t0}"); a(f"v_add_u32 v{V_OEW}, {L_OEX}, v{t0}")
    a(f"v_lshrrev_b32 v{t0}, 2, v{N}"); a(f"v_lshlrev_b32 v{t0}, 1, v{t0}"); a(f"v_and_b32 v{t1}, 1, v{N}"); a(f"v_add_u32 v{t0}, v{t0}, v{t1}")
    a(f"v_bfe_u32 v{t1}, v{N}, 1, 1"); a(f"v_lshl_add_u32 v{t1}, v{G}, 1, v{t1}")
    a(f"v_and_b32 v{t2}, 6, v{t0}"); a(f"v_xor_b32 v{t1}, v{t1}, v{t2}"); a(f"v_lshlrev_b32 v{t1}, 4, v{t1}")
    a(f"v_lshl_add_u32 v{t1}, v{t0}, 7, v{t1}"); a(f"v_add_u32 v{V_OER}, {L_OEX}, v{t1}")
    a(f"s_lshl_b32 s{S_T0}, s{S_W}, 8"); a(f"s_add_u32 s{S_T0}, s{S_T0}, {L_VEX}")
    a(f"v_lshlrev_b32 v{t0}, 4, v{N}"); a(f"v_add_u32 v{t0}, s{S_T0}, v{t0}")
    a(f"v_lshl_add_u32 v{V_VEW}, v{G}, 2, v{t0}")
    a(f"v_and_b32 v{t1}, 1, v{G}"); a(f"v_lshl_add_u32 v{V_VER}, v{t1}, 3, v{t0}")
    a(f"s_mul_i32 s{S_T0}, s{S_W}, 2560"); a(f"s_add_u32 s{S_T0}, s{S_T0}, {L_IMG}")
    a(f"v_lshrrev_b32 v{t0}, 5, v{LN}"); a(f"v_lshlrev_b32 v{t0}, 9, v{t0}")
    a(f"v_bfe_u32 v{t1}, v{LN}, 3, 2"); a(f"v_lshl_add_u32 v{t0}, v{t1}, 7, v{t0}")
    a(f"v_lshrrev_b32 v{t1}, 1, v{t1}"); a(f"v_lshlrev_b32 v{t1}, 5, v{t1}")
    a(f"v_and_b32 v{t2}, 7, v{LN}"); a(f"v_lshlrev_b32 v{t2}, 4, v{t2}"); a(f"v_xor_b32 v{t2}, v{t2}, v{t1}")
    a(f"v_add_u32 v{t0}, v{t0}, v{t2}"); a(f"v_add_u32 v{V_IW0}, s{S_T0}, v{t0}")
    a(f"v_lshrrev_b32 v{t1}, 1, v{G}"); a(f"v_lshlrev_b32 v{t1}, 5, v{t1}"); a(f"v_lshlrev_b32 v{t2}, 3, v{N}"); a(f"v_xor_b32 v{t2}, v{t2}, v{t1}")
    a(f"v_lshl_add_u32 v{t0}, v{G}, 7, v{t2}"); a(f"v_add_u32 v{V_IW2}, s{S_T0}, v{t0}")
    a(f"v_lshrrev_b32 v{t0}, 3, v{N}"); a(f"v_lshl_add_u32 v{t0}, v{G}, 1, v{t0}"); a(f"v_mul_u32_u24 v{t0}, 10240, v{t0}")
    a(f"v_and_b32 v{t1}, 7, v{N}"); a(f"v_lshl_add_u32 v{t0}, v{t1}, 4, v{t0}")
    a(f"s_min_u32 s{S_T0}, s{S_RID}, 79"); a(f"s_lshl_b32 s{S_T0}, s{S_T0}, 7"); a(f"v_add_u32 v{V_RL}, s{S_T0}, v{t0}")
    for r in range(4): a(f"v_mov_b32 v{V_ONES+r}, 0x3f803f80")
    for k in range(4):
        a(f"v_mov_b32 v{t0}, 0")
        a(f"v_cmp_eq_u32 vcc, {2*k}, v{N}"); a(f"v_mov_b32 v{t1}, 0x3f80"); a(f"v_cndmask_b32 v{t0}, v{t0}, v{t1}, vcc")
        a(f"v_cmp_eq_u32 vcc, {2*k+1}, v{N}"); a(f"v_mov_b32 v{t1}, 0x3f800000"); a(f"v_cndmask_b32 v{V_SEL+k}, v{t0}, v{t1}, vcc")
    a(f"v_cmp_gt_u32 vcc, 2, v{G}"); a(f"v_mov_b32 v{t1}, 0xff800000"); a(f"v_mov_b32 v{t0}, 0")
    for r in range(4): a(f"v_cndmask_b32 v{V_CNEG+r}, v{t0}, v{t1}, vcc")
    a(f"s_mov_b32 s{S_C}, 0x{f32bits(128**-0.5 * 1.4426950408889634):08x}"); a(f"s_mov_b32 s{S_C+1}, s{S_C}")
    a(f"s_mov_b32 s{S_LO}, 0x00003f80"); a(f"s_mov_b32 s{S_HI}, 0x3f800000")
    a(f"s_mov_b32 s{S_EXO}, 0x00ff00ff"); a(f"s_mov_b32 s{S_EXO+1}, 0x00ff00ff")

def load_mem0(a):
    LN = 19
    T = 56
    a(f"v_bfe_u32 v{T}, v{LN}, 4, 2"); a(f"v_and_b32 v{T+1}, 15, v{LN}")
    a(f"v_mul_u32_u24 v{T+2}, 2560, v{T}")
    a(f"s_lshl_b32 s{S_T0}, s{S_W}, 5"); a(f"v_add_u32 v{T+3}, s{S_T0}, v{T+1}"); a(f"v_lshl_add_u32 v{T+2}, v{T+3}, 1, v{T+2}")
    B = 64
    for i in range(5):
        for q, off in enumerate((0, 1280, 32, 1312)):
            a(f"global_load_ushort v{B+4*i+q}, v{T+2}, {sp(P_MEM0)} offset:{256*i+off}")
    a(f"v_lshrrev_b32 v{T+3}, 1, v{T}"); a(f"v_lshlrev_b32 v{T+3}, 5, v{T+3}"); a(f"v_lshlrev_b32 v{T+4}, 3, v{T+1}"); a(f"v_xor_b32 v{T+4}, v{T+4}, v{T+3}")
    a(f"v_lshl_add_u32 v{T+4}, v{T}, 7, v{T+4}"); a(f"s_lshl_b32 s{S_T0}, s{S_W}, 9"); a(f"s_add_u32 s{S_T0}, s{S_T0}, {L_IMG}"); a(f"v_add_u32 v{T+4}, s{S_T0}, v{T+4}")
    a("s_waitcnt vmcnt(0)")
    for i in range(5):
        a(f"v_lshl_or_b32 v{B+4*i}, v{B+4*i+1}, 16, v{B+4*i}")
        a(f"v_lshl_or_b32 v{B+4*i+1}, v{B+4*i+3}, 16, v{B+4*i+2}")
        a(f"ds_write_b64 v{T+4}, v[{B+4*i}:{B+4*i+1}] offset:{2048*i}")
    a("s_waitcnt lgkmcnt(0)")

def census(a):
    from gen import XA, XB
    a(f"s_mov_b32 s{S_SPIN}, 0")
    a.label("L_R_census")
    a("v_lshlrev_b32 v56, 2, v19"); a("v_min_u32 v56, 44, v56")
    a(f"global_load_dword v57, v56, {sp(P_DBG)} sc1")
    a("s_waitcnt vmcnt(0)")
    a(f"v_readlane_b32 s{S_T0}, v57, 8")
    a(f"v_readlane_b32 s{S_POL}, v57, 11")
    a(f"s_cmp_ge_u32 s{S_T0}, 256"); a(f"s_cselect_b32 s{S_T0}, s{S_POL}, 0")
    a(f"s_cmp_lg_u32 s{S_T0}, 0"); a("s_cbranch_scc1 L_R_census_ok")
    a("s_sleep 4")
    a(f"s_add_u32 s{S_SPIN}, s{S_SPIN}, 1"); a(f"s_cmp_lt_u32 s{S_SPIN}, {SPIN_MAX}"); a("s_cbranch_scc1 L_R_census")
    a("s_endpgm")
    a.label("L_R_census_ok")
    a(f"s_cmp_eq_u32 s{S_POL}, 2"); a(f"s_cselect_b32 s{S_POL}, 8192, 0")
    a(f"v_readlane_b32 s{S_T0}, v57, {XA}"); a(f"v_readlane_b32 s{S_T1}, v57, {XB}")
    a(f"s_min_u32 s{S_T0}, s{S_T0}, s{S_T1}")
    a(f"s_cmp_ge_u32 s{S_T0}, 32")
    a("s_cbranch_scc0 L_Rslow_start")
    a("s_branch L_Rfast_start")

WS_DUMMY = 8 * MB
V_FLG = 0
V_FV = 19
S_OFFP = 96
S_OFFX = 97
S_TAG = 99
S_M0KT = 98
S_FM = 100

def weave(a, mains, fillers, per=2):
    fi = 0
    for m in mains:
        m()
        k = 0
        while k < per and fi < len(fillers):
            f = fillers[fi]; fi += 1
            if f is None: break
            n = f()
            k += n if n else 1
    while fi < len(fillers):
        if fillers[fi] is not None: fillers[fi]()
        fi += 1

def body(a, opts, slow):
    P = "L_Rslow" if slow else "L_Rfast"
    LS = "sc1" if slow else ""
    D_RED = opts.get('d_red', 16); D_LOC = opts.get('d_loc', 12); D_REM = opts.get('d_rem', 0)
    stamps = opts.get('prof', False)
    prof = stamps or opts.get('cnt', False)
    PROF = [2, 26, 27, 23, 23, 23, 23, 23, 23] if not stamps else [2, 3, 4, 5, 6, 7, 23, 26, 27]; PRT = [20, 21, 22]
    def stamp(i):
        if not stamps: return
        a("s_memtime s[44:45]"); a("s_waitcnt lgkmcnt(0)")
        if i is not None:
            a("s_sub_u32 s45, s44, s33"); a(f"s_add_u32 s{PROF[i]}, s{PROF[i]}, s45")
        a("s_mov_b32 s33, s44")
    I = lambda t: (lambda: a(t))
    RT = {'A': 86, 'B': 42, 'C': 22, 'D': 28, 'E': 6, 'F': 24, 'G': 20, 'H': None, 'I': 26, 'J': 2, 'K': 4}
    rt_on = opts.get('rt', 0)
    def rt(k):
        if rt_on and RT[k] is not None: a(f"s_memrealtime s[{RT[k]}:{RT[k]+1}]")
    B_PST, B_RL, B_PUBR, B_PUBL, B_GL, B_GR = 8, 10, 12, 14, 16, 18
    a.label(P + "_start")
    if prof:
        for r in PROF + PRT: a(f"s_mov_b32 s{r}, 0")
    a(f"s_mov_b32 s{S_STEP}, 0"); a(f"s_mov_b32 s{S_OFFP}, 0"); a(f"s_mov_b32 s{S_OFFX}, 0"); a(f"s_mov_b32 s{S_TAG}, 0")
    a(f"s_lshl_b32 s{S_T0}, s{S_H}, 13")
    sadd64(a, S_KT, P_WS, WS_KT); sadd64(a, S_KT, S_KT, f"s{S_T0}"); a(f"s_lshl_b32 s{S_T1}, s{S_W}, 11"); sadd64(a, S_KT, S_KT, f"s{S_T1}")
    sadd64(a, S_VT, P_WS, WS_VT); sadd64(a, S_VT, S_VT, f"s{S_T0}")
    a(f"s_lshl_b32 s{S_T1}, s{S_HF}, 2"); a(f"s_add_u32 s{S_T1}, s{S_T1}, s{S_W}"); a(f"s_lshl_b32 s{S_T2}, s{S_T1}, 10"); sadd64(a, S_VT, S_VT, f"s{S_T2}")
    a(f"s_lshl_b32 s{S_T0}, s{S_H}, 12")
    sadd64(a, S_XM, P_WS, WS_XM); sadd64(a, S_XM, S_XM, f"s{S_T0}")
    a(f"s_and_b32 s{S_XMW}, s{S_W}, 1"); a(f"s_lshl_b32 s{S_T3}, s{S_HF}, 1"); a(f"s_add_u32 s{S_XMW}, s{S_XMW}, s{S_T3}"); a(f"s_lshl_b32 s{S_XMW}, s{S_XMW}, 10")
    sadd64(a, S_XM, S_XM, f"s{S_XMW}")
    sadd64(a, S_VM, P_WS, WS_VM); sadd64(a, S_VM, S_VM, f"s{S_T0}"); a(f"s_lshl_b32 s{S_T2}, s{S_T1}, 9"); sadd64(a, S_VM, S_VM, f"s{S_T2}")
    a(f"s_lshl_b32 s{S_T0}, s{S_H}, 1"); a(f"s_add_u32 s{S_T0}, s{S_T0}, s{S_HF}"); a(f"s_lshl_b32 s{S_T0}, s{S_T0}, 6"); a(f"s_add_u32 s{S_T0}, s{S_T0}, {FM_OFF}")
    sadd64(a, S_FM, P_WS, f"s{S_T0}")
    a(f"v_lshrrev_b32 v56, 4, v{V_L16}")
    a(f"v_and_b32 v57, 3, v56"); a("v_lshlrev_b32 v57, 2, v57"); a("v_bfe_u32 v58, v56, 2, 1"); a(f"v_mul_u32_u24 v58, {FV_OFF}, v58"); a("v_add_u32 v57, v57, v58")
    a(f"s_lshl_b32 s{S_T0}, s{S_H}, 6"); a(f"v_add_u32 v{V_FV}, s{S_T0}, v57")
    a(f"s_mul_i32 s{S_T1}, s{S_PROD}, 10240"); a(f"s_mul_i32 s{S_T2}, s{S_W}, 2560"); a(f"s_add_u32 s{S_T1}, s{S_T1}, s{S_T2}")
    sadd64(a, B_PST, P_WS, WS_PART); sadd64(a, B_PST, B_PST, f"s{S_T1}")
    a(f"s_mul_i32 s{S_T1}, s{S_G}, {32*10240}"); a(f"s_add_u32 s{S_T1}, s{S_T1}, {WS_PART}")
    a(f"s_cmp_eq_u32 s{S_RACT}, 0"); a(f"s_cselect_b32 s{S_T1}, {WS_DUMMY}, s{S_T1}")
    sadd64(a, B_RL, P_WS, f"s{S_T1}")
    a(f"s_min_u32 s{S_T3}, s{S_RID}, 79")
    a(f"s_mul_i32 s{S_T1}, s{S_G}, 10240"); a(f"s_lshl_b32 s{S_T2}, s{S_T3}, 7"); a(f"s_add_u32 s{S_T2}, s{S_T2}, s{S_T1}"); a(f"s_add_u32 s{S_T2}, s{S_T2}, {WS_XPL}")
    a(f"s_lshl_b32 s{S_T0}, s{S_T3}, 7")
    a(f"s_sub_u32 s{S_T1}, s{S_T0}, {60*128}"); a(f"s_add_u32 s{S_T1}, s{S_T1}, 16384")
    a(f"s_cmp_ge_u32 s{S_T3}, 60"); a(f"s_cselect_b32 s{S_T0}, s{S_T1}, s{S_T0}")
    a(f"s_lshl_b32 s{S_T1}, s{S_G}, 15"); a(f"s_add_u32 s{S_T0}, s{S_T0}, s{S_T1}"); a(f"s_add_u32 s{S_T0}, s{S_T0}, s{S_POL}"); a(f"s_add_u32 s{S_T0}, s{S_T0}, {WS_XPR}")
    a(f"s_lshl_b32 s{S_T3}, s{S_PROD}, 8"); a(f"s_add_u32 s{S_T3}, s{S_T3}, {WS_DUMMY + 2*MB}")
    a(f"s_cmp_eq_u32 s{S_RACT}, 0"); a(f"s_cselect_b32 s{S_T0}, s{S_T3}, s{S_T0}"); a(f"s_cselect_b32 s{S_T2}, s{S_T3}, s{S_T2}")
    sadd64(a, B_PUBR, P_WS, f"s{S_T0}"); sadd64(a, B_PUBL, P_WS, f"s{S_T2}")
    a(f"s_mul_i32 s{S_T1}, s{S_G}, 10240"); a(f"s_mul_i32 s{S_T3}, s{S_W}, 2560"); a(f"s_add_u32 s{S_T0}, s{S_T1}, s{S_T3}"); a(f"s_add_u32 s{S_T0}, s{S_T0}, {WS_XPL}")
    sadd64(a, B_GL, P_WS, f"s{S_T0}")
    a(f"s_cmp_eq_u32 s{S_W}, 3"); a(f"s_cselect_b32 s{S_T3}, 16384, s{S_T3}")
    a(f"s_xor_b32 s{S_T1}, s{S_G}, 1"); a(f"s_lshl_b32 s{S_T1}, s{S_T1}, 15"); a(f"s_add_u32 s{S_T0}, s{S_T1}, s{S_T3}"); a(f"s_add_u32 s{S_T0}, s{S_T0}, s{S_POL}"); a(f"s_add_u32 s{S_T0}, s{S_T0}, {WS_XPR}")
    sadd64(a, B_GR, P_WS, f"s{S_T0}")
    a(f"s_mov_b32 s{S_OFFR}, 0")
    a("s_mov_b32 s24, -1"); a("s_mov_b32 s25, 0")
    a(f"s_lshl_b32 s{S_T0}, s{S_G}, 7"); a(f"s_add_u32 s{S_T0}, s{S_T0}, {HINT_OFF}"); sadd64(a, S_HW, P_WS, f"s{S_T0}")
    a(f"s_xor_b32 s{S_T0}, s{S_G}, 1"); a(f"s_lshl_b32 s{S_T0}, s{S_T0}, 7"); a(f"s_add_u32 s{S_T0}, s{S_T0}, {HINT_OFF}"); sadd64(a, S_HR, P_WS, f"s{S_T0}")
    a(f"s_mov_b32 s{S_XMN}, s{S_XM}"); a(f"s_mov_b32 s{S_XMN+1}, s{S_XM+1}"); a(f"s_mov_b32 s{S_VMN}, s{S_VM}"); a(f"s_mov_b32 s{S_VMN+1}, s{S_VM+1}")
    a(f"s_lshl_b32 s{S_T0}, s{S_PROD}, 2"); a(f"s_add_u32 s{S_T0}, s{S_T0}, s{S_W}"); a(f"s_lshl_b32 s{S_T0}, s{S_T0}, 10"); a(f"s_add_u32 s{S_T0}, s{S_T0}, {WS_DUMMY}")
    sadd64(a, S_XM, P_WS, f"s{S_T0}"); sadd64(a, S_VM, P_WS, f"s{S_T0}")
    a(f"s_lshl_b32 s{S_WBIT}, 1, s{S_W}")
    a(f"v_mov_b32 v{XF+14}, 0")
    def flags_load(): a(f"global_load_dword v{V_FLG}, v{V_FV}, {sp(P_WS)} sc1")
    def flags_spin(need, ret):
        stub = a.newlabel(P + "_fs")
        def fn():
            a.label(stub)
            a(f"s_mov_b32 s{S_SPIN}, 0")
            a.label(stub + "_l")
            flags_load()
            a("s_waitcnt vmcnt(0)")
            a(f"v_cmp_gt_u32 vcc, s{need}, v{V_FLG}")
            a(f"s_cbranch_vccz {ret}")
            a("s_sleep 2")
            a(f"s_add_u32 s{S_SPIN}, s{S_SPIN}, 1"); a(f"s_cmp_lt_u32 s{S_SPIN}, {SPIN_MAX}"); a(f"s_cbranch_scc1 {stub}_l")
            a("s_endpgm")
        a.defer(fn)
        return stub
    def part_bases():
        sadd64(a, S_PST, B_PST, f"s{S_OFFP}")
        sadd64(a, S_RL, B_RL, f"s{S_OFFP}")
        for t in range(1, 4): sadd64(a, S_RL+2*t, S_RL+2*t-2, 81920)
    a(f"s_mov_b32 s{S_NEED}, 1")
    pr = a.newlabel(P + "_prime")
    a(f"s_branch {flags_spin(S_NEED, pr)}")
    a.label(pr)
    a(f"s_lshl_b32 s{S_T0}, s{S_W}, 11"); a(f"s_add_u32 m0, s{S_T0}, {L_KTB}"); a(f"s_add_u32 s{S_M0KT}, s{S_T0}, {L_KTB + 8192}")
    a(f"global_load_lds_dwordx4 v{V_L16}, {sp(S_KT)} sc1")
    a(f"global_load_lds_dwordx4 v{V_L16}, {sp(S_KT)} offset:1024 sc1")
    sadd64(a, S_KT, S_KT, 32*8192)
    a(f"s_mov_b32 s{S_NEED}, 2")
    part_bases()
    for r in range(0, 20, 2): a(f"v_mov_b64 v[{ACC+r}:{ACC+r+1}], 0")
    a("s_waitcnt vmcnt(0)")
    a("s_barrier")
    stamp(None)
    rt_stamp(a, 3, 140, opts.get('tl', 0))
    a.label(P + "_loop")
    if opts.get('tl', 0):
        for st, ix in ((1, 4), (2, 5), (8, 6), (32, 7)):
            sk = a.newlabel("L_tl")
            a(f"s_cmp_eq_u32 s{S_STEP}, {st}"); a(f"s_cbranch_scc0 {sk}")
            rt_stamp(a, ix, 140, True)
            a.label(sk)
    if prof:
        sk = a.newlabel("L_pr")
        a(f"s_cmp_eq_u32 s{S_STEP}, 32"); a(f"s_cbranch_scc0 {sk}")
        for r in PROF + PRT: a(f"s_mov_b32 s{r}, 0")
        a.label(sk)
    if rt_on:
        rt('A'); a("s_waitcnt lgkmcnt(0)")
    lg = Cnt(a, "lgkmcnt", 15)
    def af_read(c, h):
        v = V_AT0 if h == 0 else V_AT1
        return lambda: lg.issue(('af', c), f"ds_read_b64_tr_b16 v[{AF+4*c+2*h}:{AF+4*c+2*h+1}], v{v} offset:{1024*c}")
    def ks_read(c, h):
        b = VS + 8*(c & 1) + 4*h
        return lambda: lg.issue(('ks', c), f"ds_read_b128 v[{b}:{b+3}], v{V_WS} offset:{2048*(c-4)+1024*h}")
    def kt_read(i):
        return lambda: lg.issue(('kt', i), f"ds_read_b128 v[{KT+4*i}:{KT+4*i+3}], v{V_KT} offset:{1024*i}")
    for c in range(4):
        af_read(c, 0)(); af_read(c, 1)()
    def smf(acc, c, w): a(f"v_smfmac_f32_16x16x64_bf16 v[{acc}:{acc+3}], v[{AF+4*c}:{AF+4*c+3}], {w}, v{V_IDX}")
    slot = {}
    seq = [af_read(4, 0), af_read(4, 1), ks_read(4, 0), ks_read(4, 1), af_read(5, 0), af_read(5, 1), ks_read(5, 0), ks_read(5, 1),
           af_read(6, 0), af_read(6, 1), af_read(7, 0), af_read(7, 1), kt_read(0), kt_read(1), af_read(8, 0), af_read(8, 1),
           af_read(9, 0), af_read(9, 1), kt_read(2), None,
           ks_read(6, 0), ks_read(6, 1), kt_read(3), None, ks_read(7, 0), ks_read(7, 1), kt_read(4), None,
           ks_read(8, 0), ks_read(8, 1), kt_read(5), None, ks_read(9, 0), ks_read(9, 1), kt_read(6), kt_read(7), None, None, None, None]
    XT = XF+8; VMC = XF+12; FMV = XF+14
    def x_vt(): a(f"global_load_dwordx4 v[{V_VT}:{V_VT+3}], v{V_L16}, {sp(S_VT)} sc1")
    def x_d0(): a(f"s_mov_b32 m0, s{S_M0KT}"); a(f"global_load_lds_dwordx4 v{V_L16}, {sp(S_KT)} sc1")
    def x_d1(): a(f"global_load_lds_dwordx4 v{V_L16}, {sp(S_KT)} offset:1024 sc1")
    def x_xm(): a(f"global_store_dwordx4 v{V_L16}, v[{XT}:{XT+3}], {sp(S_XM)} sc1")
    def x_vm(): a(f"global_store_dwordx2 v{V_L8}, v[{VMC}:{VMC+1}], {sp(S_VM)} sc1")
    def x_fm():
        a("s_mov_b64 exec, 1"); a(f"global_store_dword v{V_L8}, v{FMV}, {sp(S_FM)} sc1"); a("s_mov_b64 exec, -1")
        a(f"global_load_dword v{V_FLG}, v{V_FV}, {sp(P_WS)} sc1")
    extras = [x_vt, x_d0, x_d1, x_xm, x_vm, x_fm]
    X0 = opts.get('x0', 2)
    ops_per = [1, 1, 1, 1, 1, 2]
    nx22 = sum(n for e, n in enumerate(ops_per) if X0 + 4*e < 22)
    fret = a.newlabel(P + "_fret"); fstub = flags_spin(S_NEED, fret)
    KT_FIRST = 24
    seq = [af_read(4, 0), af_read(4, 1), ks_read(4, 0), ks_read(4, 1), af_read(5, 0), af_read(5, 1), ks_read(5, 0), ks_read(5, 1),
           af_read(6, 0), af_read(6, 1), af_read(7, 0), af_read(7, 1), af_read(8, 0), af_read(8, 1), af_read(9, 0), af_read(9, 1),
           None, None, None, None,
           ks_read(6, 0), ks_read(6, 1), kt_read(0), kt_read(1), ks_read(7, 0), ks_read(7, 1), kt_read(2), kt_read(3),
           ks_read(8, 0), ks_read(8, 1), kt_read(4), kt_read(5), ks_read(9, 0), ks_read(9, 1), kt_read(6), kt_read(7), None, None, None, None]
    k = 0
    for c in range(10):
        for t, tile in enumerate(('q0', 'q1', 'k0', 'k1')):
            if t == 0: lg.wait(('af', c))
            if tile == 'k1' and c >= 4:
                lg.wait(('ks', c)); b = VS + 8*(c & 1)
                smf(ACC+12, c, f"v[{b}:{b+7}]")
            else:
                smf(ACC+4*t, c, wr(tile, c))
            if k == 0:
                a(f"v_cmp_gt_u32 vcc, s{S_NEED}, v{V_FLG}")
            if k == 1:
                a(f"s_cbranch_vccnz {fstub}"); a.label(fret)
            if k == 22: a(f"s_waitcnt vmcnt({nx22})")
            if seq[k] is not None: seq[k]()
            if k >= X0 and (k - X0) % 4 == 0 and (k - X0) // 4 < len(extras):
                extras[(k - X0) // 4]()
            k += 1
    for t in range(4): a(f"v_pk_add_f32 v[{ACC+4*t}:{ACC+4*t+1}], v[{ACC+4*t}:{ACC+4*t+1}], v[{ACC+4*t+2}:{ACC+4*t+3}]")
    for t in range(4): a(f"v_cvt_pk_bf16_f32 v{ACC+4*t+2}, v{ACC+4*t}, v{ACC+4*t+1}")
    lg.issue('xw', f"ds_write2st64_b32 v{V_XWQ}, v{ACC+2}, v{ACC+6} offset0:0 offset1:2")
    lg.issue('xw', f"ds_write2st64_b32 v{V_XWK}, v{ACC+10}, v{ACC+14} offset0:0 offset1:2")
    for c in range(3): smf(ACC+16, c, wr('v', c))
    lg.waitall()
    a("s_barrier")
    stamp(0)
    for ks in range(4):
        lg.issue(('x', ks), f"ds_read_b64_tr_b16 v[{XF+4*ks}:{XF+4*ks+1}], v{V_XR} offset:{1024*ks}")
        lg.issue(('x', ks), f"ds_read_b64_tr_b16 v[{XF+4*ks+2}:{XF+4*ks+3}], v{V_XR} offset:{1024*ks+512}")
    SM, S0, S1 = ACC, ACC+4, ACC+8
    VACC = ACC+16; VM_ = ACC+12
    WOB = {0: AF, 1: AF+8, 2: AF+16, 3: AF+24, 4: AF+32, 5: VS, 6: VS+8, 7: XF+8, 8: ACC+4, 9: ACC+16}
    def wo_read(tt, h):
        b = WOB[tt] + 4*h
        return lambda: lg.issue(('wo', tt), f"ds_read_b128 v[{b}:{b+3}], v{V_WO} offset:{2048*tt+1024*h}")
    vfill = {3: wo_read(0, 0), 4: wo_read(0, 1), 5: wo_read(5, 0), 6: wo_read(5, 1), 7: wo_read(1, 0), 8: wo_read(1, 1), 9: wo_read(6, 0)}
    for c in range(3, 10):
        smf(ACC+16, c, wr('v', c)); vfill[c]()
    mains = []
    for ks in range(4):
        x = f"v[{XF+4*ks}:{XF+4*ks+3}]"
        def ma(ks=ks, x=x):
            lg.wait(('x', ks))
            cm = f"v[{V_CNEG}:{V_CNEG+3}]" if ks == 0 else f"v[{SM}:{SM+3}]"
            a(f"v_mfma_f32_16x16x32_bf16 v[{SM}:{SM+3}], {x}, {x}, {cm}")
        mains.append(ma)
        for kt, Sx in ((0, S0), (1, S1)):
            def mb(ks=ks, kt=kt, Sx=Sx, x=x):
                k = f"v[{KT+4*(2*ks+kt)}:{KT+4*(2*ks+kt)+3}]"
                cs = "0" if ks == 0 else f"v[{Sx}:{Sx+3}]"
                a(f"v_mfma_f32_16x16x32_bf16 v[{Sx}:{Sx+3}], {k}, {x}, {cs}")
            mains.append(mb)
    sfill = [[wo_read(6, 1)], [wo_read(2, 0)], [wo_read(2, 1)],
             [wo_read(3, 0), I(f"v_pk_add_f32 v[{VACC}:{VACC+1}], v[{VACC}:{VACC+1}], v[{VACC+2}:{VACC+3}]")],
             [wo_read(3, 1), I(f"v_cvt_pk_bf16_f32 v{VACC+2}, v{VACC}, v{VACC+1}")],
             [lambda: lg.issue('vw', f"ds_write_b32 v{V_VEW}, v{VACC+2}"), lambda: lg.issue('vm', f"ds_read_b64 v[{VM_}:{VM_+1}], v{V_VER}")],
             [wo_read(4, 0)], [wo_read(4, 1)], [], [], [], []]
    for m, fl in zip(mains, sfill):
        m()
        for f in fl: f()
    a("s_waitcnt vmcnt(6)")
    a(f"s_cmp_eq_u32 s{S_STEP}, {opts.get('last', 63)}"); a(f"s_cbranch_scc1 {P}_finish")
    MX = ACC+14; T1 = ACC+15
    a(f"v_max3_f32 v{MX}, v{SM}, v{SM+1}, v{SM+2}")
    a(f"v_max3_f32 v{T1}, v{SM+3}, v{S0}, v{S0+1}")
    a(f"v_max3_f32 v{MX}, v{MX}, v{S0+2}, v{S0+3}")
    a(f"v_max3_f32 v{T1}, v{T1}, v{S1}, v{S1+1}")
    a(f"v_max3_f32 v{MX}, v{MX}, v{S1+2}, v{S1+3}")
    a(f"v_max_f32 v{MX}, v{MX}, v{T1}")
    OUT = [KT+4*t for t in range(8)] + [XF, XF+4]
    zero = [I(f"v_mov_b64 v[{OUT[t]+2*h}:{OUT[t]+2*h+1}], 0") for t in range(10) for h in range(2)]
    a(f"v_mov_b32 v{T1}, v{MX}"); zero.pop(0)(); zero.pop(0)()
    a(f"v_permlane32_swap_b32 v{MX}, v{T1}")
    a(f"v_max_f32 v{MX}, v{MX}, v{T1}")
    a(f"v_mov_b32 v{T1}, v{MX}"); zero.pop(0)(); zero.pop(0)()
    a(f"v_permlane16_swap_b32 v{MX}, v{T1}")
    a(f"v_max_f32 v{MX}, v{MX}, v{T1}")
    a(f"v_mul_f32 v{MX}, s{S_C}, v{MX}")
    for r in range(0, 12, 2):
        a(f"v_pk_fma_f32 v[{ACC+r}:{ACC+r+1}], v[{ACC+r}:{ACC+r+1}], s[{S_C}:{S_C+1}], v[{MX}:{MX+1}] op_sel_hi:[1,1,0] neg_lo:[0,0,1] neg_hi:[0,0,1]")
    PT = VACC; PM = ACC+14
    for r in range(4, 12): a(f"v_exp_f32 v{ACC+r}, v{ACC+r}")
    a(f"v_exp_f32 v{SM}, v{SM}")
    a(f"v_cvt_pk_bf16_f32 v{PT}, v{S0}, v{S0+1}"); a(f"v_cvt_pk_bf16_f32 v{PT+1}, v{S0+2}, v{S0+3}")
    a(f"v_cvt_pk_bf16_f32 v{PT+2}, v{S1}, v{S1+1}"); a(f"v_cvt_pk_bf16_f32 v{PT+3}, v{S1+2}, v{S1+3}")
    a(f"v_exp_f32 v{SM+1}, v{SM+1}"); a(f"v_exp_f32 v{SM+2}, v{SM+2}")
    LL, OO = S0, S1
    a(f"v_mfma_f32_16x16x32_bf16 v[{LL}:{LL+3}], v[{V_ONES}:{V_ONES+3}], v[{PT}:{PT+3}], 0")
    a(f"v_exp_f32 v{SM+3}, v{SM+3}")
    a(f"v_mfma_f32_16x16x32_bf16 v[{OO}:{OO+3}], v[{V_VT}:{V_VT+3}], v[{PT}:{PT+3}], 0")
    a(f"v_cvt_pk_bf16_f32 v{PM}, v{SM}, v{SM+1}"); a(f"v_cvt_pk_bf16_f32 v{PM+1}, v{SM+2}, v{SM+3}")
    wo_read(7, 0)(); wo_read(7, 1)(); wo_read(9, 0)(); wo_read(9, 1)()
    lg.wait('vm')
    a(f"v_mfma_f32_16x16x16_bf16 v[{LL}:{LL+3}], v[{V_ONES}:{V_ONES+1}], v[{PM}:{PM+1}], v[{LL}:{LL+3}]")
    a(f"v_mfma_f32_16x16x16_bf16 v[{OO}:{OO+3}], v[{VM_}:{VM_+1}], v[{PM}:{PM+1}], v[{OO}:{OO+3}]")
    for _ in range(7): zero.pop(0)()
    a(f"v_rcp_f32 v{LL}, v{LL}")
    zero.pop(0)()
    a(f"v_pk_mul_f32 v[{OO}:{OO+1}], v[{OO}:{OO+1}], v[{LL}:{LL+1}] op_sel_hi:[1,0]")
    a(f"v_pk_mul_f32 v[{OO+2}:{OO+3}], v[{OO+2}:{OO+3}], v[{LL}:{LL+1}] op_sel_hi:[1,0]")
    a(f"v_cvt_pk_bf16_f32 v{OO}, v{OO}, v{OO+1}"); a(f"v_cvt_pk_bf16_f32 v{OO+1}, v{OO+2}, v{OO+3}")
    a(f"s_mov_b64 exec, {sp(S_EXO)}")
    lg.issue('ow', f"ds_write_b64 v{V_OEW}, v[{OO}:{OO+1}]")
    a("s_mov_b64 exec, -1")
    while zero: zero.pop(0)()
    lg.waitall()
    a("s_barrier")
    stamp(1)
    OA = ACC
    lg.issue('oa', f"ds_read_b128 v[{OA}:{OA+3}], v{V_OER}")
    wo_read(8, 0)(); wo_read(8, 1)()
    XT = XF+8
    lg.wait('oa')
    def osm(tt):
        b = WOB[tt]
        a(f"v_smfmac_f32_16x16x64_bf16 v[{OUT[tt]}:{OUT[tt]+3}], v[{OA}:{OA+3}], v[{b}:{b+7}], v{V_IDX}")
    DST = {0: OUT[0], 1: OUT[0]+2, 2: OUT[4], 3: OUT[4]+2, 4: OUT[8]}
    def post(t):
        o0, o1 = OUT[2*t], OUT[2*t+1]
        d = DST[t]
        L = [I(f"v_pk_add_f32 v[{o0}:{o0+1}], v[{o0}:{o0+1}], v[{o0+2}:{o0+3}]"),
             I(f"v_pk_add_f32 v[{o1}:{o1+1}], v[{o1}:{o1+1}], v[{o1+2}:{o1+3}]"),
             I(f"v_cvt_pk_bf16_f32 v{d}, v{o0}, v{o0+1}"),
             I(f"v_cvt_pk_bf16_f32 v{d+1}, v{o1}, v{o1+1}"),
             I(f"v_and_or_b32 v{d}, v{d}, -2, s{S_TAG}")]
        if t in (1, 3): L.append(I(f"global_store_dwordx4 v{V_L16}, v[{DST[t-1]}:{DST[t-1]+3}], {sp(S_PST)} offset:{1024*(t//2)} {LS}"))
        elif t == 4: L.append(I(f"global_store_dwordx2 v{V_L8}, v[{d}:{d+1}], {sp(S_PST)} offset:2048 {LS}"))
        return L
    p = [post(t) for t in range(5)]
    osm(0); osm(1); osm(2); osm(3); osm(4); osm(5); osm(6); osm(7)
    a(f"v_add_u32 v{XT+4}, s{S_XMW}, v{V_XR}")
    p[0][0](); osm(9); p[0][1]()
    lg.wait(('wo', 8)); osm(8)
    lg.issue('xt', f"ds_read_b64_tr_b16 v[{XT}:{XT+1}], v{XT+4}")
    lg.issue('xt', f"ds_read_b64_tr_b16 v[{XT+2}:{XT+3}], v{XT+4} offset:512")
    for f in p[0][2:]: f()
    for t in (1, 2, 3, 4):
        for f in p[t]: f()
    stamp(2)
    rt('B')
    for r, b, o in ((S_PUBR, B_PUBR, S_OFFR), (S_PUBL, B_PUBL, S_OFFX), (S_GL, B_GL, S_OFFX), (S_GR, B_GR, S_OFFR)): sadd64(a, r, b, f"s{o}")
    nored = a.newlabel(P + "_nored"); redj = a.newlabel(P + "_redj")
    a(f"s_cmp_eq_u32 s{S_RACT}, 0"); a(f"s_cbranch_scc1 {nored}")
    def fn_nored():
        a.label(nored)
        if not opts.get('hint', 0):
            a(f"s_branch {redj}"); return
        a(f"s_cmp_eq_u32 s{S_W}, 3"); a(f"s_cbranch_scc0 {redj}")
        a(f"s_add_u32 s{S_T0}, s{S_STEP}, 1")
        nw = a.newlabel(P + "_nohw")
        a(f"s_cmp_eq_u32 s{S_J}, {opts.get('hj', 0)}"); a(f"s_cbranch_scc0 {nw}")
        for _ in range(opts.get('d_hw', D_RED + 2)): a("s_nop 7")
        a("s_mov_b64 exec, 1")
        a(f"v_mov_b32 v{XF+2}, s{S_T0}")
        a(f"global_store_dword v{V_L8}, v{XF+2}, {sp(S_HW)} sc1")
        a("s_mov_b64 exec, -1")
        a.label(nw)
        a(f"s_mov_b32 s{S_SPIN}, 0")
        a("s_waitcnt lgkmcnt(0)")
        hl = a.newlabel(P + "_hl"); hd = a.newlabel(P + "_hd")
        a.label(hl)
        a(f"s_load_dword s{S_T1}, {sp(S_HR)}, 0x0 glc")
        a(f"s_add_u32 s{S_SPIN}, s{S_SPIN}, 1")
        a("s_waitcnt lgkmcnt(0)")
        a(f"s_cmp_ge_u32 s{S_T1}, s{S_T0}"); a(f"s_cbranch_scc1 {hd}")
        a(f"s_cmp_lt_u32 s{S_SPIN}, {SPIN_MAX}"); a(f"s_cbranch_scc1 {hl}")
        a("s_endpgm")
        a.label(hd)
        for _ in range(opts.get('d_hint', 0)): a("s_nop 7")
        a(f"s_branch {redj}")
    a.defer(fn_nored)
    for _ in range(D_RED): a("s_nop 7")
    RD = AF; RA = AF + 48; TM = AF + 52; PB = KT
    MSK = [S_T0, S_T2, S_PST, S_EXX]
    def r_load(t): a(f"global_load_dwordx4 v[{RD+4*t}:{RD+4*t+3}], v{V_RL}, {sp(S_RL+2*t)} sc1")
    rt('C')
    for t in range(4): r_load(t)
    for t in range(4):
        a(f"s_waitcnt vmcnt({3-t})")
        c = "0" if t == 0 else f"v[{RA}:{RA+3}]"
        a(f"v_mfma_f32_16x16x32_bf16 v[{RA}:{RA+3}], v[{V_SEL}:{V_SEL+3}], v[{RD+4*t}:{RD+4*t+3}], {c}")
        if t == 0: a(f"v_xor_b32 v{TM}, s{S_TAG}, v{RD}")
        else: a(f"v_bitop3_b32 v{TM}, v{TM}, v{RD+4*t}, s{S_TAG} bitop3:0xf6")
        a(f"v_bitop3_b32 v{TM}, v{TM}, v{RD+4*t+2}, s{S_TAG} bitop3:0xf6")
    a(f"v_and_b32 v{TM}, 1, v{TM}")
    a(f"v_cmp_ne_u32 vcc, 0, v{TM}")
    rs1 = a.newlabel(P + "_rs1"); rok = a.newlabel(P + "_rok")
    a(f"s_cbranch_vccnz {rs1}")
    a.label(rok)
    rt('D')
    def masked_poll(stub, nld, check_fn, load_fn, cnt_reg, depth):
        a(f"s_mov_b32 s{S_SPIN}, 0")
        a("s_or_b32 exec_lo, vcc_lo, 1"); a("s_mov_b32 exec_hi, vcc_hi")
        for _ in range(depth - 1):
            for t in range(nld): load_fn(t)
        a.label(stub + "_l")
        for t in range(nld): load_fn(t)
        if prof: a(f"s_add_u32 s{cnt_reg}, s{cnt_reg}, 1")
        a(f"s_add_u32 s{S_SPIN}, s{S_SPIN}, 1")
        a(f"s_waitcnt vmcnt({nld*(depth-1)})")
        check_fn()
        a(f"s_cbranch_vccz {stub}_ok")
        a("s_or_b32 exec_lo, vcc_lo, 1"); a("s_mov_b32 exec_hi, vcc_hi")
        a(f"s_cmp_lt_u32 s{S_SPIN}, {SPIN_MAX}"); a(f"s_cbranch_scc1 {stub}_l")
        a("s_endpgm")
        a.label(stub + "_ok")
        a("s_mov_b64 exec, -1")
    def r_check():
        a(f"v_xor_b32 v{TM}, s{S_TAG}, v{RD}")
        a(f"v_bitop3_b32 v{TM}, v{TM}, v{RD+2}, s{S_TAG} bitop3:0xf6")
        for t in range(1, 4):
            a(f"v_bitop3_b32 v{TM}, v{TM}, v{RD+4*t}, s{S_TAG} bitop3:0xf6")
            a(f"v_bitop3_b32 v{TM}, v{TM}, v{RD+4*t+2}, s{S_TAG} bitop3:0xf6")
        a(f"v_and_b32 v{TM}, 1, v{TM}")
        a(f"v_cmp_ne_u32 vcc, 0, v{TM}")
    def fn_rslow():
        a.label(rs1)
        masked_poll(rs1, 4, r_check, r_load, PRT[2], opts.get('dr', 1))
        for t in range(4):
            c = "0" if t == 0 else f"v[{RA}:{RA+3}]"
            a(f"v_mfma_f32_16x16x32_bf16 v[{RA}:{RA+3}], v[{V_SEL}:{V_SEL+3}], v[{RD+4*t}:{RD+4*t+3}], {c}")
        a("s_nop 7"); a(f"s_branch {rok}")
    a.defer(fn_rslow)
    for r in range(4): a(f"v_add_f32_dpp v{RA+r}, v{RA+r}, v{RA+r} row_ror:8 row_mask:0xf bank_mask:0xf")
    a(f"v_cvt_pk_bf16_f32 v{PB}, v{RA}, v{RA+1}"); a(f"v_cvt_pk_bf16_f32 v{PB+1}, v{RA+2}, v{RA+3}")
    a(f"v_permlane16_swap_b32 v{PB}, v{PB+2}"); a(f"v_permlane16_swap_b32 v{PB+1}, v{PB+3}")
    a(f"v_and_or_b32 v{PB}, v{PB}, -2, s{S_TAG}"); a(f"v_and_or_b32 v{PB+2}, v{PB+2}, -2, s{S_TAG}")
    a("s_mov_b64 exec, 0xff")
    a(f"global_store_dwordx4 v{V_L16}, v[{PB}:{PB+3}], {sp(S_PUBR)} sc1")
    a(f"global_store_dwordx4 v{V_L16}, v[{PB}:{PB+3}], {sp(S_PUBL)} {LS}")
    a("s_mov_b64 exec, -1")
    a.label(redj)
    rt('E')
    a("s_barrier")
    rt('F')
    stamp(3)
    lg.waitall()
    a(f"v_mov_b64 v[{VMC}:{VMC+1}], v[{VM_}:{VM_+1}]")
    a(f"v_mov_b32 v{FMV}, s{S_STEP}")
    for r in range(0, 20, 2): a(f"v_mov_b64 v[{ACC+r}:{ACC+r+1}], 0")
    for _ in range(D_LOC): a("s_nop 7")
    GLc = AF; GF = AF + 12; TMG = AF + 48
    GR = KT
    def g_load(base, sb):
        def f(t):
            if t == 0: a(f"global_load_dwordx4 v[{base}:{base+3}], v{V_L16}, {sp(sb)} sc1")
            elif t == 1: a(f"global_load_dwordx4 v[{base+4}:{base+7}], v{V_L16}, {sp(sb)} offset:1024 sc1")
            else: a(f"global_load_dwordx2 v[{base+8}:{base+9}], v{V_L8}, {sp(sb)} offset:2048 sc1")
        return f
    def chk(base):
        a(f"v_xor_b32 v{TMG}, s{S_TAG}, v{base}")
        a(f"v_bitop3_b32 v{TMG}, v{TMG}, v{base+4}, s{S_TAG} bitop3:0xf6")
        a(f"v_bitop3_b32 v{TMG}, v{TMG}, v{base+8}, s{S_TAG} bitop3:0xf6")
        a(f"v_and_b32 v{TMG}, 1, v{TMG}")
        a(f"v_cmp_ne_u32 vcc, 0, v{TMG}")
    GM = [S_T0, S_T2, S_EXX]
    def gmasks(base):
        def f():
            for t in range(3): a(f"v_xor_b32 v{TMG+t}, s{S_TAG}, v{base+4*t}")
            for t in range(3): a(f"v_and_b32 v{TMG+t}, 1, v{TMG+t}")
            for t in range(3): a(f"v_cmp_ne_u32 {sp(GM[t])}, 0, v{TMG+t}")
        return f
    rt('G')
    for t in range(3): g_load(GLc, S_GL)(t)
    for _ in range(D_REM): a("s_nop 7")
    rt('H')
    for t in range(3): g_load(GR, S_GR)(t)
    stamp(6)
    a(f"s_add_u32 s{S_STEP}, s{S_STEP}, 1")
    a(f"s_xor_b32 s{S_OFFP}, s{S_OFFP}, {64*10240}")
    a(f"s_xor_b32 s{S_OFFX}, s{S_OFFX}, 20480"); a(f"s_xor_b32 s{S_OFFR}, s{S_OFFR}, 65536")
    part_bases()
    a(f"s_and_b32 s{S_T0}, s{S_STEP}, 1"); a(f"s_lshl_b32 s{S_T0}, s{S_T0}, 13"); a(f"s_add_u32 s{S_T0}, s{S_T0}, {L_KTB}")
    a(f"v_add_u32 v{V_KT}, s{S_T0}, v{V_L16}")
    a(f"s_xor_b32 s{S_T0}, s{S_STEP}, 1"); a(f"s_and_b32 s{S_T0}, s{S_T0}, 1"); a(f"s_lshl_b32 s{S_T0}, s{S_T0}, 13"); a(f"s_add_u32 s{S_T0}, s{S_T0}, {L_KTB}")
    a(f"s_lshl_b32 s{S_T1}, s{S_W}, 11"); a(f"s_add_u32 s{S_M0KT}, s{S_T0}, s{S_T1}")
    a(f"s_cmp_lt_u32 s{S_STEP}, 63"); a(f"s_cselect_b32 s{S_T0}, {32*8192}, 0")
    sadd64(a, S_KT, S_KT, f"s{S_T0}")
    sadd64(a, S_VT, S_VT, 32*8192)
    a(f"s_add_u32 s{S_NEED}, s{S_STEP}, 2"); a(f"s_min_u32 s{S_NEED}, s{S_NEED}, 64")
    a(f"s_mov_b32 s{S_XM}, s{S_XMN}"); a(f"s_mov_b32 s{S_XM+1}, s{S_XMN+1}"); a(f"s_mov_b32 s{S_VM}, s{S_VMN}"); a(f"s_mov_b32 s{S_VM+1}, s{S_VMN+1}")
    sadd64(a, S_XMN, S_XMN, 32*4096); sadd64(a, S_VMN, S_VMN, 32*4096)
    a("s_waitcnt vmcnt(3)")
    lre = a.newlabel(P + "_lre"); lok = a.newlabel(P + "_lok")
    chk(GLc)
    a(f"s_cbranch_vccnz {lre}")
    a.label(lok)
    def fn_l():
        a.label(lre)
        masked_poll(lre, 3, lambda: chk(GLc), g_load(GLc, S_GL), PRT[0], 2)
        a("s_waitcnt vmcnt(0)")
        a(f"s_branch {lok}")
    a.defer(fn_l)
    rt('I')
    stamp(8)
    for i in range(10):
        a(f"v_lshlrev_b32 v{GF+2*i}, 16, v{GLc+i}"); a(f"v_and_b32 v{GF+2*i+1}, 0xffff0000, v{GLc+i}")
    a("s_waitcnt vmcnt(0)")
    chk(GR)
    gs1 = a.newlabel(P + "_gs1"); gok = a.newlabel(P + "_gok")
    a(f"s_cbranch_vccnz {gs1}")
    a.label(gok)
    def fn_gslow():
        a.label(gs1)
        masked_poll(gs1, 3, lambda: chk(GR), g_load(GR, S_GR), PRT[1], opts.get('dg', 2))
        a(f"s_branch {gok}")
    a.defer(fn_gslow)
    stamp(4)
    rt('J')
    def dots(i):
        a(f"v_dot2_f32_bf16 v{GF+2*i}, v{GR+i}, s{S_LO}, v{GF+2*i}")
        a(f"v_dot2_f32_bf16 v{GF+2*i+1}, v{GR+i}, s{S_HI}, v{GF+2*i+1}")
    def cv(i): a(f"v_cvt_pk_bf16_f32 v{GLc+i}, v{GF+2*i}, v{GF+2*i+1}")
    for i in range(4): dots(i)
    for t in range(5):
        cv(2*t); cv(2*t+1)
        a(f"ds_write_b64 v{V_IW2}, v[{GLc+2*t}:{GLc+2*t+1}] offset:{512*t}")
        for i in (2*t+4, 2*t+5):
            if i < 10: dots(i)
    rt('K')
    a(f"s_lshr_b32 s{S_TAG}, s{S_STEP}, 1"); a(f"s_and_b32 s{S_TAG}, s{S_TAG}, 1")
    a("s_waitcnt lgkmcnt(0)")
    a("s_barrier")
    stamp(5)
    a(f"s_branch {P}_loop")
    a.label(P + "_finish")
    if rt_on:
        a("s_waitcnt lgkmcnt(0)")
        a(f"s_lshl_b32 s44, s{S_PROD}, 2"); a(f"s_add_u32 s44, s44, s{S_W}"); a("s_lshl_b32 s44, s44, 6"); a(f"s_add_u32 s44, s44, {WS_PROF}")
        a("s_mov_b64 exec, 1")
        a(f"v_mov_b32 v{XF}, s44")
        for i, kk in enumerate("ABCDEFGHIJK"):
            a(f"v_mov_b32 v{XF+1}, s{RT[kk] if RT[kk] is not None else RT['G']}"); a(f"global_store_dword v{XF}, v{XF+1}, {sp(P_WS)} offset:{4*i}"); a("s_nop 1")
        a("s_mov_b64 exec, -1")
    rt_stamp(a, 2, 140, opts.get('tl', 0))
    if prof:
        a(f"s_lshl_b32 s44, s{S_PROD}, 2"); a(f"s_add_u32 s44, s44, s{S_W}"); a("s_lshl_b32 s44, s44, 6"); a(f"s_add_u32 s44, s44, {WS_PROF}")
        a("s_mov_b64 exec, 1")
        a(f"v_mov_b32 v{XF}, s44")
        for i, r in enumerate(PROF[:6] + PRT + PROF[6:]):
            a(f"v_mov_b32 v{XF+1}, s{r}"); a(f"global_store_dword v{XF}, v{XF+1}, {sp(P_WS)} offset:{4*i}"); a("s_nop 1")
        a("s_mov_b64 exec, -1")
    a("s_waitcnt lgkmcnt(0)")
    a(f"v_add_u32 v{AF+4}, s{S_XMW}, v{V_XR}")
    a(f"ds_read_b64_tr_b16 v[{AF}:{AF+1}], v{AF+4}")
    a(f"ds_read_b64_tr_b16 v[{AF+2}:{AF+3}], v{AF+4} offset:512")
    a("s_waitcnt lgkmcnt(0)")
    a(f"global_store_dwordx4 v{V_L16}, v[{AF}:{AF+3}], {sp(S_XMN)} sc1")
    a(f"global_store_dwordx2 v{V_L8}, v[{ACC+12}:{ACC+13}], {sp(S_VMN)} sc1")
    a("s_waitcnt vmcnt(0)")
    a("s_barrier")
    a(f"s_cmp_eq_u32 s{S_W}, 0"); a(f"s_cbranch_scc0 {P}_end")
    a("s_mov_b64 exec, 1")
    a(f"v_mov_b32 v{XF+2}, 64")
    a(f"global_store_dword v{V_L8}, v{XF+2}, {sp(S_FM)} sc1")
    a("s_waitcnt vmcnt(0)")
    a.label(P + "_end")
    a("s_endpgm")
    a.flush()
```

```python
import sys
from gen_common import *
from gen_init import gen_init
from gen_proj import gen_proj

XA, XB = 0, 1

def gen_dispatch(a, roles, fake_xcc=None, tl=False):
    a("s_cmp_ge_u32 s2, 256")
    a("s_cbranch_scc1 L_exit")
    load_kernargs(a)
    a("v_lshrrev_b32 v1, 6, v0")
    a("v_readfirstlane_b32 s32, v1")
    if fake_xcc is None:
        a("s_getreg_b32 s36, hwreg(HW_REG_XCC_ID)")
        a("s_and_b32 s36, s36, 15")
    else:
        fake_xcc(a)
    a("s_waitcnt lgkmcnt(0)")
    a("s_cmp_eq_u32 s32, 0")
    a("s_cbranch_scc0 L_tk_wait")
    a("s_mov_b64 exec, 1")
    a("v_mov_b32 v2, 1")
    a("s_min_u32 s37, s36, 10")
    a("s_lshl_b32 s37, s37, 2")
    a("v_mov_b32 v3, s37")
    a(f"global_atomic_add v4, v3, v2, {sp(P_DBG)} sc0")
    a("s_waitcnt vmcnt(0)")
    a("v_mov_b32 v3, 32")
    a(f"global_atomic_add v3, v2, {sp(P_DBG)}")
    a("v_readfirstlane_b32 s37, v4")
    a("s_cmp_lt_u32 s36, 8"); a("s_cselect_b32 s38, 1, 0")
    a("s_cmp_lt_u32 s37, 32"); a("s_cselect_b32 s39, 1, 0")
    a("s_and_b32 s38, s38, s39")
    a("s_cmp_eq_u32 s38, 1")
    a("s_cbranch_scc0 L_tk_float")
    a("s_lshl_b32 s33, s36, 5"); a("s_add_u32 s33, s33, s37")
    a("s_branch L_tk_have")
    a.label("L_tk_float")
    a("s_mov_b32 s38, 0")
    a.label("L_tk_spin")
    a("v_mov_b32 v3, 32")
    a(f"global_load_dword v5, v3, {sp(P_DBG)} sc1")
    a("s_waitcnt vmcnt(0)")
    a("v_readfirstlane_b32 s39, v5")
    a("s_cmp_ge_u32 s39, 256"); a("s_cbranch_scc1 L_tk_all")
    a("s_sleep 8")
    a("s_add_u32 s38, s38, 1"); a("s_cmp_lt_u32 s38, 0x40000"); a("s_cbranch_scc1 L_tk_spin")
    a("s_endpgm")
    a.label("L_tk_all")
    a("v_mov_b32 v3, 36")
    a(f"global_atomic_add v4, v3, v2, {sp(P_DBG)} sc0")
    a("s_waitcnt vmcnt(0)")
    a("v_readfirstlane_b32 s37, v4")
    a("s_mov_b32 s33, 0x7fffffff")
    for x in range(8):
        nx = a.newlabel("L_tk_x")
        a(f"v_mov_b32 v3, {4*x}")
        a(f"global_load_dword v5, v3, {sp(P_DBG)} sc1")
        a("s_waitcnt vmcnt(0)")
        a("v_readfirstlane_b32 s39, v5")
        a("s_min_u32 s39, s39, 32")
        a("s_sub_u32 s40, 32, s39")
        a("s_cmp_lt_u32 s37, s40"); a(f"s_cbranch_scc0 {nx}")
        a(f"s_add_u32 s33, s39, {32*x}"); a("s_add_u32 s33, s33, s37")
        a("s_branch L_tk_have")
        a.label(nx)
        a("s_sub_u32 s37, s37, s40")
    a.label("L_tk_have")
    a("v_mov_b32 v3, 0"); a("v_mov_b32 v4, s33")
    a("ds_write_b32 v3, v4")
    a("s_waitcnt lgkmcnt(0)")
    a("s_mov_b64 exec, -1")
    a.label("L_tk_wait")
    a("s_barrier")
    a("v_mov_b32 v3, 0")
    a("ds_read_b32 v4, v3")
    a("s_waitcnt lgkmcnt(0)")
    a("v_readfirstlane_b32 s33, v4")
    a("s_barrier")
    a("s_cmp_ge_u32 s33, 256"); a("s_cbranch_scc1 L_exit")
    if tl:
        a("s_mov_b32 s3, s33"); rt_stamp(a, 0, 250)
    a("s_lshr_b32 s35, s33, 5")
    a("s_and_b32 s34, s33, 31")
    table = {XA: 'RA', XB: 'RB'}
    rest = [x for x in range(8) if x not in (XA, XB)]
    for x, r in zip(rest, ['K', 'Q', 'V', 'F0', 'F1', 'A']): table[x] = r
    def go(role):
        return f"s_branch L_{role}" if role in roles else "s_endpgm"
    for x in range(8):
        nx = a.newlabel("L_dx")
        a(f"s_cmp_eq_u32 s35, {x}"); a(f"s_cbranch_scc0 {nx}")
        r = table[x]
        if r in ('K', 'V', 'Q'): a(go(r))
        elif r == 'A': a(go('A'))
        elif r == 'RA': a("s_mov_b32 s35, 0"); a(go('R'))
        elif r == 'RB': a("s_mov_b32 s35, 1"); a(go('R'))
        elif r in ('F0', 'F1'):
            st = int(r[1]); n2 = a.newlabel("L_dh")
            a("s_cmp_lt_u32 s34, 20"); a(f"s_cbranch_scc0 {n2}")
            a(f"s_mov_b32 s35, {st}"); a(go('F'))
            a.label(n2)
            a(f"s_sub_u32 s34, s34, {20 if st == 0 else 8}")
            a("s_cmp_lt_u32 s34, 14"); a("s_cbranch_scc0 L_exit")
            a(go('H'))
        a.label(nx)
    a.label("L_exit")
    a("s_endpgm")

def build(roles=('K', 'V', 'Q', 'H', 'R', 'A', 'F'), fake_xcc=None, opts=None):
    opts = opts or {}
    a = Asm()
    gen_init(a)
    init_lines = a.finish(); init_max = a.maxreg
    b = Asm()
    gen_dispatch(b, roles, fake_xcc, opts.get('tl', 0))
    for k in ('K', 'V', 'Q', 'H'):
        if k in roles: gen_proj(b, k, opts)
    if 'R' in roles:
        from gen_r import gen_r
        gen_r(b, opts)
    if 'A' in roles:
        from gen_att import gen_att
        gen_att(b, opts)
    if 'F' in roles:
        from gen_fin import gen_fin
        gen_fin(b, opts)
    mega_lines = b.finish()
    hdr = open('cdna_kernels/' + NAME + '.s.ref').read().split('\n')
    top = []
    for l in hdr:
        if l.startswith('; @launch') or l.startswith('; Override') or l.startswith('; grid=ceil'): continue
        if not l.startswith(';'): break
        top.append(l)
    top.append("; @launch kernel=init_kernel grid=(128,1,1) block=(256,1,1) lds=2048")
    top.append("; @launch kernel=mega_kernel grid=(256,1,1) block=(256,1,1) lds=163840")
    out = top + ['.amdgcn_target "amdgcn-amd-amdhsa--gfx950"', '.text']
    def kern(name, lines):
        return ['.globl ' + name, '.p2align 8', f'.type {name},@function', name + ':'] + lines
    out += kern('init_kernel', init_lines)
    out += kern('mega_kernel', mega_lines)
    def desc(name, nv, acc):
        return [f'.amdhsa_kernel {name}', f'  .amdhsa_next_free_vgpr {nv}', '  .amdhsa_next_free_sgpr 102', f'  .amdhsa_accum_offset {acc}',
                '  .amdhsa_group_segment_fixed_size 0', '  .amdhsa_kernarg_size 112', '  .amdhsa_user_sgpr_count 2',
                '  .amdhsa_user_sgpr_kernarg_segment_ptr 1', '  .amdhsa_system_sgpr_workgroup_id_x 1', '.end_amdhsa_kernel']
    out += ['.section .rodata,"a"', '.p2align 6'] + desc('init_kernel', 160, 160) + ['.p2align 6'] + desc('mega_kernel', 512, 256)
    print(f"; init max {init_max}  mega max {b.maxreg} nops {b.nops_inserted} lines {len(out)}", file=sys.stderr)
    return '\n'.join(out) + '\n'

if __name__ == '__main__':
    roles = sys.argv[2].split(',') if len(sys.argv) > 2 else ['K', 'V', 'Q', 'H', 'R', 'A', 'F']
    opts = {}
    for kv in sys.argv[3:]:
        k, v = kv.split('='); opts[k] = int(v)
    src = build(roles, opts=opts)
    open(sys.argv[1], 'w').write(src)
```

```python
from gen_common import *
from gen_init import f32bits
SPIN_MAX = 0x40000

def gen_att(a, opts={}):
    tl = opts.get('tl', 0)
    KR, QR, VR, XR, MR = 32, 64, 96, 128, 144
    SM0, SM1, S00, S01, S11 = 160, 164, 168, 172, 176
    OA = 180
    LA = 244
    ONES, CNEG, CTRI = 8, 12, 16
    L16, L8, FV, FOA = 1, 2, 3, 4
    T = 20
    S_S, S_NEED, S_SPIN, S_C = 36, 37, 38, 40
    S_K, S_Q, S_V, S_X, S_M, S_O = 44, 46, 48, 50, 52, 54
    a.label("L_A")
    a("s_lshl_b32 s34, s34, 2"); a("s_add_u32 s34, s34, s32"); a("s_lshr_b32 s56, s34, 5"); a("s_and_b32 s34, s34, 31")
    wait_init(a, "A", 6, sleep=32)
    a("v_and_b32 v5, 63, v0")
    a(f"v_lshlrev_b32 v{L16}, 4, v5"); a(f"v_lshlrev_b32 v{L8}, 3, v5")
    a(f"v_and_b32 v{T}, 15, v5"); a(f"v_lshrrev_b32 v{T+1}, 2, v{T}"); a(f"v_and_b32 v{T+2}, 3, v{T}")
    a(f"v_lshlrev_b32 v{T+3}, 12, v{T+1}"); a(f"v_lshl_add_u32 v{T+3}, v{T+2}, 2, v{T+3}")
    a("s_lshl_b32 s35, s34, 6"); a(f"v_add_u32 v{T+3}, s35, v{T+3}")
    a(f"v_and_b32 v{T+4}, 1, v{T}"); a(f"v_lshlrev_b32 v{T+4}, 6, v{T+4}"); a("s_lshl_b32 s35, s34, 7"); a(f"s_add_u32 s35, s35, {FM_OFF}"); a(f"v_add_u32 v{T+4}, s35, v{T+4}")
    a(f"v_cmp_gt_u32 vcc, 3, v{T+1}")
    a(f"v_cndmask_b32 v{FV}, v{T+4}, v{T+3}, vcc")
    a(f"v_cmp_le_u32 s[42:43], 3, v{T+1}")
    for r in range(4): a(f"v_mov_b32 v{ONES+r}, 0x3f803f80")
    a(f"v_lshrrev_b32 v{T}, 4, v5"); a(f"v_and_b32 v{T+1}, 15, v5")
    a(f"v_mov_b32 v{T+2}, 0xff800000"); a(f"v_mov_b32 v{T+3}, 0")
    a(f"v_cmp_gt_u32 vcc, 2, v{T}")
    for r in range(4): a(f"v_cndmask_b32 v{CNEG+r}, v{T+3}, v{T+2}, vcc")
    for r in range(4):
        a(f"v_lshl_add_u32 v{T+4}, v{T}, 2, {r}"); a(f"v_cmp_gt_u32 vcc, v{T+4}, v{T+1}")
        a(f"v_cndmask_b32 v{CTRI+r}, v{T+3}, v{T+2}, vcc")
    a(f"s_mov_b32 s{S_C}, 0x{f32bits(128**-0.5 * 1.4426950408889634):08x}"); a(f"s_mov_b32 s{S_C+1}, s{S_C}")
    a(f"s_mov_b32 s{S_S}, s56")
    a.label("L_A_loop")
    a(f"s_lshl_b32 s35, s{S_S}, 5"); a("s_add_u32 s35, s35, s34")
    a("s_lshl_b32 s39, s35, 13")
    for r, o in ((S_K, WS_KT), (S_Q, WS_QT), (S_V, WS_VT), (S_O, WS_OT)):
        sadd64(a, r, P_WS, o); sadd64(a, r, r, "s39")
    a("s_lshl_b32 s39, s35, 12")
    for r, o in ((S_X, WS_XM), (S_M, WS_VM)):
        sadd64(a, r, P_WS, o); sadd64(a, r, r, "s39")
    a(f"s_add_u32 s{S_NEED}, s{S_S}, 1")
    a(f"s_and_b32 s35, s{S_S}, 3"); a("s_lshl_b32 s35, s35, 5"); a("s_add_u32 s35, s35, s34"); a("s_lshl_b32 s35, s35, 6"); a(f"s_add_u32 s35, s35, {FO_OFF}"); a(f"v_mov_b32 v{FOA}, s35")
    def wait_flags(tag, fm):
        lp = f"L_A_w{tag}"
        a(f"s_mov_b32 s{S_SPIN}, 0")
        a.label(lp)
        a(f"global_load_dword v{T}, v{FV}, {sp(P_WS)} sc1")
        a("s_waitcnt vmcnt(0)")
        a(f"v_cmp_gt_u32 vcc, s{S_NEED}, v{T}")
        if not fm: a("s_andn2_b64 vcc, vcc, s[42:43]")
        a.retry(lp, S_SPIN, SPIN_MAX, sleep=4)
    wait_flags("a", False)
    a(f"v_add_u32 v6, 4096, v{L16}")
    def ld8(base, sreg):
        for i in range(8):
            a(f"global_load_dwordx4 v[{base+4*i}:{base+4*i+3}], v{L16 if i < 4 else 6}, {sp(sreg)} offset:{1024*(i&3)} sc1")
    ld8(KR, S_K); ld8(QR, S_Q); ld8(VR, S_V)
    a("s_waitcnt vmcnt(8)")
    for ks in range(4):
        for (Sx, kt, qt) in ((S00, 0, 0), (S01, 0, 1), (S11, 1, 1)):
            c = (f"v[{CTRI}:{CTRI+3}]" if kt == qt else "0") if ks == 0 else f"v[{Sx}:{Sx+3}]"
            a(f"v_mfma_f32_16x16x32_bf16 v[{Sx}:{Sx+3}], v[{KR+4*(2*ks+kt)}:{KR+4*(2*ks+kt)+3}], v[{QR+4*(2*ks+qt)}:{QR+4*(2*ks+qt)+3}], {c}")
    wait_flags("b", True)
    def st63(i):
        if not tl: return
        sk = a.newlabel("L_t63")
        a(f"s_cmp_eq_u32 s{S_S}, 63"); a(f"s_cbranch_scc0 {sk}")
        rt_stamp(a, i, 24, True)
        a.label(sk)
    st63(3)
    for i in range(4): a(f"global_load_dwordx4 v[{XR+4*i}:{XR+4*i+3}], v{L16}, {sp(S_X)} offset:{1024*i} sc1")
    for i in range(8): a(f"global_load_dwordx2 v[{MR+2*i}:{MR+2*i+1}], v{L8}, {sp(S_M)} offset:{512*i} sc1")
    a("s_waitcnt vmcnt(8)")
    for ks in range(4):
        for (Sx, qt) in ((SM0, 0), (SM1, 1)):
            c = f"v[{CNEG}:{CNEG+3}]" if ks == 0 else f"v[{Sx}:{Sx+3}]"
            a(f"v_mfma_f32_16x16x32_bf16 v[{Sx}:{Sx+3}], v[{XR+4*ks}:{XR+4*ks+3}], v[{QR+4*(2*ks+qt)}:{QR+4*(2*ks+qt)+3}], {c}")
    PT = [KR, KR+4]; PM = [KR+8, KR+10]
    def softmax(tiles, mx, t1):
        vals = [t + r for t in tiles for r in range(4)]
        a(f"v_max3_f32 v{mx}, v{vals[0]}, v{vals[1]}, v{vals[2]}")
        i = 3
        while i < len(vals):
            if i + 1 < len(vals): a(f"v_max3_f32 v{mx}, v{mx}, v{vals[i]}, v{vals[i+1]}"); i += 2
            else: a(f"v_max_f32 v{mx}, v{mx}, v{vals[i]}"); i += 1
        a(f"v_mov_b32 v{t1}, v{mx}"); a(f"v_permlane32_swap_b32 v{mx}, v{t1}"); a(f"v_max_f32 v{mx}, v{mx}, v{t1}")
        a(f"v_mov_b32 v{t1}, v{mx}"); a(f"v_permlane16_swap_b32 v{mx}, v{t1}"); a(f"v_max_f32 v{mx}, v{mx}, v{t1}")
        a(f"v_mul_f32 v{mx}, s{S_C}, v{mx}")
        for v in vals: a(f"v_fma_f32 v{v}, v{v}, s{S_C}, -v{mx}")
        for v in vals: a(f"v_exp_f32 v{v}, v{v}")
    softmax([SM0, S00], T, T+1); softmax([SM1, S01, S11], T+2, T+3)
    a(f"v_cvt_pk_bf16_f32 v{PM[0]}, v{SM0}, v{SM0+1}"); a(f"v_cvt_pk_bf16_f32 v{PM[0]+1}, v{SM0+2}, v{SM0+3}")
    a(f"v_cvt_pk_bf16_f32 v{PM[1]}, v{SM1}, v{SM1+1}"); a(f"v_cvt_pk_bf16_f32 v{PM[1]+1}, v{SM1+2}, v{SM1+3}")
    a(f"v_cvt_pk_bf16_f32 v{PT[0]}, v{S00}, v{S00+1}"); a(f"v_cvt_pk_bf16_f32 v{PT[0]+1}, v{S00+2}, v{S00+3}")
    a(f"v_mov_b32 v{PT[0]+2}, 0"); a(f"v_mov_b32 v{PT[0]+3}, 0")
    a(f"v_cvt_pk_bf16_f32 v{PT[1]}, v{S01}, v{S01+1}"); a(f"v_cvt_pk_bf16_f32 v{PT[1]+1}, v{S01+2}, v{S01+3}")
    a(f"v_cvt_pk_bf16_f32 v{PT[1]+2}, v{S11}, v{S11+1}"); a(f"v_cvt_pk_bf16_f32 v{PT[1]+3}, v{S11+2}, v{S11+3}")
    a("s_waitcnt vmcnt(0)")
    for qt in range(2):
        a(f"v_mfma_f32_16x16x32_bf16 v[{LA+4*qt}:{LA+4*qt+3}], v[{ONES}:{ONES+3}], v[{PT[qt]}:{PT[qt]+3}], 0")
    for et in range(8):
        for qt in range(2):
            o = OA + 8*et + 4*qt
            a(f"v_mfma_f32_16x16x32_bf16 v[{o}:{o+3}], v[{VR+4*et}:{VR+4*et+3}], v[{PT[qt]}:{PT[qt]+3}], 0")
    for qt in range(2):
        a(f"v_mfma_f32_16x16x16_bf16 v[{LA+4*qt}:{LA+4*qt+3}], v[{ONES}:{ONES+1}], v[{PM[qt]}:{PM[qt]+1}], v[{LA+4*qt}:{LA+4*qt+3}]")
    for et in range(8):
        for qt in range(2):
            o = OA + 8*et + 4*qt
            a(f"v_mfma_f32_16x16x16_bf16 v[{o}:{o+3}], v[{MR+2*et}:{MR+2*et+1}], v[{PM[qt]}:{PM[qt]+1}], v[{o}:{o+3}]")
    a(f"v_rcp_f32 v{LA}, v{LA}"); a(f"v_rcp_f32 v{LA+4}, v{LA+4}")
    for et in range(8):
        R = QR + 4*et
        for qt in range(2):
            o = OA + 8*et + 4*qt; l = LA + 4*qt
            a(f"v_pk_mul_f32 v[{o}:{o+1}], v[{o}:{o+1}], v[{l}:{l+1}] op_sel_hi:[1,0]")
            a(f"v_pk_mul_f32 v[{o+2}:{o+3}], v[{o+2}:{o+3}], v[{l}:{l+1}] op_sel_hi:[1,0]")
            a(f"v_cvt_pk_bf16_f32 v{R+2*qt}, v{o}, v{o+1}"); a(f"v_cvt_pk_bf16_f32 v{R+2*qt+1}, v{o+2}, v{o+3}")
        a(f"v_permlane16_swap_b32 v{R}, v{R+2}"); a(f"v_permlane16_swap_b32 v{R+1}, v{R+3}")
        a(f"global_store_dwordx4 v{L16 if et < 4 else 6}, v[{R}:{R+3}], {sp(S_O)} offset:{1024*(et&3)} sc1")
    st63(4)
    a("s_waitcnt vmcnt(0)")
    st63(5)
    a("s_mov_b64 exec, 1")
    a(f"v_mov_b32 v{T}, s{S_NEED}")
    a(f"global_store_dword v{FOA}, v{T}, {sp(P_WS)} sc1")
    a("s_mov_b64 exec, -1")
    a(f"s_add_u32 s{S_S}, s{S_S}, 2"); a(f"s_cmp_lt_u32 s{S_S}, 64"); a("s_cbranch_scc1 L_A_loop")
    a("s_waitcnt vmcnt(0)")
    rt_stamp(a, 2, 24, tl)
    a("s_endpgm")
    a.flush()
```

```python
from asmlib import *

NAME = "parallel_sum__memory_aug_recurrent_mem_tr__dense_activation_mish__prompt"
S, D, H, E, M, SEG, NSEG, F = 2048, 640, 32, 128, 8, 32, 64, 1728

MB = 1 << 20
WS_FLAGS = 0
FK_OFF, FV_OFF, FQ_OFF, FH_OFF, FM_OFF, FO_OFF = 0, 4096, 8192, 12288, 16384, 20480
HINT_OFF = 28672
FX_OFF = 32768
FLAGS_BYTES = 65536
WS_XN   = 1 * MB
WS_XPL  = 4 * MB
WS_XPR  = 4 * MB + 131072
WS_PART = 5 * MB
WS_KT   = 16 * MB
WS_VT   = 32 * MB
WS_QT   = 48 * MB
WS_XM   = 64 * MB
WS_VM   = 72 * MB
WS_OT   = 80 * MB
WS_H1   = 100 * MB

WS_PROF = 120 * MB

P_X, P_MEM0, P_WQ, P_WK, P_WV, P_WO, P_W1, P_B1, P_W2, P_OUT, P_DBG, P_WS = 8, 10, 12, 14, 16, 18, 20, 22, 24, 26, 28, 30

def sp(p): return f"s[{p}:{p+1}]"

def load_kernargs(a):
    a("s_load_dwordx8 s[8:15], s[0:1], 0")
    a("s_load_dwordx4 s[16:19], s[0:1], 32")
    a("s_load_dwordx4 s[20:23], s[0:1], 64")
    a("s_load_dwordx8 s[24:31], s[0:1], 80")

def sadd64(a, dst, src, imm):
    a(f"s_add_u32 s{dst}, s{src}, {imm}")
    a(f"s_addc_u32 s{dst+1}, s{src+1}, 0")

WS_TL = 121 * MB
def rt_stamp(a, idx, vtmp=254, enable=True):
    if not enable: return
    lab = a.newlabel("L_rt")
    a("s_cmp_eq_u32 s32, 0"); a(f"s_cbranch_scc0 {lab}")
    a("s_memrealtime s[4:5]"); a("s_memtime s[6:7]"); a("s_waitcnt lgkmcnt(0)")
    a("s_mov_b32 s7, s6")
    a("s_lshl_b32 s5, s3, 7"); a(f"s_add_u32 s5, s5, {WS_TL + 4*idx}")
    a(f"v_mov_b32 v{vtmp}, s5"); a(f"v_mov_b32 v{vtmp+1}, s4")
    a("s_mov_b32 s4, s7")
    a("s_mov_b64 s[6:7], exec"); a("s_mov_b64 exec, 1")
    a(f"global_store_dword v{vtmp}, v{vtmp+1}, s[30:31]")
    a(f"v_mov_b32 v{vtmp+1}, s4")
    a(f"global_store_dword v{vtmp}, v{vtmp+1}, s[30:31] offset:64")
    a("s_waitcnt vmcnt(0)")
    a("s_mov_b64 exec, s[6:7]")
    a.label(lab)

def wait_first_keys(a, tag, vt=2):
    lp = f"L_wfk_{tag}"; ok = lp + "_ok"
    a("s_cmp_eq_u32 s32, 0"); a(f"s_cbranch_scc0 {ok}")
    a("s_mov_b32 s57, 0")
    a(f"v_mov_b32 v{vt}, {FK_OFF}")
    a.label(lp)
    a(f"global_load_dword v{vt+1}, v{vt}, s[30:31] sc1")
    a("s_waitcnt vmcnt(0)")
    a(f"v_readfirstlane_b32 s58, v{vt+1}")
    a("s_cmp_ge_u32 s58, 1"); a(f"s_cbranch_scc1 {ok}")
    a("s_sleep 16")
    a("s_add_u32 s57, s57, 1"); a("s_cmp_lt_u32 s57, 0x4000"); a(f"s_cbranch_scc1 {lp}")
    a.label(ok)
    a("s_barrier")

def dbg_ticket_word(x): return (x & 3) + 32 * (x >> 2)
DBG_RINIT = 160

def load_tickets(a, vaddr, vdata, vl):
    a(f"v_and_b32 v{vaddr}, 3, v{vl}"); a(f"v_bfe_u32 v{vdata}, v{vl}, 2, 1"); a(f"v_lshl_add_u32 v{vaddr}, v{vdata}, 5, v{vaddr}")
    a(f"v_lshlrev_b32 v{vaddr}, 2, v{vaddr}")
    a(f"v_cmp_eq_u32 vcc, 8, v{vl}"); a(f"v_mov_b32 v{vdata}, 40"); a(f"v_cndmask_b32 v{vaddr}, v{vaddr}, v{vdata}, vcc")
    a(f"v_cmp_lt_u32 vcc, 8, v{vl}"); a(f"v_mov_b32 v{vdata}, 44"); a(f"v_cndmask_b32 v{vaddr}, v{vaddr}, v{vdata}, vcc")

def sum_tickets(a, sdst, stmp, vdata):
    a(f"v_readlane_b32 s{sdst}, v{vdata}, 0")
    for l in range(1, 9):
        a(f"v_readlane_b32 s{stmp}, v{vdata}, {l}"); a(f"s_add_u32 s{sdst}, s{sdst}, s{stmp}")

def wait_init(a, tag, vt=2, sreg=57, sleep=8):
    lp = f"L_wi_{tag}"; ok = lp + "_ok"
    a("s_cmp_eq_u32 s32, 0"); a(f"s_cbranch_scc0 {ok}")
    a(f"s_mov_b32 s{sreg}, 0")
    a(f"v_and_b32 v{vt+2}, 63, v0")
    load_tickets(a, vt, vt+1, vt+2)
    a.label(lp)
    a(f"global_load_dword v{vt+1}, v{vt}, {sp(P_DBG)} sc1")
    a("s_waitcnt vmcnt(0)")
    sum_tickets(a, sreg+1, sreg+2, vt+1)
    a(f"s_cmp_ge_u32 s{sreg+1}, 256"); a(f"s_cbranch_scc1 {ok}")
    a(f"s_sleep {sleep}")
    a(f"s_add_u32 s{sreg}, s{sreg}, 1"); a(f"s_cmp_lt_u32 s{sreg}, 0x20000"); a(f"s_cbranch_scc1 {lp}")
    a("s_endpgm")
    a.label(ok)
    a("s_barrier")

def init_done(a, vt=2, word=None):
    a("s_mov_b64 exec, 1")
    a(f"v_mov_b32 v{vt}, {word}"); a(f"v_mov_b32 v{vt+1}, 1")
    a(f"global_atomic_add v{vt}, v{vt+1}, {sp(P_DBG)}")
    a("s_mov_b64 exec, -1")
```

```python
from gen_common import *
SPIN_MAX = 0x40000

def gen_fin(a, opts={}):
    tl = opts.get('tl', 0)
    L16, FOV, FHV, XO, LW, LR, OO = 1, 2, 3, 4, 5, 6, 7
    ACC, ACH, RING, NB = 8, 24, 40, 24
    T = 136
    W2 = 148
    S_S, S_NEED, S_SPIN, S_SET = 36, 37, 38, 39
    S_O, S_H, S_X, S_OUT = 44, 46, 48, 50
    a.label("L_F_main")
    a(f"s_mov_b32 s{S_SET}, s35")
    a("v_and_b32 v0, 63, v0")
    if opts.get('stag', 1): wait_first_keys(a, 'F')
    a(f"v_lshlrev_b32 v{L16}, 4, v0")
    a("v_lshrrev_b32 v2, 2, v0"); a("v_mul_u32_u24 v2, 1280, v2"); a("v_and_b32 v3, 3, v0"); a("v_lshl_add_u32 v2, v3, 4, v2")
    a("s_lshl_b32 s40, s34, 6")
    a("s_mul_i32 s41, s32, 1310720"); a("s_add_u32 s41, s41, s40")
    sadd64(a, 44, P_WO, "s41")
    a("s_mul_i32 s41, s32, 552960"); a("s_add_u32 s41, s41, s40")
    sadd64(a, 46, P_W2, "s41")
    a("s_lshl_b32 s41, s32, 13"); a(f"v_add_u32 v3, s41, v{L16}")
    a("v_lshrrev_b32 v4, 5, v0"); a("v_bfe_u32 v5, v0, 2, 2"); a("v_bfe_u32 v6, v0, 4, 1"); a("v_and_b32 v7, 3, v0")
    a("v_lshlrev_b32 v9, 5, v6"); a("v_lshl_add_u32 v9, v7, 3, v9"); a("v_lshl_add_u32 v9, v5, 6, v9"); a("v_add_u32 v9, s41, v9")
    a("v_lshl_add_u32 v10, v4, 9, v9")
    a("v_lshl_add_u32 v11, v4, 8, v9")
    chunks = [('o', c, 4) for c in range(16)] + [('f', c, 4 if c < 6 else 3) for c in range(7)]
    LAND = 16
    vm = Cnt(a, "vmcnt", 63)
    DEPTH = 7
    def issue(i):
        kind, c, n = chunks[i]
        base = LAND + 16*(i % 8)
        sreg = 44 if kind == 'o' else 46
        for q in range(n):
            vm.issue(i, f"global_load_dwordx4 v[{base+4*q}:{base+4*q+3}], v2, s[{sreg}:{sreg+1}]")
            sadd64(a, sreg, sreg, 20480)
    for i in range(DEPTH): issue(i)
    for i, (kind, c, n) in enumerate(chunks):
        base = LAND + 16*(i % 8); buf = 4096*(i & 1)
        vm.wait(i)
        for q in range(n): a(f"ds_write_b128 v3, v[{base+4*q}:{base+4*q+3}] offset:{buf+1024*q}")
        for kk in range(n):
            for jq in range(2):
                if kind == 'o':
                    ks = 4*c + kk
                    a(f"ds_read_b64_tr_b16 a[{4*ks+2*jq}:{4*ks+2*jq+1}], v10 offset:{buf+1024*kk+256*jq}")
                else:
                    ks = 4*c + kk
                    a(f"ds_read_b64_tr_b16 v[{W2+4*ks+2*jq}:{W2+4*ks+2*jq+1}], v11 offset:{buf+1024*kk+512*jq}")
        a("s_waitcnt lgkmcnt(0)")
        if i + DEPTH < len(chunks): issue(i + DEPTH)
    a("s_barrier")
    a(f"v_and_b32 v{FOV}, 31, v0"); a(f"v_lshlrev_b32 v{FOV}, 6, v{FOV}"); a(f"v_add_u32 v{FOV}, {FO_OFF}, v{FOV}")
    a(f"v_min_u32 v{T}, 55, v0"); a(f"v_lshrrev_b32 v{T+1}, 2, v{T}"); a(f"v_and_b32 v{T}, 3, v{T}"); a(f"v_lshlrev_b32 v{T}, 2, v{T}")
    a(f"v_lshl_add_u32 v{FHV}, v{T+1}, 6, v{T}"); a(f"v_add_u32 v{FHV}, {FH_OFF}, v{FHV}")
    a(f"v_and_b32 v{T}, 31, v0"); a(f"v_mul_u32_u24 v{T}, 1280, v{T}"); a(f"v_lshrrev_b32 v{T+1}, 5, v0"); a(f"v_lshl_add_u32 v{T}, v{T+1}, 3, v{T}")
    a("s_lshl_b32 s40, s34, 6"); a("s_lshl_b32 s41, s32, 4"); a("s_add_u32 s40, s40, s41"); a(f"v_add_u32 v{XO}, s40, v{T}")
    a("s_lshl_b32 s40, s32, 12"); a(f"v_add_u32 v{LW}, s40, v{L16}")
    a("s_lshl_b32 s40, s32, 10"); a(f"v_add_u32 v{LR}, s40, v{L16}")
    a(f"s_mov_b32 s{S_S}, s{S_SET}"); a("s_mov_b32 s56, 0")
    def wait_flag(tag, voff, need, extra_sreg=None):
        lp = f"L_F_w{tag}"
        a(f"s_mov_b32 s{S_SPIN}, 0")
        a.label(lp)
        if extra_sreg is None: a(f"global_load_dword v{T}, v{voff}, {sp(P_WS)} sc1")
        else: a(f"global_load_dword v{T}, v{voff}, {sp(extra_sreg)} sc1")
        a("s_waitcnt vmcnt(0)")
        a(f"v_cmp_gt_u32 vcc, s{need}, v{T}")
        a.retry(lp, S_SPIN, SPIN_MAX, sleep=4)
    def hbase(sreg_seg):
        a(f"s_mul_i32 s40, s{sreg_seg}, {108*1024}"); a(f"s_mul_i32 s41, s32, {27*1024}"); a("s_add_u32 s40, s40, s41")
        sadd64(a, S_H, P_WS, WS_H1); sadd64(a, S_H, S_H, "s40")
    rt_stamp(a, 1, 136, tl)
    a(f"s_add_u32 s{S_NEED}, s{S_S}, 1")
    wait_flag("h0", FHV, S_NEED)
    hbase(S_S)
    def h_load(vm, i):
        b = RING + 4*(i % NB)
        vm.issue(('h', i), f"global_load_dwordx4 v[{b}:{b+3}], v{L16}, {sp(S_H)} offset:{1024*(i&3)} sc1")
        if (i & 3) == 3: sadd64(a, S_H, S_H, 4096)
    def h_mfma(vm, i, slot):
        b = RING + 4*(slot % NB)
        vm.wait(('h', i) if slot == i else ('h', i))
        c = "0" if i == 0 else f"v[{ACH}:{ACH+15}]"
        a(f"v_mfma_f32_32x32x16_bf16 v[{ACH}:{ACH+15}], v[{W2+4*i}:{W2+4*i+3}], v[{b}:{b+3}], {c}")
    vm = Cnt(a, "vmcnt", 63)
    for i in range(NB): h_load(vm, i)
    for i in range(27):
        h_mfma(vm, i, i)
        if i + NB < 27: h_load(vm, i + NB)
    a.label("L_F_loop")
    a(f"s_lshl_b32 s40, s{S_S}, 18"); a("s_lshl_b32 s41, s32, 16"); a("s_add_u32 s40, s40, s41")
    sadd64(a, S_O, P_WS, WS_OT); sadd64(a, S_O, S_O, "s40")
    a(f"s_mul_i32 s40, s{S_S}, 40960")
    sadd64(a, S_X, P_X, "s40"); sadd64(a, S_OUT, P_OUT, "s40")
    a(f"s_and_b32 s40, s{S_S}, 3"); a("s_lshl_b32 s40, s40, 11"); sadd64(a, 52, P_WS, "s40")
    a(f"s_add_u32 s{S_NEED}, s{S_S}, 1")
    a(f"s_add_u32 s54, s{S_S}, 3"); a("s_min_u32 s54, s54, 63"); a("s_add_u32 s55, s54, 1")
    wait_flag("h", FHV, 55)
    hbase(54)
    wait_flag("o", FOV, S_NEED, 52)
    def st63(i):
        if not tl: return
        sk = a.newlabel("L_t63")
        a(f"s_cmp_eq_u32 s{S_S}, 63"); a(f"s_cbranch_scc0 {sk}")
        rt_stamp(a, i, T+8, True)
        a.label(sk)
    st63(3)
    vm = Cnt(a, "vmcnt", 63)
    vm.issue('x', f"global_load_dwordx2 v[{T+2}:{T+3}], v{XO}, {sp(S_X)}")
    seq = [('o', i) for i in range(64)] + [('h', i) for i in range(27)]
    def load(k):
        kind, i = seq[k]; b = RING + 4*(k % NB)
        sreg = S_O if kind == 'o' else S_H
        vm.issue(k, f"global_load_dwordx4 v[{b}:{b+3}], v{L16}, {sp(sreg)} offset:{1024*(i&3)} sc1")
        if (i & 3) == 3: sadd64(a, sreg, sreg, 4096)
    for k in range(NB): load(k)
    for k, (kind, i) in enumerate(seq):
        b = RING + 4*(k % NB)
        vm.wait(k)
        if kind == 'o':
            c = f"v[{ACH}:{ACH+15}]" if i == 0 else f"v[{ACC}:{ACC+15}]"
            a(f"v_mfma_f32_32x32x16_bf16 v[{ACC}:{ACC+15}], a[{4*i}:{4*i+3}], v[{b}:{b+3}], {c}")
        else:
            c = "0" if i == 0 else f"v[{ACH}:{ACH+15}]"
            a(f"v_mfma_f32_32x32x16_bf16 v[{ACH}:{ACH+15}], v[{W2+4*i}:{W2+4*i+3}], v[{b}:{b+3}], {c}")
        if k + NB < len(seq): load(k + NB)
        if k == 63:
            if tl: a("s_nop 15")
            st63(4)
            a("s_xor_b32 s56, s56, 16384"); a("s_add_u32 s40, s56, 32768")
            a(f"v_add_u32 v{T+4}, s40, v{LW}"); a(f"v_add_u32 v{T+5}, s40, v{LR}")
            for q in range(4): a(f"ds_write_b128 v{T+4}, v[{ACC+4*q}:{ACC+4*q+3}] offset:{1024*q}")
            a("s_waitcnt lgkmcnt(0)")
            a("s_barrier")
            for w2 in range(4): a(f"ds_read_b128 v[{ACC+4*w2}:{ACC+4*w2+3}], v{T+5} offset:{4096*w2}")
            a("s_waitcnt lgkmcnt(0)")
            for r in range(4):
                a(f"v_add_f32 v{ACC+r}, v{ACC+r}, v{ACC+4+r}"); a(f"v_add_f32 v{ACC+8+r}, v{ACC+8+r}, v{ACC+12+r}")
            for r in range(4): a(f"v_add_f32 v{ACC+r}, v{ACC+r}, v{ACC+8+r}")
            a(f"v_lshlrev_b32 v{ACC+4}, 16, v{T+2}"); a(f"v_and_b32 v{ACC+5}, 0xffff0000, v{T+2}")
            a(f"v_lshlrev_b32 v{ACC+6}, 16, v{T+3}"); a(f"v_and_b32 v{ACC+7}, 0xffff0000, v{T+3}")
            for r in range(4): a(f"v_add_f32 v{ACC+r}, v{ACC+r}, v{ACC+4+r}")
            a(f"v_cvt_pk_bf16_f32 v{T+6}, v{ACC}, v{ACC+1}"); a(f"v_cvt_pk_bf16_f32 v{T+7}, v{ACC+2}, v{ACC+3}")
            vm.issue('st', f"global_store_dwordx2 v{XO}, v[{T+6}:{T+7}], {sp(S_OUT)}")
            a(f"s_cmp_ge_u32 s{S_S}, 61"); a("s_cbranch_scc1 L_F_done")
    a(f"s_add_u32 s{S_S}, s{S_S}, 3"); a(f"s_cmp_lt_u32 s{S_S}, 64"); a("s_cbranch_scc1 L_F_loop")
    a.label("L_F_done")
    a("s_waitcnt vmcnt(0)")
    rt_stamp(a, 2, 136, tl)
    a("s_endpgm")
    a.flush()
```

```python
from gen_common import *

def gen_ln(a, tl=0):
    a.comment("==== layer norm of one segment (done first by the workgroups that have nothing to load yet) ====")
    a.label("L_LN")
    a("s_mul_i32 s60, s59, 40960")
    sadd64(a, 62, P_X, "s60")
    sadd64(a, 64, P_WS, WS_XN)
    sadd64(a, 64, 64, "s60")
    a("v_and_b32 v1, 31, v0")
    a("v_lshrrev_b32 v2, 5, v0")
    a("v_mul_u32_u24 v3, 1280, v1")
    a("v_lshl_add_u32 v3, v2, 4, v3")
    for i in range(10):
        a(f"global_load_dwordx4 v[{16+4*i}:{19+4*i}], v3, s[62:63] offset:{128*i}")
    a("v_lshlrev_b32 v4, 2, v0")
    a("v_lshlrev_b32 v5, 2, v1")
    a("s_waitcnt vmcnt(0)")
    rt_stamp(a, 6, 250, tl)
    for i in range(40):
        a(f"v_lshlrev_b32 v{64+2*i}, 16, v{16+i}")
        a(f"v_and_b32 v{65+2*i}, 0xffff0000, v{16+i}")
    def reduce(src_regs, sq, ldsoff):
        a("v_mov_b32 v6, 0"); a("v_mov_b32 v7, 0")
        for k, r in enumerate(src_regs):
            acc = 6 + (k & 1)
            if sq:
                a(f"v_sub_f32 v8, v{r}, v10")
                a(f"v_fmac_f32 v{acc}, v8, v8")
            else:
                a(f"v_add_f32 v{acc}, v{acc}, v{r}")
        a("v_add_f32 v6, v6, v7")
        a(f"ds_write_b32 v4, v6 offset:{ldsoff}")
        a("s_waitcnt lgkmcnt(0)")
        a("s_barrier")
        for p in range(8):
            a(f"ds_read_b32 v{144+p}, v5 offset:{ldsoff + 128*p}")
        a("s_waitcnt lgkmcnt(0)")
        a("v_add_f32 v144, v144, v145"); a("v_add_f32 v146, v146, v147"); a("v_add_f32 v148, v148, v149"); a("v_add_f32 v150, v150, v151")
        a("v_add_f32 v144, v144, v146"); a("v_add_f32 v148, v148, v150"); a("v_add_f32 v144, v144, v148")
    regs = list(range(64, 144))
    reduce(regs, False, 0)
    a(f"v_mul_f32 v10, 0x{f32bits(1.0/640):08x}, v144")
    reduce(regs, True, 1024)
    a(f"v_mul_f32 v11, 0x{f32bits(1.0/640):08x}, v144")
    a("v_cvt_pk_bf16_f32 v12, v10, v11")
    a("v_lshlrev_b32 v10, 16, v12")
    a("v_and_b32 v11, 0xffff0000, v12")
    a(f"v_add_f32 v11, 0x{f32bits(1e-5):08x}, v11")
    a("v_cvt_pk_bf16_f32 v12, v11, v11")
    a("v_and_b32 v11, 0xffff0000, v12")
    a("v_sqrt_f32 v11, v11")
    a("v_cvt_pk_bf16_f32 v12, v11, v11")
    a("v_and_b32 v11, 0xffff0000, v12")
    a("v_rcp_f32 v13, v11")
    a("v_lshlrev_b32 v14, 4, v0")
    for i in range(10):
        for k in range(4):
            r0 = 64 + 8*i + 2*k; r1 = r0 + 1
            a(f"v_sub_f32 v{r0}, v{r0}, v10"); a(f"v_sub_f32 v{r1}, v{r1}, v10")
            a(f"v_cvt_pk_bf16_f32 v8, v{r0}, v{r1}")
            a(f"v_lshlrev_b32 v{r0}, 16, v8"); a(f"v_and_b32 v{r1}, 0xffff0000, v8")
            a(f"v_mul_f32 v8, v{r0}, v13"); a(f"v_mul_f32 v9, v{r1}, v13")
            a(f"v_fma_f32 v{r0}, -v8, v11, v{r0}"); a(f"v_fma_f32 v{r1}, -v9, v11, v{r1}")
            a(f"v_fma_f32 v8, v{r0}, v13, v8"); a(f"v_fma_f32 v9, v{r1}, v13, v9")
            a(f"v_cvt_pk_bf16_f32 v{16+4*i+k}, v8, v9")
        a(f"global_store_dwordx4 v14, v[{16+4*i}:{19+4*i}], s[64:65] sc1")
        a("v_add_u32 v14, 4096, v14")
    a("s_waitcnt vmcnt(0)")
    a("s_barrier")
    rt_stamp(a, 7, 250, tl)
    wait_init(a, "LN", sreg=66)
    rt_stamp(a, 8, 250, tl)
    a("s_cmp_eq_u32 s32, 0"); a("s_cbranch_scc0 L_LN_nf")
    a("s_mov_b64 exec, 1")
    a("s_lshl_b32 s60, s59, 6"); a(f"s_add_u32 s60, s60, {FX_OFF}")
    a("v_mov_b32 v2, s60"); a("v_mov_b32 v3, 1")
    a(f"global_store_dword v2, v3, {sp(P_WS)} sc1")
    a("s_waitcnt vmcnt(0)")
    a("s_mov_b64 exec, -1")
    a.label("L_LN_nf")
    a("s_cmp_lt_u32 s59, 60"); a("s_cbranch_scc1 L_F_main")
    a("s_endpgm")

import struct
def f32bits(x): return struct.unpack("<I", struct.pack("<f", x))[0]
```

```python
from gen_common import *
from gen_init import f32bits

def flag_store(a, sflag_pair, voff_reg, sval, vtmp):
    a("s_mov_b64 exec, 1")
    a(f"v_mov_b32 v{vtmp}, {sval}")
    a(f"global_store_dword v{voff_reg}, v{vtmp}, {sp(sflag_pair)} sc1")
    a("s_mov_b64 exec, -1")

def gen_proj(a, kind, opts={}):
    tl = opts.get('tl', 0)
    L = f"L_{kind}"
    wptr = {'K': P_WK, 'Q': P_WQ, 'V': P_WV, 'H': P_W1}[kind]
    rstride = 3456 if kind == 'H' else 8192
    a.label(L)
    a("v_and_b32 v1, 63, v0")
    if kind == 'Q':
        a("s_cmp_eq_u32 s34, 0"); a("s_cbranch_scc0 L_Q_noprobe")
        a("s_cmp_eq_u32 s32, 0"); a("s_cbranch_scc0 L_Q_probed")
        a("s_mov_b64 exec, 1")
        a("v_mov_b32 v3, -1")
        for cand in range(2):
            a(f"v_mov_b32 v2, {WS_XPR + 7680 + 8192*cand}")
            a(f"s_mov_b32 s{40+cand}, -1")
            for rep in range(3):
                a(f"global_store_dword v2, v3, {sp(P_WS)} sc1"); a("s_waitcnt vmcnt(0)")
                a("s_memtime s[42:43]"); a("s_waitcnt lgkmcnt(0)")
                a(f"global_load_dword v4, v2, {sp(P_WS)} sc1"); a("s_waitcnt vmcnt(0)")
                a("s_memtime s[44:45]"); a("s_waitcnt lgkmcnt(0)")
                a("s_sub_u32 s46, s44, s42"); a(f"s_min_u32 s{40+cand}, s{40+cand}, s46")
        a("s_cmp_lt_u32 s41, s40"); a("s_cselect_b32 s40, 2, 1")
        a("v_mov_b32 v2, 44"); a("v_mov_b32 v3, s40")
        a(f"global_store_dword v2, v3, {sp(P_DBG)} sc1")
        a("s_waitcnt vmcnt(0)")
        a("s_mov_b64 exec, -1")
        a.label("L_Q_probed")
        a("s_barrier")
        a.label("L_Q_noprobe")
    if kind in ('Q', 'H'):
        wait_init(a, kind, sleep=32)
        if opts.get('stag', 1): wait_first_keys(a, kind)
    a("s_lshl_b32 s35, s34, 8")
    sadd64(a, 36, wptr, "s35")
    a(f"s_mul_i32 s35, s32, {160*rstride}")
    sadd64(a, 36, 36, "s35")
    a("v_lshrrev_b32 v4, 4, v1")
    a("v_and_b32 v5, 15, v1")
    a("v_lshrrev_b32 v6, 1, v5"); a("v_lshlrev_b32 v7, 1, v4"); a("v_xor_b32 v6, v6, v7")
    a("v_and_b32 v5, 1, v5"); a("v_lshl_add_u32 v6, v6, 1, v5")
    if kind == 'H':
        a("s_cmp_eq_u32 s34, 13"); a("s_cselect_b32 s35, 7, 15"); a("v_and_b32 v6, s35, v6")
    a(f"s_mov_b32 s35, {rstride}")
    a("v_mul_lo_u32 v2, v4, s35")
    a("v_lshl_add_u32 v2, v6, 4, v2")
    a(f"s_mul_i32 s40, s32, 40960")
    for i in range(40):
        a("s_mov_b32 m0, s40")
        a("global_load_lds_dwordx4 v2, s[36:37]")
        a("s_add_u32 s40, s40, 1024")
        sadd64(a, 36, 36, 4*rstride)
    a("v_lshrrev_b32 v10, 5, v1")
    a("v_bfe_u32 v11, v1, 2, 2")
    a("v_lshl_add_u32 v12, v10, 3, v11")
    a("v_lshlrev_b32 v12, 8, v12")
    a("v_bfe_u32 v13, v1, 4, 1")
    a("s_lshl_b32 s35, s32, 1")
    a("v_add_u32 v13, s35, v13")
    a("v_lshlrev_b32 v14, 1, v11")
    a("v_xor_b32 v13, v13, v14")
    a("v_lshl_add_u32 v12, v13, 5, v12")
    a("v_and_b32 v13, 3, v1")
    a("v_lshl_add_u32 v15, v13, 3, v12")
    a("v_add_u32 v16, 0x10000, v15"); a("v_add_u32 v17, 0x20000, v15")
    a("s_waitcnt vmcnt(0)")
    a("s_barrier")
    lgp = Cnt(a, "lgkmcnt", 15)
    for ks in range(40):
        for jq in range(2):
            lgp.issue(ks, f"ds_read_b64_tr_b16 a[{4*ks+2*jq}:{4*ks+2*jq+1}], v{15 + ks//16} offset:{4096*(ks % 16) + 1024*jq}")
    lgp.waitall()
    a("s_barrier")
    if kind == 'H':
        a("s_lshl_b32 s35, s34, 7"); a("s_lshl_b32 s38, s32, 5"); a("s_add_u32 s35, s35, s38")
        a("v_lshrrev_b32 v10, 5, v1"); a("v_lshlrev_b32 v10, 2, v10"); a("v_add_u32 v10, s35, v10")
        a("v_min_u32 v10, 1700, v10")
        a("v_lshlrev_b32 v10, 1, v10")
        for q in range(4):
            a(f"global_load_dwordx2 v[{64+2*q}:{65+2*q}], v10, {sp(P_B1)} offset:{16*q}")
        a("s_waitcnt vmcnt(0)")
        for q in range(4):
            for k in range(2):
                a(f"v_lshlrev_b32 v{80+4*q+2*k}, 16, v{64+2*q+k}")
                a(f"v_and_b32 v{81+4*q+2*k}, 0xffff0000, v{64+2*q+k}")
        a(f"s_mov_b32 s60, 0x{f32bits(-1.4426950408889634):08x}")
    if kind in ('K', 'V'): wait_init(a, kind)
    a("v_lshlrev_b32 v9, 6, v1"); a(f"v_add_u32 v9, {FX_OFF}, v9")
    def wait_x(tag, sreg_seg):
        sk = f"{L}_wx{tag}_sk"; lp = f"{L}_wx{tag}"
        a("s_cmp_eq_u32 s62, 1"); a(f"s_cbranch_scc1 {sk}")
        a("s_mov_b32 s57, 0")
        a.label(lp)
        a(f"global_load_dword v10, v9, {sp(P_WS)} sc1")
        a("s_waitcnt vmcnt(0)")
        a("v_cmp_ne_u32 vcc, 0, v10")
        a("s_cmp_eq_u64 vcc, exec"); a("s_cselect_b32 s62, 1, 0")
        a(f"s_bitcmp1_b64 vcc, s{sreg_seg}")
        a.retry(lp, 57, 0x40000, cond='scc0', sleep=2)
        a.label(sk)
    a("s_mov_b32 s62, 0"); a("s_mov_b32 s63, 0")
    wait_x("0", 63)
    a("s_mul_i32 s35, s32, 10240")
    a("v_lshlrev_b32 v5, 4, v1")
    a("v_add_u32 v2, s35, v5"); a("v_add_u32 v3, 4096, v2"); a("v_add_u32 v4, 8192, v2")
    sadd64(a, 36, P_WS, WS_XN)
    a("s_mov_b32 s40, s35")
    if kind in ('K', 'Q', 'V'):
        ob = {'K': WS_KT, 'Q': WS_QT, 'V': WS_VT}[kind]
        a("s_lshl_b32 s35, s34, 13")
        sadd64(a, 38, P_WS, ob); sadd64(a, 38, 38, "s35")
        a("v_bfe_u32 v10, v1, 4, 1"); a("v_lshlrev_b32 v10, 10, v10")
        a("v_lshrrev_b32 v11, 5, v1"); a("v_lshl_add_u32 v10, v11, 8, v10")
        a("v_and_b32 v11, 15, v1"); a("v_lshl_add_u32 v10, v11, 4, v10")
        a("s_lshl_b32 s35, s32, 11"); a("v_add_u32 v6, s35, v10")
        ostep = 32*8192
        fo = {'K': FK_OFF, 'Q': FQ_OFF, 'V': FV_OFF}[kind]
    else:
        a("s_lshl_b32 s35, s34, 13"); a("s_lshl_b32 s41, s32, 11"); a("s_add_u32 s35, s35, s41")
        sadd64(a, 38, P_WS, WS_H1); sadd64(a, 38, 38, "s35")
        a("v_lshlrev_b32 v6, 4, v1")
        ostep = 108*1024
        fo = FH_OFF
    a("s_lshl_b32 s35, s34, 6"); a("s_lshl_b32 s41, s32, 2"); a("s_add_u32 s35, s35, s41"); a(f"s_add_u32 s35, s35, {fo}")
    a("v_mov_b32 v7, s35")
    if kind == 'H':
        a("s_cmp_eq_u32 s34, 13"); a("s_cselect_b32 s61, 1, 0"); a("s_lshr_b32 s41, s32, 1"); a("s_and_b32 s61, s61, s41"); a("s_xor_b32 s61, s61, 1")
    def dma():
        for g in range(3):
            a(f"s_add_u32 m0, s40, {4096*g}") if g else a("s_mov_b32 m0, s40")
            for i in range(4 if g < 2 else 2):
                a(f"global_load_lds_dwordx4 v{2+g}, s[36:37] offset:{1024*i} sc1")
    rt_stamp(a, 1, 250, tl)
    dma()
    a("s_mov_b32 s42, 0")
    a("s_waitcnt vmcnt(0)")
    a.label(L + "_loop")
    a("s_waitcnt vmcnt(3)")
    a("s_barrier")
    a("s_add_u32 s63, s42, 1"); a("s_min_u32 s63, s63, 63")
    wait_x("n", 63)
    a("s_cmp_lt_u32 s42, 63"); a("s_cselect_b32 s35, 40960, 0")
    sadd64(a, 36, 36, "s35")
    a("s_xor_b32 s43, s42, 1"); a("s_and_b32 s43, s43, 1"); a("s_mul_i32 s43, s43, 40960")
    a("s_mul_i32 s40, s32, 10240"); a("s_add_u32 s40, s40, s43")
    dma()
    NR = 8
    def rd(ks): a(f"ds_read_b128 v[{32+4*(ks%NR)}:{35+4*(ks%NR)}], v5 offset:{1024*ks}")
    for ks in range(NR): rd(ks)
    for ks in range(40):
        left = min(NR - 1, 39 - ks)
        a(f"s_waitcnt lgkmcnt({left})")
        f = f"v[{32+4*(ks%NR)}:{35+4*(ks%NR)}]"; wv = f"a[{4*ks}:{4*ks+3}]"
        c = "0" if ks == 0 else "v[16:31]"
        if kind == 'V': a(f"v_mfma_f32_32x32x16_bf16 v[16:31], {f}, {wv}, {c}")
        else: a(f"v_mfma_f32_32x32x16_bf16 v[16:31], {wv}, {f}, {c}")
        if ks + NR < 40: rd(ks + NR)
    a("v_xor_b32 v5, 0xa000, v5")
    a("s_waitcnt vmcnt(10)")
    flag_store(a, P_WS, 7, "s42", 8)
    if kind == 'H':
        a("s_cmp_eq_u32 s61, 0"); a(f"s_cbranch_scc1 {L}_skip")
        for g0 in (0, 8):
            R = range(g0, g0 + 8)
            for r in R: a(f"v_add_f32 v{16+r}, v{16+r}, v{80+r}")
            for r in R: a(f"v_mul_f32 v{96+r}, s60, abs(v{16+r})")
            for r in R: a(f"v_exp_f32 v{96+r}, v{96+r}")
            for k, r in enumerate(R): a(f"v_cmp_lt_f32 s[{44+2*k}:{45+2*k}], 0, v{16+r}")
            for r in R: a(f"v_mul_f32 v{112+r}, v{96+r}, v{96+r}")
            for r in R: a(f"v_fma_f32 v{128+r}, 2.0, v{96+r}, 1.0")
            for r in R: a(f"v_fma_f32 v{96+r}, 2.0, v{96+r}, v{112+r}")
            for r in R: a(f"v_add_f32 v{112+r}, v{112+r}, v{112+r}")
            for k, r in enumerate(R): a(f"v_cndmask_b32 v{96+r}, v{96+r}, v{128+r}, s[{44+2*k}:{45+2*k}]")
            for k, r in enumerate(R): a(f"v_cndmask_b32 v{112+r}, 2.0, v{112+r}, s[{44+2*k}:{45+2*k}]")
            for r in R: a(f"v_add_f32 v{112+r}, v{112+r}, v{96+r}")
            for r in R: a(f"v_rcp_f32 v{112+r}, v{112+r}")
            for r in R: a(f"v_mul_f32 v{16+r}, v{16+r}, v{96+r}")
            for r in R: a(f"v_mul_f32 v{16+r}, v{16+r}, v{112+r}")
        for k in range(8): a(f"v_cvt_pk_bf16_f32 v{64+k}, v{16+2*k}, v{17+2*k}")
        a("global_store_dwordx4 v6, v[64:67], s[38:39] sc1")
        a("global_store_dwordx4 v6, v[68:71], s[38:39] offset:1024 sc1")
        a(f"s_branch {L}_done")
        a.label(L + "_skip")
        a(f"global_load_dword v64, v7, {sp(P_WS)} sc1")
        a(f"global_load_dword v65, v7, {sp(P_WS)} sc1")
        a.label(L + "_done")
    else:
        order = [0, 1, 4, 5, 2, 3, 6, 7]
        for pos, dd in enumerate(order):
            a(f"v_cvt_pk_bf16_f32 v{64+pos}, v{16+2*dd}, v{17+2*dd}")
        a("global_store_dwordx4 v6, v[64:67], s[38:39] sc1")
        a("global_store_dwordx4 v6, v[68:71], s[38:39] offset:512 sc1")
    a("s_cmp_eq_u32 s42, 0"); a(f"s_cbranch_scc0 {L}_nf0")
    a("s_waitcnt vmcnt(0)")
    flag_store(a, P_WS, 7, 1, 8)
    a("s_waitcnt vmcnt(0)")
    a.label(L + "_nf0")
    sadd64(a, 38, 38, ostep)
    a("s_add_u32 s42, s42, 1")
    a("s_cmp_lt_u32 s42, 64")
    a(f"s_cbranch_scc1 {L}_loop")
    a("s_waitcnt vmcnt(0)")
    flag_store(a, P_WS, 7, 64, 8)
    a("s_waitcnt vmcnt(0)")
    rt_stamp(a, 2, 250, tl)
    a("s_endpgm")
    a.flush()
```

```python
from gen_common import *
from gen_init import f32bits
from gen_proj import flag_store

L_WO  = 0
L_WS  = 81920
L_IMG = 131072
L_KTB = 141312
L_XIM = 157696
L_OEX = 161792
L_VEX = 162816
L_STG = 81920

V_IDX, V_L16, V_L8, V_AT0, V_AT1, V_XWQ, V_XWK, V_XR, V_KT, V_WO, V_WS, V_OEW, V_OER, V_VEW, V_VER, V_IW0, V_IW2, V_RL = range(1, 19)
V_ONES = 20
V_SEL  = 24
V_CNEG = 28
ACC = 32
V_VT = 52
POOL = 56
AF = POOL; VS = POOL + 40; KT = POOL + 56; XF = POOL + 88
WREG = 160

def wfrag(tile, c):
    order = []
    for cc in range(10):
        for t in ('q0', 'q1', 'k0'): order.append((t, cc))
    for cc in range(4): order.append(('k1', cc))
    for cc in range(10): order.append(('v', cc))
    if (tile, c) not in order: return None
    f = order.index((tile, c))
    return ('a', 8*f) if f < 32 else ('v', WREG + 8*(f - 32))
def wr(tile, c, lo=0, n=8):
    k, b = wfrag(tile, c)
    return f"{k}[{b+lo}:{b+lo+n-1}]"

S_W, S_J, S_G = 32, 34, 35
S_H, S_HF, S_PROD, S_RID, S_RACT, S_STEP = 36, 37, 38, 39, 40, 41
S_T0, S_T1, S_T2, S_T3 = 44, 45, 46, 47
S_PST = 48
S_RL  = 50
S_PUBR, S_PUBL = 58, 60
S_GL, S_GR = 62, 64
S_KT, S_VT, S_XM, S_VM = 66, 68, 70, 72
S_SPIN = 74
S_XMN, S_VMN = 76, 78
S_POI_OLD = 76
S_PXR, S_PXL = 84, 86
S_C = 88
S_LO, S_HI = 90, 91
S_EXO = 92
S_NEED = 94
S_XMW = 95
S_WBIT = 87
S_EXX = 84
S_HW, S_HR = 80, 82
S_POL = 86
S_OFFR = 85
S_DUM = 42

SPIN_MAX = 0x20000

def gen_r(a, opts):
    D_RED = opts.get('d_red', 5); D_LOC = opts.get('d_loc', 2); D_REM = opts.get('d_rem', 1)
    prof = opts.get('prof', False)
    a.label("L_R")
    a("v_and_b32 v1, 63, v0")
    a(f"s_lshr_b32 s{S_T0}, s{S_J}, 1"); a(f"s_lshl_b32 s{S_H}, s{S_G}, 4"); a(f"s_add_u32 s{S_H}, s{S_H}, s{S_T0}")
    a(f"s_and_b32 s{S_HF}, s{S_J}, 1")
    a(f"s_lshl_b32 s{S_PROD}, s{S_G}, 5"); a(f"s_add_u32 s{S_PROD}, s{S_PROD}, s{S_J}")
    a(f"s_lshl_b32 s{S_RID}, s{S_W}, 5"); a(f"s_add_u32 s{S_RID}, s{S_RID}, s{S_J}")
    a(f"s_cmp_lt_u32 s{S_RID}, 80"); a(f"s_cselect_b32 s{S_RACT}, 1, 0")
    init_handoff(a)
    prologue_weights(a)
    setup_regs(a)
    load_mem0(a)
    rt_stamp(a, 1, 140, opts.get('tl', 0))
    census(a)
    body(a, opts, slow=False)
    body(a, opts, slow=True)

def init_handoff(a):
    for r in range(4, 8): a(f"v_mov_b32 v{r}, -1")
    a("v_lshlrev_b32 v2, 4, v0")
    a(f"s_mul_i32 s{S_T0}, s{S_PROD}, 10240")
    sadd64(a, 48, P_WS, WS_PART); sadd64(a, 48, 48, f"s{S_T0}")
    a("v_add_u32 v3, 4096, v2"); a("v_min_u32 v8, 2032, v2"); a("v_add_u32 v8, 8192, v8")
    for sl in range(2):
        for v in (2, 3, 8): a(f"global_store_dwordx4 v{v}, v[4:7], s[48:49] sc1")
        if sl == 0: sadd64(a, 48, 48, 64*10240)
    a(f"s_lshl_b32 s{S_T0}, s{S_G}, 15"); a(f"s_lshl_b32 s{S_T1}, s{S_J}, 10"); a(f"s_add_u32 s{S_T0}, s{S_T0}, s{S_T1}")
    a(f"s_and_b32 s{S_T1}, s{S_W}, 1"); a(f"s_lshl_b32 s{S_T1}, s{S_T1}, 16"); a(f"s_add_u32 s{S_T0}, s{S_T0}, s{S_T1}")
    sadd64(a, 48, P_WS, WS_XPR); sadd64(a, 48, 48, f"s{S_T0}")
    a("v_lshlrev_b32 v9, 4, v1")
    a("global_store_dwordx4 v9, v[4:7], s[48:49] sc1")
    a(f"s_mul_i32 s{S_T0}, s{S_G}, 10240"); a(f"s_mul_i32 s{S_T1}, s{S_J}, 320"); a(f"s_add_u32 s{S_T0}, s{S_T0}, s{S_T1}")
    a(f"s_and_b32 s{S_T1}, s{S_W}, 1"); a(f"s_mul_i32 s{S_T1}, s{S_T1}, 20480"); a(f"s_add_u32 s{S_T0}, s{S_T0}, s{S_T1}")
    sadd64(a, 48, P_WS, WS_XPL); sadd64(a, 48, 48, f"s{S_T0}")
    a("v_min_u32 v9, 304, v9")
    a("global_store_dwordx4 v9, v[4:7], s[48:49] sc1")

def prologue_weights(a):
    QB = [0, 40960, 81920, 122880]
    a(f"s_lshl_b32 s{S_T0}, s{S_H}, 8")
    sadd64(a, 50, P_WQ, f"s{S_T0}"); sadd64(a, 52, P_WK, f"s{S_T0}")
    a(f"s_lshl_b32 s{S_T1}, s{S_HF}, 7"); a(f"s_add_u32 s{S_T0}, s{S_T0}, s{S_T1}")
    sadd64(a, 54, P_WV, f"s{S_T0}")
    a("v_lshrrev_b32 v2, 4, v1"); a("v_and_b32 v3, 15, v1")
    a("v_lshrrev_b32 v4, 1, v3"); a("v_and_b32 v5, 1, v3")
    a("v_and_b32 v6, 1, v2")
    a(f"s_and_b32 s{S_T0}, s{S_W}, 1"); a(f"s_lshl_b32 s{S_T0}, s{S_T0}, 2")
    a(f"v_or_b32 v6, s{S_T0}, v6")
    a(f"s_lshl_b32 s{S_T1}, s{S_W}, 4")
    a(f"v_add_u32 v7, s{S_T1}, v2")
    for i in range(4):
        a(f"v_or_b32 v8, {(i & 1) << 1}, v6"); a("v_xor_b32 v8, v8, v4"); a("v_lshl_add_u32 v8, v8, 1, v5")
        a(f"v_add_u32 v9, {4*i}, v7"); a("v_lshlrev_b32 v9, 13, v9"); a(f"v_lshl_add_u32 v{10+i}, v8, 4, v9")
    a("v_lshrrev_b32 v2, 3, v1"); a("v_and_b32 v3, 7, v1")
    a("v_lshrrev_b32 v4, 1, v3"); a("v_and_b32 v5, 1, v3")
    a("v_bfe_u32 v6, v2, 2, 1")
    a(f"s_and_b32 s{S_T0}, s{S_W}, 1"); a(f"s_lshl_b32 s{S_T0}, s{S_T0}, 1"); a(f"v_or_b32 v6, s{S_T0}, v6")
    a("v_xor_b32 v6, v6, v4"); a("v_lshl_add_u32 v6, v6, 1, v5")
    for i in range(2):
        a(f"s_lshl_b32 s{S_T1}, s{S_W}, 4"); a(f"s_add_u32 s{S_T1}, s{S_T1}, {8*i}")
        a(f"v_add_u32 v9, s{S_T1}, v2"); a("v_lshlrev_b32 v9, 13, v9"); a(f"v_lshl_add_u32 v{14+i}, v6, 4, v9")
    def qkv_dma(buf):
        a(f"s_lshl_b32 s{S_T0}, s{S_W}, 12"); a(f"s_add_u32 s{S_T0}, s{S_T0}, {buf}")
        for i in range(4):
            a(f"s_add_u32 m0, s{S_T0}, {1024*i}"); a(f"global_load_lds_dwordx4 v{10+i}, s[50:51]")
        for i in range(4):
            a(f"s_add_u32 m0, s{S_T0}, {16384 + 1024*i}"); a(f"global_load_lds_dwordx4 v{10+i}, s[52:53]")
        a(f"s_lshl_b32 s{S_T0}, s{S_W}, 11"); a(f"s_add_u32 s{S_T0}, s{S_T0}, {buf + 32768}")
        for i in range(2):
            a(f"s_add_u32 m0, s{S_T0}, {1024*i}"); a(f"global_load_lds_dwordx4 v{14+i}, s[54:55]")
        for p in (50, 52, 54): sadd64(a, p, p, 64*8192)
    a(f"s_lshl_b32 s{S_T0}, s{S_H}, 7"); a(f"s_lshl_b32 s{S_T1}, s{S_HF}, 6"); a(f"s_add_u32 s{S_T0}, s{S_T0}, s{S_T1}")
    a(f"s_mul_i32 s{S_T0}, s{S_T0}, 1280")
    sadd64(a, 48, P_WO, f"s{S_T0}")
    a(f"s_mul_i32 s{S_T2}, s{S_W}, 1280"); a(f"v_add_u32 v16, s{S_T2}, v1")
    a(f"s_mul_i32 s{S_T2}, s{S_W}, 20480"); a(f"s_add_u32 s{S_T2}, s{S_T2}, {L_STG}")
    a(f"s_mov_b32 s{S_T3}, 52429")
    for i in range(20):
        a(f"v_mul_lo_u32 v17, v16, s{S_T3}"); a("v_lshrrev_b32 v17, 22, v17")
        a("v_mul_u32_u24 v18, 80, v17"); a("v_sub_u32 v18, v16, v18")
        a("v_and_b32 v19, 1, v17"); a("v_bfe_u32 v20, v17, 2, 2"); a("v_lshl_add_u32 v19, v20, 1, v19")
        a("v_lshlrev_b32 v19, 1, v19"); a("v_xor_b32 v18, v18, v19")
        a("v_mul_u32_u24 v17, 1280, v17"); a("v_lshl_add_u32 v17, v18, 4, v17")
        a(f"s_add_u32 m0, s{S_T2}, {1024*i}")
        a("global_load_lds_dwordx4 v17, s[48:49]")
        a("v_add_u32 v16, 64, v16")
    qkv_dma(QB[0]); qkv_dma(QB[1])
    a("v_lshrrev_b32 v5, 4, v1")
    a("v_bfe_u32 v6, v1, 2, 2")
    a("v_lshrrev_b32 v7, 1, v5"); a("v_lshlrev_b32 v7, 4, v7")
    a("v_and_b32 v8, 1, v5"); a("v_lshl_add_u32 v7, v8, 2, v7")
    a("v_and_b32 v9, 1, v6"); a("v_add_u32 v7, v7, v9")
    a("v_lshrrev_b32 v16, 1, v6"); a("v_lshl_add_u32 v7, v16, 3, v7")
    a("v_mul_u32_u24 v7, 1280, v7")
    a("v_and_b32 v17, 3, v1"); a("v_lshl_add_u32 v7, v17, 3, v7"); a(f"v_add_u32 v7, {L_STG}, v7")
    a("v_lshl_add_u32 v9, v8, 1, v9"); a("v_lshl_add_u32 v9, v16, 2, v9")
    a("s_waitcnt vmcnt(20)")
    a("s_barrier")
    a(f"s_cmp_eq_u32 s{S_W}, 0"); a("s_cbranch_scc0 L_R_noid")
    init_done(a, 28, DBG_RINIT)
    a.label("L_R_noid")
    for tt in range(10):
        a(f"s_mul_i32 s{S_T0}, s{S_W}, 10"); a(f"s_add_u32 s{S_T0}, s{S_T0}, {tt}")
        a(f"s_and_b32 s{S_T1}, s{S_T0}, 7"); a(f"s_and_b32 s{S_T2}, s{S_T0}, 0xf8")
        a(f"v_xor_b32 v17, s{S_T1}, v9"); a(f"v_add_u32 v17, s{S_T2}, v17"); a("v_lshl_add_u32 v17, v17, 5, v7")
        d = 30 + 8*tt
        for hi in range(2):
            for jq in range(2):
                a(f"ds_read_b64_tr_b16 v[{d+4*hi+2*jq}:{d+4*hi+2*jq+1}], v17 offset:{40960*hi + 2560*jq}")
        if tt % 3 == 2: a("s_waitcnt lgkmcnt(0)")
    a("s_waitcnt lgkmcnt(0)")
    a("s_barrier")
    qkv_dma(QB[2]); qkv_dma(QB[3])
    a("v_lshrrev_b32 v5, 4, v1"); a("v_bfe_u32 v6, v1, 2, 2")
    a("v_lshlrev_b32 v7, 2, v5"); a("v_and_b32 v8, 1, v6"); a("v_add_u32 v7, v7, v8"); a("v_lshrrev_b32 v9, 1, v6"); a("v_lshl_add_u32 v7, v9, 4, v7")
    a("v_and_b32 v16, 1, v5")
    a("v_lshl_add_u32 v17, v16, 1, v8"); a("v_lshl_add_u32 v17, v9, 2, v17")
    a("v_lshl_add_u32 v21, v9, 1, v16")
    a("v_and_b32 v22, 3, v1")
    a("v_lshlrev_b32 v23, 8, v7"); a("v_lshl_add_u32 v23, v22, 3, v23")
    for t in range(2):
        a(f"s_lshl_b32 s{S_T0}, s{S_W}, 1"); a(f"s_add_u32 s{S_T0}, s{S_T0}, {t}")
        a(f"v_xor_b32 v24, s{S_T0}, v17"); a(f"v_lshl_add_u32 v{18+t}, v24, 5, v23")
    a("v_lshlrev_b32 v23, 7, v7"); a("v_lshl_add_u32 v23, v22, 3, v23"); a("v_add_u32 v23, 32768, v23")
    a(f"v_xor_b32 v24, s{S_W}, v21"); a("v_lshl_add_u32 v20, v24, 5, v23")
    KTMP = 110
    for c in range(10):
        buf = QB[c & 3]
        inflight = min(3, 9 - c)
        a(f"s_waitcnt vmcnt({10*inflight})")
        a("s_barrier")
        for r in range(3): a(f"v_add_u32 v{25+r}, {buf}, v{18+r}")
        lgp = Cnt(a, "lgkmcnt", 15)
        for tile, areg, img in (('q0', 25, 0), ('q1', 26, 0), ('k0', 25, 16384), ('k1', 26, 16384), ('v', 27, 0)):
            for hi in range(2):
                for jq in range(2):
                    lo = 4*hi + 2*jq
                    if wfrag(tile, c) is None: dst = f"v[{KTMP+8*(c-4)+lo}:{KTMP+8*(c-4)+lo+1}]"
                    else: dst = wr(tile, c, lo, 2)
                    off = img + (hi*4096 + jq*256 if tile == 'v' else hi*8192 + jq*512)
                    lgp.issue(0, f"ds_read_b64_tr_b16 {dst}, v{areg} offset:{off}")
        lgp.waitall()
        a("s_barrier")
        if c + 4 < 10: qkv_dma(buf)
    a(f"s_mul_i32 s{S_T0}, s{S_W}, 20480"); a("v_lshlrev_b32 v12, 4, v1"); a(f"v_add_u32 v12, s{S_T0}, v12")
    for tt in range(10):
        d = 30 + 8*tt
        a(f"ds_write_b128 v12, v[{d}:{d+3}] offset:{2048*tt}")
        a(f"ds_write_b128 v12, v[{d+4}:{d+7}] offset:{2048*tt+1024}")
        if tt % 5 == 4: a("s_waitcnt lgkmcnt(0)")
    a(f"s_mul_i32 s{S_T0}, s{S_W}, 12288"); a(f"s_add_u32 s{S_T0}, s{S_T0}, {L_WS}")
    a("v_lshlrev_b32 v12, 4, v1"); a(f"v_add_u32 v12, s{S_T0}, v12")
    for k in range(6):
        a(f"ds_write_b128 v12, v[{KTMP+8*k}:{KTMP+8*k+3}] offset:{2048*k}")
        a(f"ds_write_b128 v12, v[{KTMP+8*k+4}:{KTMP+8*k+7}] offset:{2048*k+1024}")
    a("s_waitcnt lgkmcnt(0)")

def setup_regs(a):
    LN = 19
    a(f"v_mov_b32 v{LN}, v1")
    T = 56
    a(f"v_lshrrev_b32 v{T}, 4, v{LN}")
    a(f"v_and_b32 v{T+1}, 15, v{LN}")
    a(f"v_bfe_u32 v{T+2}, v{LN}, 2, 2")
    a(f"v_and_b32 v{T+3}, 3, v{LN}")
    G, N, R_, CC = T, T+1, T+2, T+3
    t0, t1, t2 = T+4, T+5, T+6
    a(f"v_and_b32 v{t0}, 2, v{LN}"); a(f"v_cmp_eq_u32 vcc, 0, v{t0}")
    a(f"v_mov_b32 v{t1}, 0xeeeeeeee"); a(f"v_mov_b32 v{t2}, 0x44444444")
    a(f"v_cndmask_b32 v{V_IDX}, v{t1}, v{t2}, vcc")
    a(f"v_lshlrev_b32 v{V_L16}, 4, v{LN}"); a(f"v_lshlrev_b32 v{V_L8}, 3, v{LN}")
    a(f"v_lshrrev_b32 v{t0}, 1, v{G}"); a(f"v_lshlrev_b32 v{t0}, 9, v{t0}")
    a(f"v_lshl_add_u32 v{t0}, v{CC}, 7, v{t0}")
    a(f"v_and_b32 v{t1}, 1, v{G}"); a(f"v_lshl_add_u32 v{t0}, v{t1}, 6, v{t0}")
    a(f"v_lshl_add_u32 v{t0}, v{R_}, 3, v{t0}"); a(f"v_add_u32 v{t0}, {L_IMG}, v{t0}")
    a(f"v_lshrrev_b32 v{t1}, 1, v{CC}")
    a(f"v_lshl_add_u32 v{V_AT0}, v{t1}, 5, v{t0}")
    a(f"v_xor_b32 v{t1}, 1, v{t1}"); a(f"v_lshl_add_u32 v{V_AT1}, v{t1}, 5, v{t0}")
    a(f"s_lshl_b32 s{S_T0}, s{S_W}, 5"); a(f"v_add_u32 v{t0}, s{S_T0}, v{N}")
    a(f"v_lshrrev_b32 v{t1}, 2, v{t0}"); a(f"v_lshrrev_b32 v{t2}, 1, v{G}"); a(f"v_add_u32 v{t1}, v{t1}, v{t2}")
    a(f"v_lshlrev_b32 v{t0}, 5, v{t0}"); a(f"v_and_b32 v{t2}, 1, v{G}"); a(f"v_lshl_add_u32 v{t0}, v{t2}, 2, v{t0}"); a(f"v_add_u32 v{t0}, {L_XIM}, v{t0}")
    a(f"v_and_b32 v{t2}, 3, v{t1}"); a(f"v_lshl_add_u32 v{V_XWQ}, v{t2}, 3, v{t0}")
    a(f"v_add_u32 v{t1}, 2, v{t1}"); a(f"v_and_b32 v{t2}, 3, v{t1}"); a(f"v_lshl_add_u32 v{V_XWK}, v{t2}, 3, v{t0}")
    a(f"v_lshl_add_u32 v{t0}, v{G}, 2, v{R_}"); a(f"v_lshlrev_b32 v{t0}, 5, v{t0}")
    a(f"v_add_u32 v{t1}, v{CC}, v{G}"); a(f"v_and_b32 v{t1}, 3, v{t1}"); a(f"v_lshl_add_u32 v{t0}, v{t1}, 3, v{t0}")
    a(f"v_add_u32 v{V_XR}, {L_XIM}, v{t0}")
    a(f"v_add_u32 v{V_KT}, {L_KTB}, v{V_L16}")
    a(f"s_mul_i32 s{S_T0}, s{S_W}, 20480"); a(f"v_add_u32 v{V_WO}, s{S_T0}, v{V_L16}")
    a(f"s_mul_i32 s{S_T0}, s{S_W}, 12288"); a(f"s_add_u32 s{S_T0}, s{S_T0}, {L_WS}"); a(f"v_add_u32 v{V_WS}, s{S_T0}, v{V_L16}")
    a(f"s_lshl_b32 s{S_T0}, s{S_W}, 1"); a(f"v_lshrrev_b32 v{t0}, 1, v{G}"); a(f"v_add_u32 v{t0}, s{S_T0}, v{t0}")
    a(f"v_and_b32 v{t1}, 6, v{N}"); a(f"v_xor_b32 v{t0}, v{t0}, v{t1}"); a(f"v_lshlrev_b32 v{t0}, 4, v{t0}")
    a(f"v_and_b32 v{t1}, 7, v{N}"); a(f"v_lshl_add_u32 v{t0}, v{t1}, 7, v{t0}")
    a(f"v_and_b32 v{t1}, 1, v{G}"); a(f"v_lshl_add_u32 v{t0}, v{t1}, 3, v{t0}"); a(f"v_add_u32 v{V_OEW}, {L_OEX}, v{t0}")
    a(f"v_lshrrev_b32 v{t0}, 2, v{N}"); a(f"v_lshlrev_b32 v{t0}, 1, v{t0}"); a(f"v_and_b32 v{t1}, 1, v{N}"); a(f"v_add_u32 v{t0}, v{t0}, v{t1}")
    a(f"v_bfe_u32 v{t1}, v{N}, 1, 1"); a(f"v_lshl_add_u32 v{t1}, v{G}, 1, v{t1}")
    a(f"v_and_b32 v{t2}, 6, v{t0}"); a(f"v_xor_b32 v{t1}, v{t1}, v{t2}"); a(f"v_lshlrev_b32 v{t1}, 4, v{t1}")
    a(f"v_lshl_add_u32 v{t1}, v{t0}, 7, v{t1}"); a(f"v_add_u32 v{V_OER}, {L_OEX}, v{t1}")
    a(f"s_lshl_b32 s{S_T0}, s{S_W}, 8"); a(f"s_add_u32 s{S_T0}, s{S_T0}, {L_VEX}")
    a(f"v_lshlrev_b32 v{t0}, 4, v{N}"); a(f"v_add_u32 v{t0}, s{S_T0}, v{t0}")
    a(f"v_lshl_add_u32 v{V_VEW}, v{G}, 2, v{t0}")
    a(f"v_and_b32 v{t1}, 1, v{G}"); a(f"v_lshl_add_u32 v{V_VER}, v{t1}, 3, v{t0}")
    a(f"s_mul_i32 s{S_T0}, s{S_W}, 2560"); a(f"s_add_u32 s{S_T0}, s{S_T0}, {L_IMG}")
    a(f"v_lshrrev_b32 v{t0}, 5, v{LN}"); a(f"v_lshlrev_b32 v{t0}, 9, v{t0}")
    a(f"v_bfe_u32 v{t1}, v{LN}, 3, 2"); a(f"v_lshl_add_u32 v{t0}, v{t1}, 7, v{t0}")
    a(f"v_lshrrev_b32 v{t1}, 1, v{t1}"); a(f"v_lshlrev_b32 v{t1}, 5, v{t1}")
    a(f"v_and_b32 v{t2}, 7, v{LN}"); a(f"v_lshlrev_b32 v{t2}, 4, v{t2}"); a(f"v_xor_b32 v{t2}, v{t2}, v{t1}")
    a(f"v_add_u32 v{t0}, v{t0}, v{t2}"); a(f"v_add_u32 v{V_IW0}, s{S_T0}, v{t0}")
    a(f"v_lshrrev_b32 v{t1}, 1, v{G}"); a(f"v_lshlrev_b32 v{t1}, 5, v{t1}"); a(f"v_lshlrev_b32 v{t2}, 3, v{N}"); a(f"v_xor_b32 v{t2}, v{t2}, v{t1}")
    a(f"v_lshl_add_u32 v{t0}, v{G}, 7, v{t2}"); a(f"v_add_u32 v{V_IW2}, s{S_T0}, v{t0}")
    a(f"v_lshrrev_b32 v{t0}, 3, v{N}"); a(f"v_lshl_add_u32 v{t0}, v{G}, 1, v{t0}"); a(f"v_mul_u32_u24 v{t0}, 10240, v{t0}")
    a(f"v_and_b32 v{t1}, 7, v{N}"); a(f"v_lshl_add_u32 v{t0}, v{t1}, 4, v{t0}")
    a(f"s_min_u32 s{S_T0}, s{S_RID}, 79"); a(f"s_lshl_b32 s{S_T0}, s{S_T0}, 7"); a(f"v_add_u32 v{V_RL}, s{S_T0}, v{t0}")
    for r in range(4): a(f"v_mov_b32 v{V_ONES+r}, 0x3f803f80")
    for k in range(4):
        a(f"v_mov_b32 v{t0}, 0")
        a(f"v_cmp_eq_u32 vcc, {2*k}, v{N}"); a(f"v_mov_b32 v{t1}, 0x3f80"); a(f"v_cndmask_b32 v{t0}, v{t0}, v{t1}, vcc")
        a(f"v_cmp_eq_u32 vcc, {2*k+1}, v{N}"); a(f"v_mov_b32 v{t1}, 0x3f800000"); a(f"v_cndmask_b32 v{V_SEL+k}, v{t0}, v{t1}, vcc")
    a(f"v_cmp_gt_u32 vcc, 2, v{G}"); a(f"v_mov_b32 v{t1}, 0xff800000"); a(f"v_mov_b32 v{t0}, 0")
    for r in range(4): a(f"v_cndmask_b32 v{V_CNEG+r}, v{t0}, v{t1}, vcc")
    a(f"s_mov_b32 s{S_C}, 0x{f32bits(128**-0.5 * 1.4426950408889634):08x}"); a(f"s_mov_b32 s{S_C+1}, s{S_C}")
    a(f"s_mov_b32 s{S_LO}, 0x00003f80"); a(f"s_mov_b32 s{S_HI}, 0x3f800000")
    a(f"s_mov_b32 s{S_EXO}, 0x00ff00ff"); a(f"s_mov_b32 s{S_EXO+1}, 0x00ff00ff")

def load_mem0(a):
    LN = 19
    T = 56
    a(f"v_bfe_u32 v{T}, v{LN}, 4, 2"); a(f"v_and_b32 v{T+1}, 15, v{LN}")
    a(f"v_mul_u32_u24 v{T+2}, 2560, v{T}")
    a(f"s_lshl_b32 s{S_T0}, s{S_W}, 5"); a(f"v_add_u32 v{T+3}, s{S_T0}, v{T+1}"); a(f"v_lshl_add_u32 v{T+2}, v{T+3}, 1, v{T+2}")
    B = 64
    for i in range(5):
        for q, off in enumerate((0, 1280, 32, 1312)):
            a(f"global_load_ushort v{B+4*i+q}, v{T+2}, {sp(P_MEM0)} offset:{256*i+off}")
    a(f"v_lshrrev_b32 v{T+3}, 1, v{T}"); a(f"v_lshlrev_b32 v{T+3}, 5, v{T+3}"); a(f"v_lshlrev_b32 v{T+4}, 3, v{T+1}"); a(f"v_xor_b32 v{T+4}, v{T+4}, v{T+3}")
    a(f"v_lshl_add_u32 v{T+4}, v{T}, 7, v{T+4}"); a(f"s_lshl_b32 s{S_T0}, s{S_W}, 9"); a(f"s_add_u32 s{S_T0}, s{S_T0}, {L_IMG}"); a(f"v_add_u32 v{T+4}, s{S_T0}, v{T+4}")
    a("s_waitcnt vmcnt(0)")
    for i in range(5):
        a(f"v_lshl_or_b32 v{B+4*i}, v{B+4*i+1}, 16, v{B+4*i}")
        a(f"v_lshl_or_b32 v{B+4*i+1}, v{B+4*i+3}, 16, v{B+4*i+2}")
        a(f"ds_write_b64 v{T+4}, v[{B+4*i}:{B+4*i+1}] offset:{2048*i}")
    a("s_waitcnt lgkmcnt(0)")

def census(a):
    from gen import XA, XB
    a(f"s_mov_b32 s{S_SPIN}, 0")
    load_tickets(a, 56, 57, 19)
    a(f"v_mov_b32 v58, {DBG_RINIT}"); a("v_cmp_eq_u32 vcc, 12, v19"); a("v_cndmask_b32 v56, v56, v58, vcc")
    a.label("L_R_census")
    a(f"global_load_dword v57, v56, {sp(P_DBG)} sc1")
    a("s_waitcnt vmcnt(0)")
    sum_tickets(a, S_T0, S_T1, 57)
    a(f"v_readlane_b32 s{S_T1}, v57, 12"); a(f"v_readlane_b32 s{S_POL}, v57, 11")
    a(f"s_cmp_ge_u32 s{S_T1}, 64"); a(f"s_cselect_b32 s{S_T0}, s{S_T0}, 0")
    a(f"s_cmp_ge_u32 s{S_T0}, 256"); a(f"s_cselect_b32 s{S_T0}, s{S_POL}, 0")
    a(f"s_cmp_lg_u32 s{S_T0}, 0"); a("s_cbranch_scc1 L_R_census_ok")
    a("s_sleep 4")
    a(f"s_add_u32 s{S_SPIN}, s{S_SPIN}, 1"); a(f"s_cmp_lt_u32 s{S_SPIN}, {SPIN_MAX}"); a("s_cbranch_scc1 L_R_census")
    a("s_endpgm")
    a.label("L_R_census_ok")
    a(f"s_cmp_eq_u32 s{S_POL}, 2"); a(f"s_cselect_b32 s{S_POL}, 8192, 0")
    a(f"v_readlane_b32 s{S_T0}, v57, {XA}"); a(f"v_readlane_b32 s{S_T1}, v57, {XB}")
    a(f"s_min_u32 s{S_T0}, s{S_T0}, s{S_T1}")
    a(f"s_cmp_ge_u32 s{S_T0}, 32")
    a("s_cbranch_scc0 L_Rslow_start")
    a("s_branch L_Rfast_start")

WS_DUMMY = 8 * MB
V_FLG = 0
V_FV = 19
S_OFFP = 96
S_OFFX = 97
S_TAG = 99
S_M0KT = 98
S_FM = 100

def weave(a, mains, fillers, per=2):
    fi = 0
    for m in mains:
        m()
        k = 0
        while k < per and fi < len(fillers):
            f = fillers[fi]; fi += 1
            if f is None: break
            n = f()
            k += n if n else 1
    while fi < len(fillers):
        if fillers[fi] is not None: fillers[fi]()
        fi += 1

def body(a, opts, slow):
    P = "L_Rslow" if slow else "L_Rfast"
    LS = "sc1" if slow else ""
    D_RED = opts.get('d_red', 16); D_LOC = opts.get('d_loc', 12); D_REM = opts.get('d_rem', 0)
    stamps = opts.get('prof', False)
    prof = stamps or opts.get('cnt', False)
    PROF = [2, 26, 27, 23, 23, 23, 23, 23, 23] if not stamps else [2, 3, 4, 5, 6, 7, 23, 26, 27]; PRT = [20, 21, 22]
    fine = opts.get('fine', 0)
    def fstamp(i):
        if not fine: return
        a("s_memtime s[44:45]"); a("s_waitcnt lgkmcnt(0)")
        a("s_sub_u32 s45, s44, s33"); a(f"s_add_u32 s{PROF[i]}, s{PROF[i]}, s45")
        a("s_mov_b32 s33, s44")
    def stamp(i):
        if not stamps: return
        if fine and i is not None:
            i = {0: 8, 1: 8, 2: 8, 3: 8, 4: 8, 5: 8, 6: 8, 7: 8, 8: 8}[i]
        a("s_memtime s[44:45]"); a("s_waitcnt lgkmcnt(0)")
        if i is not None:
            a("s_sub_u32 s45, s44, s33"); a(f"s_add_u32 s{PROF[i]}, s{PROF[i]}, s45")
        a("s_mov_b32 s33, s44")
    I = lambda t: (lambda: a(t))
    RT = {'A': 86, 'B': 42, 'C': 22, 'D': 28, 'E': 6, 'F': 24, 'G': 20, 'H': None, 'I': 26, 'J': 2, 'K': 4}
    rt_on = opts.get('rt', 0)
    def rt(k):
        if rt_on and RT[k] is not None: a(f"s_memrealtime s[{RT[k]}:{RT[k]+1}]")
    B_PST, B_RL, B_PUBR, B_PUBL, B_GL, B_GR = 8, 10, 12, 14, 16, 18
    a.label(P + "_start")
    if prof:
        for r in PROF + PRT: a(f"s_mov_b32 s{r}, 0")
    a(f"s_mov_b32 s{S_STEP}, 0"); a(f"s_mov_b32 s{S_OFFP}, 0"); a(f"s_mov_b32 s{S_OFFX}, 0"); a(f"s_mov_b32 s{S_TAG}, 0")
    a(f"s_lshl_b32 s{S_T0}, s{S_H}, 13")
    sadd64(a, S_KT, P_WS, WS_KT); sadd64(a, S_KT, S_KT, f"s{S_T0}"); a(f"s_lshl_b32 s{S_T1}, s{S_W}, 11"); sadd64(a, S_KT, S_KT, f"s{S_T1}")
    sadd64(a, S_VT, P_WS, WS_VT); sadd64(a, S_VT, S_VT, f"s{S_T0}")
    a(f"s_lshl_b32 s{S_T1}, s{S_HF}, 2"); a(f"s_add_u32 s{S_T1}, s{S_T1}, s{S_W}"); a(f"s_lshl_b32 s{S_T2}, s{S_T1}, 10"); sadd64(a, S_VT, S_VT, f"s{S_T2}")
    a(f"s_lshl_b32 s{S_T0}, s{S_H}, 12")
    sadd64(a, S_XM, P_WS, WS_XM); sadd64(a, S_XM, S_XM, f"s{S_T0}")
    a(f"s_and_b32 s{S_XMW}, s{S_W}, 1"); a(f"s_lshl_b32 s{S_T3}, s{S_HF}, 1"); a(f"s_add_u32 s{S_XMW}, s{S_XMW}, s{S_T3}"); a(f"s_lshl_b32 s{S_XMW}, s{S_XMW}, 10")
    sadd64(a, S_XM, S_XM, f"s{S_XMW}")
    sadd64(a, S_VM, P_WS, WS_VM); sadd64(a, S_VM, S_VM, f"s{S_T0}"); a(f"s_lshl_b32 s{S_T2}, s{S_T1}, 9"); sadd64(a, S_VM, S_VM, f"s{S_T2}")
    a(f"s_lshl_b32 s{S_T0}, s{S_H}, 1"); a(f"s_add_u32 s{S_T0}, s{S_T0}, s{S_HF}"); a(f"s_lshl_b32 s{S_T0}, s{S_T0}, 6"); a(f"s_add_u32 s{S_T0}, s{S_T0}, {FM_OFF}")
    sadd64(a, S_FM, P_WS, f"s{S_T0}")
    a(f"v_lshrrev_b32 v56, 4, v{V_L16}")
    a(f"v_and_b32 v57, 3, v56"); a("v_lshlrev_b32 v57, 2, v57"); a("v_bfe_u32 v58, v56, 2, 1"); a(f"v_mul_u32_u24 v58, {FV_OFF}, v58"); a("v_add_u32 v57, v57, v58")
    a(f"s_lshl_b32 s{S_T0}, s{S_H}, 6"); a(f"v_add_u32 v{V_FV}, s{S_T0}, v57")
    a(f"s_mul_i32 s{S_T1}, s{S_PROD}, 10240"); a(f"s_mul_i32 s{S_T2}, s{S_W}, 2560"); a(f"s_add_u32 s{S_T1}, s{S_T1}, s{S_T2}")
    sadd64(a, B_PST, P_WS, WS_PART); sadd64(a, B_PST, B_PST, f"s{S_T1}")
    a(f"s_mul_i32 s{S_T1}, s{S_G}, {32*10240}"); a(f"s_add_u32 s{S_T1}, s{S_T1}, {WS_PART}")
    a(f"s_cmp_eq_u32 s{S_RACT}, 0"); a(f"s_cselect_b32 s{S_T1}, {WS_DUMMY}, s{S_T1}")
    sadd64(a, B_RL, P_WS, f"s{S_T1}")
    a(f"s_min_u32 s{S_T3}, s{S_RID}, 79")
    a(f"s_mul_i32 s{S_T1}, s{S_G}, 10240"); a(f"s_lshl_b32 s{S_T2}, s{S_T3}, 7"); a(f"s_add_u32 s{S_T2}, s{S_T2}, s{S_T1}"); a(f"s_add_u32 s{S_T2}, s{S_T2}, {WS_XPL}")
    a(f"s_lshl_b32 s{S_T0}, s{S_T3}, 7")
    a(f"s_sub_u32 s{S_T1}, s{S_T0}, {60*128}"); a(f"s_add_u32 s{S_T1}, s{S_T1}, 16384")
    a(f"s_cmp_ge_u32 s{S_T3}, 60"); a(f"s_cselect_b32 s{S_T0}, s{S_T1}, s{S_T0}")
    a(f"s_lshl_b32 s{S_T1}, s{S_G}, 15"); a(f"s_add_u32 s{S_T0}, s{S_T0}, s{S_T1}"); a(f"s_add_u32 s{S_T0}, s{S_T0}, s{S_POL}"); a(f"s_add_u32 s{S_T0}, s{S_T0}, {WS_XPR}")
    a(f"s_lshl_b32 s{S_T3}, s{S_PROD}, 8"); a(f"s_add_u32 s{S_T3}, s{S_T3}, {WS_DUMMY + 2*MB}")
    a(f"s_cmp_eq_u32 s{S_RACT}, 0"); a(f"s_cselect_b32 s{S_T0}, s{S_T3}, s{S_T0}"); a(f"s_cselect_b32 s{S_T2}, s{S_T3}, s{S_T2}")
    sadd64(a, B_PUBR, P_WS, f"s{S_T0}"); sadd64(a, B_PUBL, P_WS, f"s{S_T2}")
    a(f"s_mul_i32 s{S_T1}, s{S_G}, 10240"); a(f"s_mul_i32 s{S_T3}, s{S_W}, 2560"); a(f"s_add_u32 s{S_T0}, s{S_T1}, s{S_T3}"); a(f"s_add_u32 s{S_T0}, s{S_T0}, {WS_XPL}")
    sadd64(a, B_GL, P_WS, f"s{S_T0}")
    a(f"s_cmp_eq_u32 s{S_W}, 3"); a(f"s_cselect_b32 s{S_T3}, 16384, s{S_T3}")
    a(f"s_xor_b32 s{S_T1}, s{S_G}, 1"); a(f"s_lshl_b32 s{S_T1}, s{S_T1}, 15"); a(f"s_add_u32 s{S_T0}, s{S_T1}, s{S_T3}"); a(f"s_add_u32 s{S_T0}, s{S_T0}, s{S_POL}"); a(f"s_add_u32 s{S_T0}, s{S_T0}, {WS_XPR}")
    sadd64(a, B_GR, P_WS, f"s{S_T0}")
    a(f"s_mov_b32 s{S_OFFR}, 0")
    a("s_mov_b32 s24, -1"); a("s_mov_b32 s25, 0")
    a(f"s_lshl_b32 s{S_T0}, s{S_G}, 7"); a(f"s_add_u32 s{S_T0}, s{S_T0}, {HINT_OFF}"); sadd64(a, S_HW, P_WS, f"s{S_T0}")
    a(f"s_xor_b32 s{S_T0}, s{S_G}, 1"); a(f"s_lshl_b32 s{S_T0}, s{S_T0}, 7"); a(f"s_add_u32 s{S_T0}, s{S_T0}, {HINT_OFF}"); sadd64(a, S_HR, P_WS, f"s{S_T0}")
    a(f"s_mov_b32 s{S_XMN}, s{S_XM}"); a(f"s_mov_b32 s{S_XMN+1}, s{S_XM+1}"); a(f"s_mov_b32 s{S_VMN}, s{S_VM}"); a(f"s_mov_b32 s{S_VMN+1}, s{S_VM+1}")
    a(f"s_lshl_b32 s{S_T0}, s{S_PROD}, 2"); a(f"s_add_u32 s{S_T0}, s{S_T0}, s{S_W}"); a(f"s_lshl_b32 s{S_T0}, s{S_T0}, 10"); a(f"s_add_u32 s{S_T0}, s{S_T0}, {WS_DUMMY}")
    sadd64(a, S_XM, P_WS, f"s{S_T0}"); sadd64(a, S_VM, P_WS, f"s{S_T0}")
    a(f"s_lshl_b32 s{S_WBIT}, 1, s{S_W}")
    a(f"v_mov_b32 v{XF+14}, 0")
    def flags_load(): a(f"global_load_dword v{V_FLG}, v{V_FV}, {sp(P_WS)} sc1")
    def flags_spin(need, ret):
        stub = a.newlabel(P + "_fs")
        def fn():
            a.label(stub)
            a(f"s_mov_b32 s{S_SPIN}, 0")
            a.label(stub + "_l")
            flags_load()
            a("s_waitcnt vmcnt(0)")
            a(f"v_cmp_gt_u32 vcc, s{need}, v{V_FLG}")
            a(f"s_cbranch_vccz {ret}")
            a("s_sleep 2")
            a(f"s_add_u32 s{S_SPIN}, s{S_SPIN}, 1"); a(f"s_cmp_lt_u32 s{S_SPIN}, {SPIN_MAX}"); a(f"s_cbranch_scc1 {stub}_l")
            a("s_endpgm")
        a.defer(fn)
        return stub
    def part_bases():
        sadd64(a, S_PST, B_PST, f"s{S_OFFP}")
        sadd64(a, S_RL, B_RL, f"s{S_OFFP}")
        for t in range(1, 4): sadd64(a, S_RL+2*t, S_RL+2*t-2, 81920)
    a(f"s_mov_b32 s{S_NEED}, 1")
    pr = a.newlabel(P + "_prime")
    a(f"s_branch {flags_spin(S_NEED, pr)}")
    a.label(pr)
    a(f"s_lshl_b32 s{S_T0}, s{S_W}, 11"); a(f"s_add_u32 m0, s{S_T0}, {L_KTB}"); a(f"s_add_u32 s{S_M0KT}, s{S_T0}, {L_KTB + 8192}")
    a(f"global_load_lds_dwordx4 v{V_L16}, {sp(S_KT)} sc1")
    a(f"global_load_lds_dwordx4 v{V_L16}, {sp(S_KT)} offset:1024 sc1")
    sadd64(a, S_KT, S_KT, 32*8192)
    a(f"s_mov_b32 s{S_NEED}, 2")
    part_bases()
    for r in range(0, 20, 2): a(f"v_mov_b64 v[{ACC+r}:{ACC+r+1}], 0")
    a("s_waitcnt vmcnt(0)")
    a("s_barrier")
    stamp(None)
    rt_stamp(a, 3, 140, opts.get('tl', 0))
    a.label(P + "_loop")
    if opts.get('tl', 0):
        for st, ix in ((1, 4), (2, 5), (8, 6), (32, 7)):
            sk = a.newlabel("L_tl")
            a(f"s_cmp_eq_u32 s{S_STEP}, {st}"); a(f"s_cbranch_scc0 {sk}")
            rt_stamp(a, ix, 140, True)
            a.label(sk)
    if prof:
        sk = a.newlabel("L_pr")
        a(f"s_cmp_eq_u32 s{S_STEP}, 32"); a(f"s_cbranch_scc0 {sk}")
        for r in PROF + PRT: a(f"s_mov_b32 s{r}, 0")
        a.label(sk)
    if rt_on:
        rt('A'); a("s_waitcnt lgkmcnt(0)")
    lg = Cnt(a, "lgkmcnt", 15)
    def af_read(c, h):
        v = V_AT0 if h == 0 else V_AT1
        return lambda: lg.issue(('af', c), f"ds_read_b64_tr_b16 v[{AF+4*c+2*h}:{AF+4*c+2*h+1}], v{v} offset:{1024*c}")
    def ks_read(c, h):
        b = VS + 8*(c & 1) + 4*h
        return lambda: lg.issue(('ks', c), f"ds_read_b128 v[{b}:{b+3}], v{V_WS} offset:{2048*(c-4)+1024*h}")
    def kt_read(i):
        return lambda: lg.issue(('kt', i), f"ds_read_b128 v[{KT+4*i}:{KT+4*i+3}], v{V_KT} offset:{1024*i}")
    for c in range(4):
        af_read(c, 0)(); af_read(c, 1)()
    def smf(acc, c, w): a(f"v_smfmac_f32_16x16x64_bf16 v[{acc}:{acc+3}], v[{AF+4*c}:{AF+4*c+3}], {w}, v{V_IDX}")
    slot = {}
    seq = [af_read(4, 0), af_read(4, 1), ks_read(4, 0), ks_read(4, 1), af_read(5, 0), af_read(5, 1), ks_read(5, 0), ks_read(5, 1),
           af_read(6, 0), af_read(6, 1), af_read(7, 0), af_read(7, 1), kt_read(0), kt_read(1), af_read(8, 0), af_read(8, 1),
           af_read(9, 0), af_read(9, 1), kt_read(2), None,
           ks_read(6, 0), ks_read(6, 1), kt_read(3), None, ks_read(7, 0), ks_read(7, 1), kt_read(4), None,
           ks_read(8, 0), ks_read(8, 1), kt_read(5), None, ks_read(9, 0), ks_read(9, 1), kt_read(6), kt_read(7), None, None, None, None]
    XT = XF+8; VMC = XF+12; FMV = XF+14
    def x_vt(): a(f"global_load_dwordx4 v[{V_VT}:{V_VT+3}], v{V_L16}, {sp(S_VT)} sc1")
    def x_d0(): a(f"s_mov_b32 m0, s{S_M0KT}"); a(f"global_load_lds_dwordx4 v{V_L16}, {sp(S_KT)} sc1")
    def x_d1(): a(f"global_load_lds_dwordx4 v{V_L16}, {sp(S_KT)} offset:1024 sc1")
    def x_xm(): a(f"global_store_dwordx4 v{V_L16}, v[{XT}:{XT+3}], {sp(S_XM)} sc1")
    def x_vm(): a(f"global_store_dwordx2 v{V_L8}, v[{VMC}:{VMC+1}], {sp(S_VM)} sc1")
    def x_fm():
        a("s_mov_b64 exec, 1"); a(f"global_store_dword v{V_L8}, v{FMV}, {sp(S_FM)} sc1"); a("s_mov_b64 exec, -1")
        a(f"global_load_dword v{V_FLG}, v{V_FV}, {sp(P_WS)} sc1")
    extras = [x_vt, x_d0, x_d1, x_xm, x_vm, x_fm]
    X0 = opts.get('x0', 2)
    ops_per = [1, 1, 1, 1, 1, 2]
    nx22 = sum(n for e, n in enumerate(ops_per) if X0 + 4*e < 22)
    fret = a.newlabel(P + "_fret"); fstub = flags_spin(S_NEED, fret)
    KT_FIRST = 24
    seq = [af_read(4, 0), af_read(4, 1), ks_read(4, 0), ks_read(4, 1), af_read(5, 0), af_read(5, 1), ks_read(5, 0), ks_read(5, 1),
           af_read(6, 0), af_read(6, 1), af_read(7, 0), af_read(7, 1), af_read(8, 0), af_read(8, 1), af_read(9, 0), af_read(9, 1),
           None, None, None, None,
           ks_read(6, 0), ks_read(6, 1), kt_read(0), kt_read(1), ks_read(7, 0), ks_read(7, 1), kt_read(2), kt_read(3),
           ks_read(8, 0), ks_read(8, 1), kt_read(4), kt_read(5), ks_read(9, 0), ks_read(9, 1), kt_read(6), kt_read(7), None, None, None, None]
    k = 0
    for c in range(10):
        for t, tile in enumerate(('q0', 'q1', 'k0', 'k1')):
            if t == 0: lg.wait(('af', c))
            if tile == 'k1' and c >= 4:
                lg.wait(('ks', c)); b = VS + 8*(c & 1)
                smf(ACC+12, c, f"v[{b}:{b+7}]")
            else:
                smf(ACC+4*t, c, wr(tile, c))
            if k == 0:
                a(f"v_cmp_gt_u32 vcc, s{S_NEED}, v{V_FLG}")
            if k == 1:
                a(f"s_cbranch_vccnz {fstub}"); a.label(fret)
            if k == 22: a(f"s_waitcnt vmcnt({nx22})")
            if seq[k] is not None: seq[k]()
            if k >= X0 and (k - X0) % 4 == 0 and (k - X0) // 4 < len(extras):
                extras[(k - X0) // 4]()
            k += 1
    if fine == 1: lg.waitall(); fstamp(0)
    for t in range(4): a(f"v_pk_add_f32 v[{ACC+4*t}:{ACC+4*t+1}], v[{ACC+4*t}:{ACC+4*t+1}], v[{ACC+4*t+2}:{ACC+4*t+3}]")
    for t in range(4): a(f"v_cvt_pk_bf16_f32 v{ACC+4*t+2}, v{ACC+4*t}, v{ACC+4*t+1}")
    lg.issue('xw', f"ds_write2st64_b32 v{V_XWQ}, v{ACC+2}, v{ACC+6} offset0:0 offset1:2")
    lg.issue('xw', f"ds_write2st64_b32 v{V_XWK}, v{ACC+10}, v{ACC+14} offset0:0 offset1:2")
    for c in range(3): smf(ACC+16, c, wr('v', c))
    lg.waitall()
    if fine == 1: fstamp(1)
    a("s_barrier")
    stamp(0)
    for ks in range(4):
        lg.issue(('x', ks), f"ds_read_b64_tr_b16 v[{XF+4*ks}:{XF+4*ks+1}], v{V_XR} offset:{1024*ks}")
        lg.issue(('x', ks), f"ds_read_b64_tr_b16 v[{XF+4*ks+2}:{XF+4*ks+3}], v{V_XR} offset:{1024*ks+512}")
    SM, S0, S1 = ACC, ACC+4, ACC+8
    VACC = ACC+16; VM_ = ACC+12
    WOB = {0: AF, 1: AF+8, 2: AF+16, 3: AF+24, 4: AF+32, 5: VS, 6: VS+8, 7: XF+8, 8: ACC+4, 9: ACC+16}
    def wo_read(tt, h):
        b = WOB[tt] + 4*h
        return lambda: lg.issue(('wo', tt), f"ds_read_b128 v[{b}:{b+3}], v{V_WO} offset:{2048*tt+1024*h}")
    vfill = {3: wo_read(0, 0), 4: wo_read(0, 1), 5: wo_read(5, 0), 6: wo_read(5, 1), 7: wo_read(1, 0), 8: wo_read(1, 1), 9: wo_read(6, 0)}
    for c in range(3, 10):
        smf(ACC+16, c, wr('v', c)); vfill[c]()
    if fine == 1: lg.waitall(); fstamp(2)
    mains = []
    for ks in range(4):
        x = f"v[{XF+4*ks}:{XF+4*ks+3}]"
        def ma(ks=ks, x=x):
            lg.wait(('x', ks))
            cm = f"v[{V_CNEG}:{V_CNEG+3}]" if ks == 0 else f"v[{SM}:{SM+3}]"
            a(f"v_mfma_f32_16x16x32_bf16 v[{SM}:{SM+3}], {x}, {x}, {cm}")
        mains.append(ma)
        for kt, Sx in ((0, S0), (1, S1)):
            def mb(ks=ks, kt=kt, Sx=Sx, x=x):
                k = f"v[{KT+4*(2*ks+kt)}:{KT+4*(2*ks+kt)+3}]"
                cs = "0" if ks == 0 else f"v[{Sx}:{Sx+3}]"
                a(f"v_mfma_f32_16x16x32_bf16 v[{Sx}:{Sx+3}], {k}, {x}, {cs}")
            mains.append(mb)
    sfill = [[wo_read(6, 1)], [wo_read(2, 0)], [wo_read(2, 1)],
             [wo_read(3, 0), I(f"v_pk_add_f32 v[{VACC}:{VACC+1}], v[{VACC}:{VACC+1}], v[{VACC+2}:{VACC+3}]")],
             [wo_read(3, 1), I(f"v_cvt_pk_bf16_f32 v{VACC+2}, v{VACC}, v{VACC+1}")],
             [lambda: lg.issue('vw', f"ds_write_b32 v{V_VEW}, v{VACC+2}"), lambda: lg.issue('vm', f"ds_read_b64 v[{VM_}:{VM_+1}], v{V_VER}")],
             [wo_read(4, 0)], [wo_read(4, 1)], [], [], [], []]
    for m, fl in zip(mains, sfill):
        m()
        for f in fl: f()
    a("s_waitcnt vmcnt(6)")
    a(f"s_cmp_eq_u32 s{S_STEP}, {opts.get('last', 63)}"); a(f"s_cbranch_scc1 {P}_finish")
    if fine == 1: lg.waitall(); fstamp(3)
    MX = ACC+14; T1 = ACC+15
    a(f"v_max3_f32 v{MX}, v{SM}, v{SM+1}, v{SM+2}")
    a(f"v_max3_f32 v{T1}, v{SM+3}, v{S0}, v{S0+1}")
    a(f"v_max3_f32 v{MX}, v{MX}, v{S0+2}, v{S0+3}")
    a(f"v_max3_f32 v{T1}, v{T1}, v{S1}, v{S1+1}")
    a(f"v_max3_f32 v{MX}, v{MX}, v{S1+2}, v{S1+3}")
    a(f"v_max_f32 v{MX}, v{MX}, v{T1}")
    OUT = [KT+4*t for t in range(8)] + [XF, XF+4]
    zero = [I(f"v_mov_b64 v[{OUT[t]+2*h}:{OUT[t]+2*h+1}], 0") for t in range(10) for h in range(2)]
    a(f"v_mov_b32 v{T1}, v{MX}"); zero.pop(0)(); zero.pop(0)()
    a(f"v_permlane32_swap_b32 v{MX}, v{T1}")
    a(f"v_max_f32 v{MX}, v{MX}, v{T1}")
    a(f"v_mov_b32 v{T1}, v{MX}"); zero.pop(0)(); zero.pop(0)()
    a(f"v_permlane16_swap_b32 v{MX}, v{T1}")
    a(f"v_max_f32 v{MX}, v{MX}, v{T1}")
    a(f"v_mul_f32 v{MX}, s{S_C}, v{MX}")
    for r in range(0, 12, 2):
        a(f"v_pk_fma_f32 v[{ACC+r}:{ACC+r+1}], v[{ACC+r}:{ACC+r+1}], s[{S_C}:{S_C+1}], v[{MX}:{MX+1}] op_sel_hi:[1,1,0] neg_lo:[0,0,1] neg_hi:[0,0,1]")
    if fine == 1: fstamp(4)
    PT = VACC; PM = ACC+14
    for r in range(4, 12): a(f"v_exp_f32 v{ACC+r}, v{ACC+r}")
    a(f"v_exp_f32 v{SM}, v{SM}")
    a(f"v_cvt_pk_bf16_f32 v{PT}, v{S0}, v{S0+1}"); a(f"v_cvt_pk_bf16_f32 v{PT+1}, v{S0+2}, v{S0+3}")
    a(f"v_cvt_pk_bf16_f32 v{PT+2}, v{S1}, v{S1+1}"); a(f"v_cvt_pk_bf16_f32 v{PT+3}, v{S1+2}, v{S1+3}")
    a(f"v_exp_f32 v{SM+1}, v{SM+1}"); a(f"v_exp_f32 v{SM+2}, v{SM+2}")
    LL, OO = S0, S1
    a(f"v_mfma_f32_16x16x32_bf16 v[{LL}:{LL+3}], v[{V_ONES}:{V_ONES+3}], v[{PT}:{PT+3}], 0")
    a(f"v_exp_f32 v{SM+3}, v{SM+3}")
    a(f"v_mfma_f32_16x16x32_bf16 v[{OO}:{OO+3}], v[{V_VT}:{V_VT+3}], v[{PT}:{PT+3}], 0")
    a(f"v_cvt_pk_bf16_f32 v{PM}, v{SM}, v{SM+1}"); a(f"v_cvt_pk_bf16_f32 v{PM+1}, v{SM+2}, v{SM+3}")
    wo_read(7, 0)(); wo_read(7, 1)(); wo_read(9, 0)(); wo_read(9, 1)()
    lg.wait('vm')
    a(f"v_mfma_f32_16x16x16_bf16 v[{LL}:{LL+3}], v[{V_ONES}:{V_ONES+1}], v[{PM}:{PM+1}], v[{LL}:{LL+3}]")
    a(f"v_mfma_f32_16x16x16_bf16 v[{OO}:{OO+3}], v[{VM_}:{VM_+1}], v[{PM}:{PM+1}], v[{OO}:{OO+3}]")
    for _ in range(7): zero.pop(0)()
    if fine == 1: lg.waitall(); fstamp(5)
    a(f"v_rcp_f32 v{LL}, v{LL}")
    zero.pop(0)()
    a(f"v_pk_mul_f32 v[{OO}:{OO+1}], v[{OO}:{OO+1}], v[{LL}:{LL+1}] op_sel_hi:[1,0]")
    a(f"v_pk_mul_f32 v[{OO+2}:{OO+3}], v[{OO+2}:{OO+3}], v[{LL}:{LL+1}] op_sel_hi:[1,0]")
    a(f"v_cvt_pk_bf16_f32 v{OO}, v{OO}, v{OO+1}"); a(f"v_cvt_pk_bf16_f32 v{OO+1}, v{OO+2}, v{OO+3}")
    a(f"s_mov_b64 exec, {sp(S_EXO)}")
    lg.issue('ow', f"ds_write_b64 v{V_OEW}, v[{OO}:{OO+1}]")
    a("s_mov_b64 exec, -1")
    while zero: zero.pop(0)()
    lg.waitall()
    if fine == 1: fstamp(6)
    a("s_barrier")
    stamp(1)
    OA = ACC
    lg.issue('oa', f"ds_read_b128 v[{OA}:{OA+3}], v{V_OER}")
    wo_read(8, 0)(); wo_read(8, 1)()
    XT = XF+8
    lg.wait('oa')
    if fine == 1: lg.waitall(); fstamp(7)
    def osm(tt):
        b = WOB[tt]
        a(f"v_smfmac_f32_16x16x64_bf16 v[{OUT[tt]}:{OUT[tt]+3}], v[{OA}:{OA+3}], v[{b}:{b+7}], v{V_IDX}")
    DST = {0: OUT[0], 1: OUT[0]+2, 2: OUT[4], 3: OUT[4]+2, 4: OUT[8]}
    def post(t):
        o0, o1 = OUT[2*t], OUT[2*t+1]
        d = DST[t]
        L = [I(f"v_pk_add_f32 v[{o0}:{o0+1}], v[{o0}:{o0+1}], v[{o0+2}:{o0+3}]"),
             I(f"v_pk_add_f32 v[{o1}:{o1+1}], v[{o1}:{o1+1}], v[{o1+2}:{o1+3}]"),
             I(f"v_cvt_pk_bf16_f32 v{d}, v{o0}, v{o0+1}"),
             I(f"v_cvt_pk_bf16_f32 v{d+1}, v{o1}, v{o1+1}"),
             I(f"v_and_or_b32 v{d}, v{d}, -2, s{S_TAG}")]
        if t in (1, 3): L.append(I(f"global_store_dwordx4 v{V_L16}, v[{DST[t-1]}:{DST[t-1]+3}], {sp(S_PST)} offset:{1024*(t//2)} {LS}"))
        elif t == 4: L.append(I(f"global_store_dwordx2 v{V_L8}, v[{d}:{d+1}], {sp(S_PST)} offset:2048 {LS}"))
        return L
    p = [post(t) for t in range(5)]
    osm(0); osm(1); osm(2); osm(3); osm(4); osm(5); osm(6); osm(7)
    a(f"v_add_u32 v{XT+4}, s{S_XMW}, v{V_XR}")
    p[0][0](); osm(9); p[0][1]()
    lg.wait(('wo', 8)); osm(8)
    lg.issue('xt', f"ds_read_b64_tr_b16 v[{XT}:{XT+1}], v{XT+4}")
    lg.issue('xt', f"ds_read_b64_tr_b16 v[{XT+2}:{XT+3}], v{XT+4} offset:512")
    for f in p[0][2:]: f()
    for t in (1, 2, 3, 4):
        for f in p[t]: f()
    stamp(2)
    rt('B')
    for r, b, o in ((S_PUBR, B_PUBR, S_OFFR), (S_PUBL, B_PUBL, S_OFFX), (S_GL, B_GL, S_OFFX), (S_GR, B_GR, S_OFFR)): sadd64(a, r, b, f"s{o}")
    nored = a.newlabel(P + "_nored"); redj = a.newlabel(P + "_redj")
    a(f"s_cmp_eq_u32 s{S_RACT}, 0"); a(f"s_cbranch_scc1 {nored}")
    def fn_nored():
        a.label(nored)
        if not opts.get('hint', 0):
            a(f"s_branch {redj}"); return
        a(f"s_cmp_eq_u32 s{S_W}, 3"); a(f"s_cbranch_scc0 {redj}")
        a(f"s_add_u32 s{S_T0}, s{S_STEP}, 1")
        nw = a.newlabel(P + "_nohw")
        a(f"s_cmp_eq_u32 s{S_J}, {opts.get('hj', 0)}"); a(f"s_cbranch_scc0 {nw}")
        for _ in range(opts.get('d_hw', D_RED + 2)): a("s_nop 7")
        a("s_mov_b64 exec, 1")
        a(f"v_mov_b32 v{XF+2}, s{S_T0}")
        a(f"global_store_dword v{V_L8}, v{XF+2}, {sp(S_HW)} sc1")
        a("s_mov_b64 exec, -1")
        a.label(nw)
        a(f"s_mov_b32 s{S_SPIN}, 0")
        a("s_waitcnt lgkmcnt(0)")
        hl = a.newlabel(P + "_hl"); hd = a.newlabel(P + "_hd")
        a.label(hl)
        a(f"s_load_dword s{S_T1}, {sp(S_HR)}, 0x0 glc")
        a(f"s_add_u32 s{S_SPIN}, s{S_SPIN}, 1")
        a("s_waitcnt lgkmcnt(0)")
        a(f"s_cmp_ge_u32 s{S_T1}, s{S_T0}"); a(f"s_cbranch_scc1 {hd}")
        a(f"s_cmp_lt_u32 s{S_SPIN}, {SPIN_MAX}"); a(f"s_cbranch_scc1 {hl}")
        a("s_endpgm")
        a.label(hd)
        for _ in range(opts.get('d_hint', 0)): a("s_nop 7")
        a(f"s_branch {redj}")
    a.defer(fn_nored)
    for _ in range(D_RED): a("s_nop 7")
    RD = AF; RA = AF + 48; TM = AF + 52; PB = KT
    MSK = [S_T0, S_T2, S_PST, S_EXX]
    def r_load(t): a(f"global_load_dwordx4 v[{RD+4*t}:{RD+4*t+3}], v{V_RL}, {sp(S_RL+2*t)} sc1")
    rt('C')
    for t in range(4): r_load(t)
    for t in range(4):
        a(f"s_waitcnt vmcnt({3-t})")
        c = "0" if t == 0 else f"v[{RA}:{RA+3}]"
        a(f"v_mfma_f32_16x16x32_bf16 v[{RA}:{RA+3}], v[{V_SEL}:{V_SEL+3}], v[{RD+4*t}:{RD+4*t+3}], {c}")
        if t == 0: a(f"v_xor_b32 v{TM}, s{S_TAG}, v{RD}")
        else: a(f"v_bitop3_b32 v{TM}, v{TM}, v{RD+4*t}, s{S_TAG} bitop3:0xf6")
        a(f"v_bitop3_b32 v{TM}, v{TM}, v{RD+4*t+2}, s{S_TAG} bitop3:0xf6")
    a(f"v_and_b32 v{TM}, 1, v{TM}")
    a(f"v_cmp_ne_u32 vcc, 0, v{TM}")
    rs1 = a.newlabel(P + "_rs1"); rok = a.newlabel(P + "_rok")
    a(f"s_cbranch_vccnz {rs1}")
    a.label(rok)
    rt('D')
    def masked_poll(stub, nld, check_fn, load_fn, cnt_reg, depth):
        a(f"s_mov_b32 s{S_SPIN}, 0")
        a("s_or_b32 exec_lo, vcc_lo, 1"); a("s_mov_b32 exec_hi, vcc_hi")
        for _ in range(depth - 1):
            for t in range(nld): load_fn(t)
        a.label(stub + "_l")
        for t in range(nld): load_fn(t)
        if prof: a(f"s_add_u32 s{cnt_reg}, s{cnt_reg}, 1")
        a(f"s_add_u32 s{S_SPIN}, s{S_SPIN}, 1")
        a(f"s_waitcnt vmcnt({nld*(depth-1)})")
        check_fn()
        a(f"s_cbranch_vccz {stub}_ok")
        a("s_or_b32 exec_lo, vcc_lo, 1"); a("s_mov_b32 exec_hi, vcc_hi")
        a(f"s_cmp_lt_u32 s{S_SPIN}, {SPIN_MAX}"); a(f"s_cbranch_scc1 {stub}_l")
        a("s_endpgm")
        a.label(stub + "_ok")
        a("s_mov_b64 exec, -1")
    def r_check():
        a(f"v_xor_b32 v{TM}, s{S_TAG}, v{RD}")
        a(f"v_bitop3_b32 v{TM}, v{TM}, v{RD+2}, s{S_TAG} bitop3:0xf6")
        for t in range(1, 4):
            a(f"v_bitop3_b32 v{TM}, v{TM}, v{RD+4*t}, s{S_TAG} bitop3:0xf6")
            a(f"v_bitop3_b32 v{TM}, v{TM}, v{RD+4*t+2}, s{S_TAG} bitop3:0xf6")
        a(f"v_and_b32 v{TM}, 1, v{TM}")
        a(f"v_cmp_ne_u32 vcc, 0, v{TM}")
    def fn_rslow():
        a.label(rs1)
        masked_poll(rs1, 4, r_check, r_load, PRT[2], opts.get('dr', 1))
        for t in range(4):
            c = "0" if t == 0 else f"v[{RA}:{RA+3}]"
            a(f"v_mfma_f32_16x16x32_bf16 v[{RA}:{RA+3}], v[{V_SEL}:{V_SEL+3}], v[{RD+4*t}:{RD+4*t+3}], {c}")
        a("s_nop 7"); a(f"s_branch {rok}")
    a.defer(fn_rslow)
    for r in range(4): a(f"v_add_f32_dpp v{RA+r}, v{RA+r}, v{RA+r} row_ror:8 row_mask:0xf bank_mask:0xf")
    a(f"v_cvt_pk_bf16_f32 v{PB}, v{RA}, v{RA+1}"); a(f"v_cvt_pk_bf16_f32 v{PB+1}, v{RA+2}, v{RA+3}")
    a(f"v_permlane16_swap_b32 v{PB}, v{PB+2}"); a(f"v_permlane16_swap_b32 v{PB+1}, v{PB+3}")
    a(f"v_and_or_b32 v{PB}, v{PB}, -2, s{S_TAG}"); a(f"v_and_or_b32 v{PB+2}, v{PB+2}, -2, s{S_TAG}")
    a("s_mov_b64 exec, 0xff")
    a(f"global_store_dwordx4 v{V_L16}, v[{PB}:{PB+3}], {sp(S_PUBR)} sc1")
    a(f"global_store_dwordx4 v{V_L16}, v[{PB}:{PB+3}], {sp(S_PUBL)} {LS}")
    a("s_mov_b64 exec, -1")
    a.label(redj)
    rt('E')
    a("s_barrier")
    rt('F')
    stamp(3)
    lg.waitall()
    a(f"v_mov_b64 v[{VMC}:{VMC+1}], v[{VM_}:{VM_+1}]")
    a(f"v_mov_b32 v{FMV}, s{S_STEP}")
    for r in range(0, 20, 2): a(f"v_mov_b64 v[{ACC+r}:{ACC+r+1}], 0")
    for _ in range(D_LOC): a("s_nop 7")
    GLc = AF; GF = AF + 12; TMG = AF + 48
    GR = KT
    def g_load(base, sb):
        def f(t):
            if t == 0: a(f"global_load_dwordx4 v[{base}:{base+3}], v{V_L16}, {sp(sb)} sc1")
            elif t == 1: a(f"global_load_dwordx4 v[{base+4}:{base+7}], v{V_L16}, {sp(sb)} offset:1024 sc1")
            else: a(f"global_load_dwordx2 v[{base+8}:{base+9}], v{V_L8}, {sp(sb)} offset:2048 sc1")
        return f
    def chk(base):
        a(f"v_xor_b32 v{TMG}, s{S_TAG}, v{base}")
        a(f"v_bitop3_b32 v{TMG}, v{TMG}, v{base+4}, s{S_TAG} bitop3:0xf6")
        a(f"v_bitop3_b32 v{TMG}, v{TMG}, v{base+8}, s{S_TAG} bitop3:0xf6")
        a(f"v_and_b32 v{TMG}, 1, v{TMG}")
        a(f"v_cmp_ne_u32 vcc, 0, v{TMG}")
    GM = [S_T0, S_T2, S_EXX]
    def gmasks(base):
        def f():
            for t in range(3): a(f"v_xor_b32 v{TMG+t}, s{S_TAG}, v{base+4*t}")
            for t in range(3): a(f"v_and_b32 v{TMG+t}, 1, v{TMG+t}")
            for t in range(3): a(f"v_cmp_ne_u32 {sp(GM[t])}, 0, v{TMG+t}")
        return f
    rt('G')
    for t in range(3): g_load(GLc, S_GL)(t)
    for _ in range(D_REM): a("s_nop 7")
    rt('H')
    for t in range(3): g_load(GR, S_GR)(t)
    stamp(6)
    a(f"s_add_u32 s{S_STEP}, s{S_STEP}, 1")
    a(f"s_xor_b32 s{S_OFFP}, s{S_OFFP}, {64*10240}")
    a(f"s_xor_b32 s{S_OFFX}, s{S_OFFX}, 20480"); a(f"s_xor_b32 s{S_OFFR}, s{S_OFFR}, 65536")
    part_bases()
    a(f"s_and_b32 s{S_T0}, s{S_STEP}, 1"); a(f"s_lshl_b32 s{S_T0}, s{S_T0}, 13"); a(f"s_add_u32 s{S_T0}, s{S_T0}, {L_KTB}")
    a(f"v_add_u32 v{V_KT}, s{S_T0}, v{V_L16}")
    a(f"s_xor_b32 s{S_T0}, s{S_STEP}, 1"); a(f"s_and_b32 s{S_T0}, s{S_T0}, 1"); a(f"s_lshl_b32 s{S_T0}, s{S_T0}, 13"); a(f"s_add_u32 s{S_T0}, s{S_T0}, {L_KTB}")
    a(f"s_lshl_b32 s{S_T1}, s{S_W}, 11"); a(f"s_add_u32 s{S_M0KT}, s{S_T0}, s{S_T1}")
    a(f"s_cmp_lt_u32 s{S_STEP}, 63"); a(f"s_cselect_b32 s{S_T0}, {32*8192}, 0")
    sadd64(a, S_KT, S_KT, f"s{S_T0}")
    sadd64(a, S_VT, S_VT, 32*8192)
    a(f"s_add_u32 s{S_NEED}, s{S_STEP}, 2"); a(f"s_min_u32 s{S_NEED}, s{S_NEED}, 64")
    a(f"s_mov_b32 s{S_XM}, s{S_XMN}"); a(f"s_mov_b32 s{S_XM+1}, s{S_XMN+1}"); a(f"s_mov_b32 s{S_VM}, s{S_VMN}"); a(f"s_mov_b32 s{S_VM+1}, s{S_VMN+1}")
    sadd64(a, S_XMN, S_XMN, 32*4096); sadd64(a, S_VMN, S_VMN, 32*4096)
    a("s_waitcnt vmcnt(3)")
    lre = a.newlabel(P + "_lre"); lok = a.newlabel(P + "_lok")
    chk(GLc)
    a(f"s_cbranch_vccnz {lre}")
    a.label(lok)
    def fn_l():
        a.label(lre)
        masked_poll(lre, 3, lambda: chk(GLc), g_load(GLc, S_GL), PRT[0], 2)
        a("s_waitcnt vmcnt(0)")
        a(f"s_branch {lok}")
    a.defer(fn_l)
    rt('I')
    stamp(8)
    for i in range(10):
        a(f"v_lshlrev_b32 v{GF+2*i}, 16, v{GLc+i}"); a(f"v_and_b32 v{GF+2*i+1}, 0xffff0000, v{GLc+i}")
    a("s_waitcnt vmcnt(0)")
    chk(GR)
    gs1 = a.newlabel(P + "_gs1"); gok = a.newlabel(P + "_gok")
    a(f"s_cbranch_vccnz {gs1}")
    a.label(gok)
    def fn_gslow():
        a.label(gs1)
        masked_poll(gs1, 3, lambda: chk(GR), g_load(GR, S_GR), PRT[1], opts.get('dg', 2))
        a(f"s_branch {gok}")
    a.defer(fn_gslow)
    stamp(4)
    rt('J')
    def dots(i):
        a(f"v_dot2_f32_bf16 v{GF+2*i}, v{GR+i}, s{S_LO}, v{GF+2*i}")
        a(f"v_dot2_f32_bf16 v{GF+2*i+1}, v{GR+i}, s{S_HI}, v{GF+2*i+1}")
    def cv(i): a(f"v_cvt_pk_bf16_f32 v{GLc+i}, v{GF+2*i}, v{GF+2*i+1}")
    for i in range(4): dots(i)
    for t in range(5):
        cv(2*t); cv(2*t+1)
        a(f"ds_write_b64 v{V_IW2}, v[{GLc+2*t}:{GLc+2*t+1}] offset:{512*t}")
        for i in (2*t+4, 2*t+5):
            if i < 10: dots(i)
    rt('K')
    a(f"s_lshr_b32 s{S_TAG}, s{S_STEP}, 1"); a(f"s_and_b32 s{S_TAG}, s{S_TAG}, 1")
    a("s_waitcnt lgkmcnt(0)")
    a("s_barrier")
    stamp(5)
    a(f"s_branch {P}_loop")
    a.label(P + "_finish")
    if rt_on:
        a("s_waitcnt lgkmcnt(0)")
        a(f"s_lshl_b32 s44, s{S_PROD}, 2"); a(f"s_add_u32 s44, s44, s{S_W}"); a("s_lshl_b32 s44, s44, 6"); a(f"s_add_u32 s44, s44, {WS_PROF}")
        a("s_mov_b64 exec, 1")
        a(f"v_mov_b32 v{XF}, s44")
        for i, kk in enumerate("ABCDEFGHIJK"):
            a(f"v_mov_b32 v{XF+1}, s{RT[kk] if RT[kk] is not None else RT['G']}"); a(f"global_store_dword v{XF}, v{XF+1}, {sp(P_WS)} offset:{4*i}"); a("s_nop 1")
        a("s_mov_b64 exec, -1")
    rt_stamp(a, 2, 140, opts.get('tl', 0))
    if prof:
        a(f"s_lshl_b32 s44, s{S_PROD}, 2"); a(f"s_add_u32 s44, s44, s{S_W}"); a("s_lshl_b32 s44, s44, 6"); a(f"s_add_u32 s44, s44, {WS_PROF}")
        a("s_mov_b64 exec, 1")
        a(f"v_mov_b32 v{XF}, s44")
        for i, r in enumerate(PROF[:6] + PRT + PROF[6:]):
            a(f"v_mov_b32 v{XF+1}, s{r}"); a(f"global_store_dword v{XF}, v{XF+1}, {sp(P_WS)} offset:{4*i}"); a("s_nop 1")
        a("s_mov_b64 exec, -1")
    a("s_waitcnt lgkmcnt(0)")
    a(f"v_add_u32 v{AF+4}, s{S_XMW}, v{V_XR}")
    a(f"ds_read_b64_tr_b16 v[{AF}:{AF+1}], v{AF+4}")
    a(f"ds_read_b64_tr_b16 v[{AF+2}:{AF+3}], v{AF+4} offset:512")
    a("s_waitcnt lgkmcnt(0)")
    a(f"global_store_dwordx4 v{V_L16}, v[{AF}:{AF+3}], {sp(S_XMN)} sc1")
    a(f"global_store_dwordx2 v{V_L8}, v[{ACC+12}:{ACC+13}], {sp(S_VMN)} sc1")
    a("s_waitcnt vmcnt(0)")
    a("s_barrier")
    a(f"s_cmp_eq_u32 s{S_W}, 0"); a(f"s_cbranch_scc0 {P}_end")
    a("s_mov_b64 exec, 1")
    a(f"v_mov_b32 v{XF+2}, 64")
    a(f"global_store_dword v{V_L8}, v{XF+2}, {sp(S_FM)} sc1")
    a("s_waitcnt vmcnt(0)")
    rt_stamp(a, 8, 140, opts.get('tl', 0))
    a.label(P + "_end")
    a("s_endpgm")
    a.flush()
```

```python
import sys
from gen_common import *
from gen_init import gen_ln
from gen_proj import gen_proj

XA, XB = 0, 1

def gen_dispatch(a, roles, fake_xcc=None, tl=False):
    a("s_cmp_ge_u32 s2, 256")
    a("s_cbranch_scc1 L_exit")
    load_kernargs(a)
    a("v_lshrrev_b32 v1, 6, v0")
    a("v_readfirstlane_b32 s32, v1")
    if fake_xcc is None:
        a("s_getreg_b32 s36, hwreg(HW_REG_XCC_ID)")
        a("s_and_b32 s36, s36, 15")
    else:
        fake_xcc(a)
    a("s_waitcnt lgkmcnt(0)")
    a("s_cmp_eq_u32 s32, 0")
    a("s_cbranch_scc0 L_tk_wait")
    a("v_lshlrev_b32 v2, 2, v0"); a("s_lshl_b32 s37, s2, 8"); a("v_add_u32 v2, s37, v2"); a("v_mov_b32 v3, 0")
    a(f"global_store_dword v2, v3, {sp(P_WS)} sc1")
    a("s_and_b32 s37, s36, 3"); a("s_lshr_b32 s38, s36, 2"); a("s_lshl_b32 s38, s38, 5"); a("s_add_u32 s37, s37, s38")
    a("s_cmp_lt_u32 s36, 8"); a("s_cselect_b32 s37, s37, 10"); a("s_lshl_b32 s37, s37, 2")
    a("s_waitcnt vmcnt(0)")
    a("s_mov_b64 exec, 1")
    a("v_mov_b32 v2, 1")
    a("v_mov_b32 v3, s37")
    a(f"global_atomic_add v4, v3, v2, {sp(P_DBG)} sc0")
    a("s_waitcnt vmcnt(0)")
    a("v_readfirstlane_b32 s37, v4")
    a("s_cmp_lt_u32 s36, 8"); a("s_cselect_b32 s38, 1, 0")
    a("s_cmp_lt_u32 s37, 32"); a("s_cselect_b32 s39, 1, 0")
    a("s_and_b32 s38, s38, s39")
    a("s_cmp_eq_u32 s38, 1")
    a("s_cbranch_scc0 L_tk_float")
    a("s_lshl_b32 s33, s36, 5"); a("s_add_u32 s33, s33, s37")
    a("s_branch L_tk_have")
    a.label("L_tk_float")
    a("s_mov_b32 s38, 0")
    a("s_mov_b64 exec, -1")
    load_tickets(a, 6, 7, 0)
    a.label("L_tk_spin")
    a(f"global_load_dword v7, v6, {sp(P_DBG)} sc1")
    a("s_waitcnt vmcnt(0)")
    sum_tickets(a, 39, 40, 7)
    a("s_cmp_ge_u32 s39, 256"); a("s_cbranch_scc1 L_tk_all")
    a("s_sleep 8")
    a("s_add_u32 s38, s38, 1"); a("s_cmp_lt_u32 s38, 0x40000"); a("s_cbranch_scc1 L_tk_spin")
    a("s_endpgm")
    a.label("L_tk_all")
    a("s_mov_b64 exec, 1")
    a("v_mov_b32 v3, 36")
    a(f"global_atomic_add v4, v3, v2, {sp(P_DBG)} sc0")
    a("s_waitcnt vmcnt(0)")
    a("v_readfirstlane_b32 s37, v4")
    a("s_mov_b32 s33, 0x7fffffff")
    for x in range(8):
        nx = a.newlabel("L_tk_x")
        a(f"v_readlane_b32 s39, v7, {x}")
        a("s_min_u32 s39, s39, 32")
        a("s_sub_u32 s40, 32, s39")
        a("s_cmp_lt_u32 s37, s40"); a(f"s_cbranch_scc0 {nx}")
        a(f"s_add_u32 s33, s39, {32*x}"); a("s_add_u32 s33, s33, s37")
        a("s_branch L_tk_have")
        a.label(nx)
        a("s_sub_u32 s37, s37, s40")
    a.label("L_tk_have")
    a("v_mov_b32 v3, 0"); a("v_mov_b32 v4, s33")
    a("ds_write_b32 v3, v4")
    a("s_waitcnt lgkmcnt(0)")
    a("s_mov_b64 exec, -1")
    a.label("L_tk_wait")
    a("s_barrier")
    a("v_mov_b32 v3, 0")
    a("ds_read_b32 v4, v3")
    a("s_waitcnt lgkmcnt(0)")
    a("v_readfirstlane_b32 s33, v4")
    a("s_barrier")
    a("s_cmp_ge_u32 s33, 256"); a("s_cbranch_scc1 L_exit")
    if tl:
        a("s_mov_b32 s3, s33"); rt_stamp(a, 0, 250)
    a("s_lshr_b32 s35, s33, 5")
    a("s_and_b32 s34, s33, 31")
    table = {XA: 'RA', XB: 'RB'}
    rest = [x for x in range(8) if x not in (XA, XB)]
    for x, r in zip(rest, ['K', 'Q', 'V', 'F0', 'F1', 'F2']): table[x] = r
    def go(role):
        return f"s_branch L_{role}" if role in roles else "s_endpgm"
    for x in range(8):
        nx = a.newlabel("L_dx")
        a(f"s_cmp_eq_u32 s35, {x}"); a(f"s_cbranch_scc0 {nx}")
        r = table[x]
        if r in ('K', 'V', 'Q'): a(go(r))
        elif r == 'RA': a("s_mov_b32 s35, 0"); a(go('R'))
        elif r == 'RB': a("s_mov_b32 s35, 1"); a(go('R'))
        elif r in ('F0', 'F1', 'F2'):
            st = int(r[1]); n2 = a.newlabel("L_dh")
            a("s_cmp_lt_u32 s34, 20"); a(f"s_cbranch_scc0 {n2}")
            a(f"s_mov_b32 s35, {st}"); a(f"s_add_u32 s59, s34, {20*st}"); a("s_branch L_LN")
            a.label(n2)
            if st == 0:
                a("s_sub_u32 s34, s34, 20"); a(go('H'))
            elif st == 1:
                n3 = a.newlabel("L_da")
                a("s_cmp_lt_u32 s34, 22"); a(f"s_cbranch_scc0 {n3}")
                a("s_sub_u32 s34, s34, 8"); a(go('H'))
                a.label(n3)
                a("s_sub_u32 s34, s34, 22"); a(go('A'))
            else:
                a("s_sub_u32 s34, s34, 10")
                n4 = a.newlabel("L_dl")
                a("s_cmp_lt_u32 s34, 16"); a(f"s_cbranch_scc0 {n4}")
                a(go('A'))
                a.label(n4)
                a("s_add_u32 s59, s34, 44")
                a("s_cmp_lt_u32 s59, 64"); a("s_cbranch_scc1 L_LN")
                a("s_endpgm")
        a.label(nx)
    a.label("L_exit")
    a("s_endpgm")

def build(roles=('K', 'V', 'Q', 'H', 'R', 'A', 'F'), fake_xcc=None, opts=None):
    opts = opts or {}
    b = Asm()
    gen_dispatch(b, roles, fake_xcc, opts.get('tl', 0))
    gen_ln(b, opts.get('tl', 0))
    if 'F' not in roles:
        b.label("L_F_main"); b("s_endpgm")
    for k in ('K', 'V', 'Q', 'H'):
        if k in roles: gen_proj(b, k, opts)
    if 'R' in roles:
        from gen_r import gen_r
        gen_r(b, opts)
    if 'A' in roles:
        from gen_att import gen_att
        gen_att(b, opts)
    if 'F' in roles:
        from gen_fin import gen_fin
        gen_fin(b, opts)
    mega_lines = b.finish()
    hdr = open('cdna_kernels/' + NAME + '.s.ref').read().split('\n')
    top = []
    for l in hdr:
        if l.startswith('; @launch') or l.startswith('; Override') or l.startswith('; grid=ceil'): continue
        if not l.startswith(';'): break
        top.append(l)
    top.append("; @launch grid=(256,1,1) block=(256,1,1) lds=163840")
    KN = NAME + "_kernel"
    out = top + ['.amdgcn_target "amdgcn-amd-amdhsa--gfx950"', '.text']
    out += ['.globl ' + KN, '.p2align 8', f'.type {KN},@function', KN + ':'] + mega_lines
    out += ['.section .rodata,"a"', '.p2align 6', f'.amdhsa_kernel {KN}', '  .amdhsa_next_free_vgpr 512', '  .amdhsa_next_free_sgpr 102', '  .amdhsa_accum_offset 256',
            '  .amdhsa_group_segment_fixed_size 0', '  .amdhsa_kernarg_size 112', '  .amdhsa_user_sgpr_count 2',
            '  .amdhsa_user_sgpr_kernarg_segment_ptr 1', '  .amdhsa_system_sgpr_workgroup_id_x 1', '.end_amdhsa_kernel']
    print(f"; max {b.maxreg} nops {b.nops_inserted} lines {len(out)}", file=sys.stderr)
    return '\n'.join(out) + '\n'

if __name__ == '__main__':
    roles = sys.argv[2].split(',') if len(sys.argv) > 2 else ['K', 'V', 'Q', 'H', 'R', 'A', 'F']
    opts = {}
    for kv in sys.argv[3:]:
        k, v = kv.split('='); opts[k] = int(v)
    src = build(roles, opts=opts)
    open(sys.argv[1], 'w').write(src)
```

```python
from gen_common import *
from gen_init import f32bits
SPIN_MAX = 0x40000

def gen_att(a, opts={}):
    tl = opts.get('tl', 0)
    KR, QR, VR, XR, MR = 32, 64, 96, 128, 144
    SM0, SM1, S00, S01, S11 = 160, 164, 168, 172, 176
    OA = 180
    LA = 244
    ONES, CNEG, CTRI = 8, 12, 16
    L16, L8, FV, FOA = 1, 2, 3, 4
    T = 20
    S_S, S_NEED, S_SPIN, S_C = 36, 37, 38, 40
    S_K, S_Q, S_V, S_X, S_M, S_O = 44, 46, 48, 50, 52, 54
    a.label("L_A")
    a("s_lshl_b32 s34, s34, 2"); a("s_add_u32 s34, s34, s32"); a("s_lshr_b32 s56, s34, 5"); a("s_and_b32 s34, s34, 31")
    wait_init(a, "A", 6, sleep=32)
    a("v_and_b32 v5, 63, v0")
    a(f"v_lshlrev_b32 v{L16}, 4, v5"); a(f"v_lshlrev_b32 v{L8}, 3, v5")
    a(f"v_and_b32 v{T}, 15, v5"); a(f"v_lshrrev_b32 v{T+1}, 2, v{T}"); a(f"v_and_b32 v{T+2}, 3, v{T}")
    a(f"v_lshlrev_b32 v{T+3}, 12, v{T+1}"); a(f"v_lshl_add_u32 v{T+3}, v{T+2}, 2, v{T+3}")
    a("s_lshl_b32 s35, s34, 6"); a(f"v_add_u32 v{T+3}, s35, v{T+3}")
    a(f"v_and_b32 v{T+4}, 1, v{T}"); a(f"v_lshlrev_b32 v{T+4}, 6, v{T+4}"); a("s_lshl_b32 s35, s34, 7"); a(f"s_add_u32 s35, s35, {FM_OFF}"); a(f"v_add_u32 v{T+4}, s35, v{T+4}")
    a(f"v_cmp_gt_u32 vcc, 3, v{T+1}")
    a(f"v_cndmask_b32 v{FV}, v{T+4}, v{T+3}, vcc")
    a(f"v_cmp_le_u32 s[42:43], 3, v{T+1}")
    for r in range(4): a(f"v_mov_b32 v{ONES+r}, 0x3f803f80")
    a(f"v_lshrrev_b32 v{T}, 4, v5"); a(f"v_and_b32 v{T+1}, 15, v5")
    a(f"v_mov_b32 v{T+2}, 0xff800000"); a(f"v_mov_b32 v{T+3}, 0")
    a(f"v_cmp_gt_u32 vcc, 2, v{T}")
    for r in range(4): a(f"v_cndmask_b32 v{CNEG+r}, v{T+3}, v{T+2}, vcc")
    for r in range(4):
        a(f"v_lshl_add_u32 v{T+4}, v{T}, 2, {r}"); a(f"v_cmp_gt_u32 vcc, v{T+4}, v{T+1}")
        a(f"v_cndmask_b32 v{CTRI+r}, v{T+3}, v{T+2}, vcc")
    a(f"s_mov_b32 s{S_C}, 0x{f32bits(128**-0.5 * 1.4426950408889634):08x}"); a(f"s_mov_b32 s{S_C+1}, s{S_C}")
    a(f"s_mov_b32 s{S_S}, s56")
    a("s_mov_b32 s60, 0")
    a("s_mov_b32 s61, 0")
    a(f"v_add_u32 v6, 4096, v{L16}")
    def kqv_bases(sseg):
        a(f"s_lshl_b32 s35, s{sseg}, 5"); a("s_add_u32 s35, s35, s34"); a("s_lshl_b32 s39, s35, 13")
        for r, o in ((S_K, WS_KT), (S_Q, WS_QT), (S_V, WS_VT)):
            sadd64(a, r, P_WS, o); sadd64(a, r, r, "s39")
    def ld8(base, sreg):
        for i in range(8):
            a(f"global_load_dwordx4 v[{base+4*i}:{base+4*i+3}], v{L16 if i < 4 else 6}, {sp(sreg)} offset:{1024*(i&3)} sc1")
    a.label("L_A_loop")
    a(f"s_lshl_b32 s35, s{S_S}, 5"); a("s_add_u32 s35, s35, s34")
    a("s_lshl_b32 s39, s35, 13")
    sadd64(a, S_O, P_WS, WS_OT); sadd64(a, S_O, S_O, "s39")
    a("s_lshl_b32 s39, s35, 12")
    for r, o in ((S_X, WS_XM), (S_M, WS_VM)):
        sadd64(a, r, P_WS, o); sadd64(a, r, r, "s39")
    a(f"s_add_u32 s{S_NEED}, s{S_S}, 1")
    a(f"s_and_b32 s35, s{S_S}, 3"); a("s_lshl_b32 s35, s35, 5"); a("s_add_u32 s35, s35, s34"); a("s_lshl_b32 s35, s35, 6"); a(f"s_add_u32 s35, s35, {FO_OFF}"); a(f"v_mov_b32 v{FOA}, s35")
    def wait_flags(tag, fm):
        lp = f"L_A_w{tag}"
        a(f"s_mov_b32 s{S_SPIN}, 0")
        a.label(lp)
        a(f"global_load_dword v{T}, v{FV}, {sp(P_WS)} sc1")
        a("s_waitcnt vmcnt(0)")
        a(f"v_cmp_gt_u32 vcc, s{S_NEED}, v{T}")
        if not fm: a("s_andn2_b64 vcc, vcc, s[42:43]")
        a.retry(lp, S_SPIN, SPIN_MAX, sleep=4 if not fm else opts.get('fmsleep', 1))
    a("s_cmp_eq_u32 s60, 1"); a("s_cbranch_scc1 L_A_pref")
    wait_flags("a", False)
    kqv_bases(S_S)
    ld8(KR, S_K); ld8(QR, S_Q); ld8(VR, S_V)
    a.label("L_A_pref")
    a("s_waitcnt vmcnt(8)")
    for ks in range(4):
        for (Sx, kt, qt) in ((S00, 0, 0), (S01, 0, 1), (S11, 1, 1)):
            c = (f"v[{CTRI}:{CTRI+3}]" if kt == qt else "0") if ks == 0 else f"v[{Sx}:{Sx+3}]"
            a(f"v_mfma_f32_16x16x32_bf16 v[{Sx}:{Sx+3}], v[{KR+4*(2*ks+kt)}:{KR+4*(2*ks+kt)+3}], v[{QR+4*(2*ks+qt)}:{QR+4*(2*ks+qt)+3}], {c}")
    wait_flags("b", True)
    a(f"v_cmp_gt_u32 vcc, 64, v{T}"); a("s_andn2_b64 vcc, vcc, s[42:43]"); a("s_cmp_eq_u64 vcc, 0"); a("s_cselect_b32 s61, 1, 0")
    def st63(i):
        if not tl: return
        sk = a.newlabel("L_t63")
        a(f"s_cmp_eq_u32 s{S_S}, 63"); a(f"s_cbranch_scc0 {sk}")
        rt_stamp(a, i, 24, True)
        a.label(sk)
    st63(3)
    for i in range(4): a(f"global_load_dwordx4 v[{XR+4*i}:{XR+4*i+3}], v{L16}, {sp(S_X)} offset:{1024*i} sc1")
    for i in range(8): a(f"global_load_dwordx2 v[{MR+2*i}:{MR+2*i+1}], v{L8}, {sp(S_M)} offset:{512*i} sc1")
    a("s_waitcnt vmcnt(8)")
    for ks in range(4):
        for (Sx, qt) in ((SM0, 0), (SM1, 1)):
            c = f"v[{CNEG}:{CNEG+3}]" if ks == 0 else f"v[{Sx}:{Sx+3}]"
            a(f"v_mfma_f32_16x16x32_bf16 v[{Sx}:{Sx+3}], v[{XR+4*ks}:{XR+4*ks+3}], v[{QR+4*(2*ks+qt)}:{QR+4*(2*ks+qt)+3}], {c}")
    PT = [KR, KR+4]; PM = [KR+8, KR+10]
    def softmax(tiles, mx, t1):
        vals = [t + r for t in tiles for r in range(4)]
        a(f"v_max3_f32 v{mx}, v{vals[0]}, v{vals[1]}, v{vals[2]}")
        i = 3
        while i < len(vals):
            if i + 1 < len(vals): a(f"v_max3_f32 v{mx}, v{mx}, v{vals[i]}, v{vals[i+1]}"); i += 2
            else: a(f"v_max_f32 v{mx}, v{mx}, v{vals[i]}"); i += 1
        a(f"v_mov_b32 v{t1}, v{mx}"); a(f"v_permlane32_swap_b32 v{mx}, v{t1}"); a(f"v_max_f32 v{mx}, v{mx}, v{t1}")
        a(f"v_mov_b32 v{t1}, v{mx}"); a(f"v_permlane16_swap_b32 v{mx}, v{t1}"); a(f"v_max_f32 v{mx}, v{mx}, v{t1}")
        a(f"v_mul_f32 v{mx}, s{S_C}, v{mx}")
        for v in vals: a(f"v_fma_f32 v{v}, v{v}, s{S_C}, -v{mx}")
        for v in vals: a(f"v_exp_f32 v{v}, v{v}")
    softmax([SM0, S00], T, T+1); softmax([SM1, S01, S11], T+2, T+3)
    a(f"v_cvt_pk_bf16_f32 v{PM[0]}, v{SM0}, v{SM0+1}"); a(f"v_cvt_pk_bf16_f32 v{PM[0]+1}, v{SM0+2}, v{SM0+3}")
    a(f"v_cvt_pk_bf16_f32 v{PM[1]}, v{SM1}, v{SM1+1}"); a(f"v_cvt_pk_bf16_f32 v{PM[1]+1}, v{SM1+2}, v{SM1+3}")
    a(f"v_cvt_pk_bf16_f32 v{PT[0]}, v{S00}, v{S00+1}"); a(f"v_cvt_pk_bf16_f32 v{PT[0]+1}, v{S00+2}, v{S00+3}")
    a(f"v_mov_b32 v{PT[0]+2}, 0"); a(f"v_mov_b32 v{PT[0]+3}, 0")
    a(f"v_cvt_pk_bf16_f32 v{PT[1]}, v{S01}, v{S01+1}"); a(f"v_cvt_pk_bf16_f32 v{PT[1]+1}, v{S01+2}, v{S01+3}")
    a(f"v_cvt_pk_bf16_f32 v{PT[1]+2}, v{S11}, v{S11+1}"); a(f"v_cvt_pk_bf16_f32 v{PT[1]+3}, v{S11+2}, v{S11+3}")
    a("s_waitcnt vmcnt(0)")
    for qt in range(2):
        a(f"v_mfma_f32_16x16x32_bf16 v[{LA+4*qt}:{LA+4*qt+3}], v[{ONES}:{ONES+3}], v[{PT[qt]}:{PT[qt]+3}], 0")
    for et in range(8):
        for qt in range(2):
            o = OA + 8*et + 4*qt
            a(f"v_mfma_f32_16x16x32_bf16 v[{o}:{o+3}], v[{VR+4*et}:{VR+4*et+3}], v[{PT[qt]}:{PT[qt]+3}], 0")
    for qt in range(2):
        a(f"v_mfma_f32_16x16x16_bf16 v[{LA+4*qt}:{LA+4*qt+3}], v[{ONES}:{ONES+1}], v[{PM[qt]}:{PM[qt]+1}], v[{LA+4*qt}:{LA+4*qt+3}]")
    for et in range(8):
        for qt in range(2):
            o = OA + 8*et + 4*qt
            a(f"v_mfma_f32_16x16x16_bf16 v[{o}:{o+3}], v[{MR+2*et}:{MR+2*et+1}], v[{PM[qt]}:{PM[qt]+1}], v[{o}:{o+3}]")
    a(f"v_rcp_f32 v{LA}, v{LA}"); a(f"v_rcp_f32 v{LA+4}, v{LA+4}")
    for et in range(8):
        R = OA + 8*et
        for qt in range(2):
            o = OA + 8*et + 4*qt; l = LA + 4*qt
            a(f"v_pk_mul_f32 v[{o}:{o+1}], v[{o}:{o+1}], v[{l}:{l+1}] op_sel_hi:[1,0]")
            a(f"v_pk_mul_f32 v[{o+2}:{o+3}], v[{o+2}:{o+3}], v[{l}:{l+1}] op_sel_hi:[1,0]")
            a(f"v_cvt_pk_bf16_f32 v{R+2*qt}, v{o}, v{o+1}"); a(f"v_cvt_pk_bf16_f32 v{R+2*qt+1}, v{o+2}, v{o+3}")
        a(f"v_permlane16_swap_b32 v{R}, v{R+2}"); a(f"v_permlane16_swap_b32 v{R+1}, v{R+3}")
        a(f"global_store_dwordx4 v{L16 if et < 4 else 6}, v[{R}:{R+3}], {sp(S_O)} offset:{1024*(et&3)} sc1")
    st63(4)
    a(f"s_add_u32 s62, s{S_S}, 2"); a("s_cmp_lt_u32 s62, 64"); a("s_cselect_b32 s60, s61, 0")
    a("s_cmp_eq_u32 s60, 1"); a("s_cbranch_scc0 L_A_nopf")
    kqv_bases(62)
    ld8(KR, S_K); ld8(QR, S_Q); ld8(VR, S_V)
    a("s_waitcnt vmcnt(24)")
    a("s_branch L_A_pfd")
    a.label("L_A_nopf")
    a("s_waitcnt vmcnt(0)")
    a.label("L_A_pfd")
    st63(5)
    a("s_mov_b64 exec, 1")
    a(f"v_mov_b32 v{T}, s{S_NEED}")
    a(f"global_store_dword v{FOA}, v{T}, {sp(P_WS)} sc1")
    a("s_mov_b64 exec, -1")
    a(f"s_add_u32 s{S_S}, s{S_S}, 2"); a(f"s_cmp_lt_u32 s{S_S}, 64"); a("s_cbranch_scc1 L_A_loop")
    a("s_waitcnt vmcnt(0)")
    rt_stamp(a, 2, 24, tl)
    a("s_endpgm")
    a.flush()
```

```python
from gen_common import *
from gen_init import f32bits
from gen_proj import flag_store

L_WO  = 0
L_WS  = 81920
L_IMG = 131072
L_KTB = 141312
L_XIM = 157696
L_OEX = 161792
L_VEX = 162816
L_STG = 81920

V_IDX, V_L16, V_L8, V_AT0, V_AT1, V_XWQ, V_XWK, V_XR, V_KT, V_WO, V_WS, V_OEW, V_OER, V_VEW, V_VER, V_IW0, V_IW2, V_RL = range(1, 19)
V_ONES = 20
V_SEL  = 24
V_CNEG = 28
ACC = 32
V_VT = 52
POOL = 56
AF = POOL; VS = POOL + 40; KT = POOL + 56; XF = POOL + 88
WREG = 160

def wfrag(tile, c):
    order = []
    for cc in range(10):
        for t in ('q0', 'q1', 'k0'): order.append((t, cc))
    for cc in range(4): order.append(('k1', cc))
    for cc in range(10): order.append(('v', cc))
    if (tile, c) not in order: return None
    f = order.index((tile, c))
    return ('a', 8*f) if f < 32 else ('v', WREG + 8*(f - 32))
def wr(tile, c, lo=0, n=8):
    k, b = wfrag(tile, c)
    return f"{k}[{b+lo}:{b+lo+n-1}]"

S_W, S_J, S_G = 32, 34, 35
S_H, S_HF, S_PROD, S_RID, S_RACT, S_STEP = 36, 37, 38, 39, 40, 41
S_T0, S_T1, S_T2, S_T3 = 44, 45, 46, 47
S_PST = 48
S_RL  = 50
S_PUBR, S_PUBL = 58, 60
S_GL, S_GR = 62, 64
S_KT, S_VT, S_XM, S_VM = 66, 68, 70, 72
S_SPIN = 74
S_XMN, S_VMN = 76, 78
S_POI_OLD = 76
S_PXR, S_PXL = 84, 86
S_C = 88
S_LO, S_HI = 90, 91
S_EXO = 92
S_NEED = 94
S_XMW = 95
S_WBIT = 87
S_EXX = 84
S_HW, S_HR = 80, 82
S_POL = 86
S_OFFR = 85
S_DUM = 42

SPIN_MAX = 0x20000

def gen_r(a, opts):
    ROT[0] = opts.get('rot', 0)
    D_RED = opts.get('d_red', 5); D_LOC = opts.get('d_loc', 2); D_REM = opts.get('d_rem', 1)
    prof = opts.get('prof', False)
    a.label("L_R")
    a("v_and_b32 v1, 63, v0")
    a(f"s_lshr_b32 s{S_T0}, s{S_J}, 1"); a(f"s_lshl_b32 s{S_H}, s{S_G}, 4"); a(f"s_add_u32 s{S_H}, s{S_H}, s{S_T0}")
    a(f"s_and_b32 s{S_HF}, s{S_J}, 1")
    a(f"s_lshl_b32 s{S_PROD}, s{S_G}, 5"); a(f"s_add_u32 s{S_PROD}, s{S_PROD}, s{S_J}")
    a(f"s_lshl_b32 s{S_RID}, s{S_W}, 5"); a(f"s_add_u32 s{S_RID}, s{S_RID}, s{S_J}")
    a(f"s_cmp_lt_u32 s{S_RID}, 80"); a(f"s_cselect_b32 s{S_RACT}, 1, 0")
    init_handoff(a)
    prologue_weights(a)
    setup_regs(a)
    load_mem0(a)
    rt_stamp(a, 1, 140, opts.get('tl', 0))
    census(a)
    body(a, opts, slow=False)
    body(a, opts, slow=True)

def init_handoff(a):
    for r in range(4, 8): a(f"v_mov_b32 v{r}, -1")
    a("v_lshlrev_b32 v2, 4, v0")
    a(f"s_mul_i32 s{S_T0}, s{S_PROD}, 10240")
    sadd64(a, 48, P_WS, WS_PART); sadd64(a, 48, 48, f"s{S_T0}")
    a("v_add_u32 v3, 4096, v2"); a("v_min_u32 v8, 2032, v2"); a("v_add_u32 v8, 8192, v8")
    for sl in range(2):
        for v in (2, 3, 8): a(f"global_store_dwordx4 v{v}, v[4:7], s[48:49] sc1")
        if sl == 0: sadd64(a, 48, 48, 64*10240)
    a(f"s_lshl_b32 s{S_T0}, s{S_G}, 15"); a(f"s_lshl_b32 s{S_T1}, s{S_J}, 10"); a(f"s_add_u32 s{S_T0}, s{S_T0}, s{S_T1}")
    a(f"s_and_b32 s{S_T1}, s{S_W}, 1"); a(f"s_lshl_b32 s{S_T1}, s{S_T1}, 16"); a(f"s_add_u32 s{S_T0}, s{S_T0}, s{S_T1}")
    sadd64(a, 48, P_WS, WS_XPR); sadd64(a, 48, 48, f"s{S_T0}")
    a("v_lshlrev_b32 v9, 4, v1")
    a("global_store_dwordx4 v9, v[4:7], s[48:49] sc1")
    a(f"s_mul_i32 s{S_T0}, s{S_G}, 10240"); a(f"s_mul_i32 s{S_T1}, s{S_J}, 320"); a(f"s_add_u32 s{S_T0}, s{S_T0}, s{S_T1}")
    a(f"s_and_b32 s{S_T1}, s{S_W}, 1"); a(f"s_mul_i32 s{S_T1}, s{S_T1}, 20480"); a(f"s_add_u32 s{S_T0}, s{S_T0}, s{S_T1}")
    sadd64(a, 48, P_WS, WS_XPL); sadd64(a, 48, 48, f"s{S_T0}")
    a("v_min_u32 v9, 304, v9")
    a("global_store_dwordx4 v9, v[4:7], s[48:49] sc1")

def prologue_weights(a):
    QB = [0, 40960, 81920, 122880]
    a(f"s_lshl_b32 s{S_T0}, s{S_H}, 8")
    sadd64(a, 50, P_WQ, f"s{S_T0}"); sadd64(a, 52, P_WK, f"s{S_T0}")
    a(f"s_lshl_b32 s{S_T1}, s{S_HF}, 7"); a(f"s_add_u32 s{S_T0}, s{S_T0}, s{S_T1}")
    sadd64(a, 54, P_WV, f"s{S_T0}")
    a("v_lshrrev_b32 v2, 4, v1"); a("v_and_b32 v3, 15, v1")
    a("v_lshrrev_b32 v4, 1, v3"); a("v_and_b32 v5, 1, v3")
    a("v_and_b32 v6, 1, v2")
    a(f"s_and_b32 s{S_T0}, s{S_W}, 1"); a(f"s_lshl_b32 s{S_T0}, s{S_T0}, 2")
    a(f"v_or_b32 v6, s{S_T0}, v6")
    a(f"s_lshl_b32 s{S_T1}, s{S_W}, 4")
    a(f"v_add_u32 v7, s{S_T1}, v2")
    for i in range(4):
        a(f"v_or_b32 v8, {(i & 1) << 1}, v6"); a("v_xor_b32 v8, v8, v4"); a("v_lshl_add_u32 v8, v8, 1, v5")
        a(f"v_add_u32 v9, {4*i}, v7"); a("v_lshlrev_b32 v9, 13, v9"); a(f"v_lshl_add_u32 v{10+i}, v8, 4, v9")
    a("v_lshrrev_b32 v2, 3, v1"); a("v_and_b32 v3, 7, v1")
    a("v_lshrrev_b32 v4, 1, v3"); a("v_and_b32 v5, 1, v3")
    a("v_bfe_u32 v6, v2, 2, 1")
    a(f"s_and_b32 s{S_T0}, s{S_W}, 1"); a(f"s_lshl_b32 s{S_T0}, s{S_T0}, 1"); a(f"v_or_b32 v6, s{S_T0}, v6")
    a("v_xor_b32 v6, v6, v4"); a("v_lshl_add_u32 v6, v6, 1, v5")
    for i in range(2):
        a(f"s_lshl_b32 s{S_T1}, s{S_W}, 4"); a(f"s_add_u32 s{S_T1}, s{S_T1}, {8*i}")
        a(f"v_add_u32 v9, s{S_T1}, v2"); a("v_lshlrev_b32 v9, 13, v9"); a(f"v_lshl_add_u32 v{14+i}, v6, 4, v9")
    def qkv_dma(buf):
        a(f"s_lshl_b32 s{S_T0}, s{S_W}, 12"); a(f"s_add_u32 s{S_T0}, s{S_T0}, {buf}")
        for i in range(4):
            a(f"s_add_u32 m0, s{S_T0}, {1024*i}"); a(f"global_load_lds_dwordx4 v{10+i}, s[50:51]")
        for i in range(4):
            a(f"s_add_u32 m0, s{S_T0}, {16384 + 1024*i}"); a(f"global_load_lds_dwordx4 v{10+i}, s[52:53]")
        a(f"s_lshl_b32 s{S_T0}, s{S_W}, 11"); a(f"s_add_u32 s{S_T0}, s{S_T0}, {buf + 32768}")
        for i in range(2):
            a(f"s_add_u32 m0, s{S_T0}, {1024*i}"); a(f"global_load_lds_dwordx4 v{14+i}, s[54:55]")
        for p in (50, 52, 54): sadd64(a, p, p, 64*8192)
    a(f"s_lshl_b32 s{S_T0}, s{S_H}, 7"); a(f"s_lshl_b32 s{S_T1}, s{S_HF}, 6"); a(f"s_add_u32 s{S_T0}, s{S_T0}, s{S_T1}")
    a(f"s_mul_i32 s{S_T0}, s{S_T0}, 1280")
    sadd64(a, 48, P_WO, f"s{S_T0}")
    a(f"s_mul_i32 s{S_T2}, s{S_W}, 1280"); a(f"v_add_u32 v16, s{S_T2}, v1")
    a(f"s_mul_i32 s{S_T2}, s{S_W}, 20480"); a(f"s_add_u32 s{S_T2}, s{S_T2}, {L_STG}")
    a(f"s_mov_b32 s{S_T3}, 52429")
    for i in range(20):
        a(f"v_mul_lo_u32 v17, v16, s{S_T3}"); a("v_lshrrev_b32 v17, 22, v17")
        a("v_mul_u32_u24 v18, 80, v17"); a("v_sub_u32 v18, v16, v18")
        a("v_and_b32 v19, 1, v17"); a("v_bfe_u32 v20, v17, 2, 2"); a("v_lshl_add_u32 v19, v20, 1, v19")
        a("v_lshlrev_b32 v19, 1, v19"); a("v_xor_b32 v18, v18, v19")
        a("v_mul_u32_u24 v17, 1280, v17"); a("v_lshl_add_u32 v17, v18, 4, v17")
        a(f"s_add_u32 m0, s{S_T2}, {1024*i}")
        a("global_load_lds_dwordx4 v17, s[48:49]")
        a("v_add_u32 v16, 64, v16")
    qkv_dma(QB[0]); qkv_dma(QB[1])
    a("v_lshrrev_b32 v5, 4, v1")
    a("v_bfe_u32 v6, v1, 2, 2")
    a("v_lshrrev_b32 v7, 1, v5"); a("v_lshlrev_b32 v7, 4, v7")
    a("v_and_b32 v8, 1, v5"); a("v_lshl_add_u32 v7, v8, 2, v7")
    a("v_and_b32 v9, 1, v6"); a("v_add_u32 v7, v7, v9")
    a("v_lshrrev_b32 v16, 1, v6"); a("v_lshl_add_u32 v7, v16, 3, v7")
    a("v_mul_u32_u24 v7, 1280, v7")
    a("v_and_b32 v17, 3, v1"); a("v_lshl_add_u32 v7, v17, 3, v7"); a(f"v_add_u32 v7, {L_STG}, v7")
    a("v_lshl_add_u32 v9, v8, 1, v9"); a("v_lshl_add_u32 v9, v16, 2, v9")
    a("s_waitcnt vmcnt(20)")
    a("s_barrier")
    a(f"s_cmp_eq_u32 s{S_W}, 0"); a("s_cbranch_scc0 L_R_noid")
    init_done(a, 28, DBG_RINIT)
    a.label("L_R_noid")
    for tt in range(10):
        a(f"s_mul_i32 s{S_T0}, s{S_W}, 10"); a(f"s_add_u32 s{S_T0}, s{S_T0}, {tt}")
        a(f"s_and_b32 s{S_T1}, s{S_T0}, 7"); a(f"s_and_b32 s{S_T2}, s{S_T0}, 0xf8")
        a(f"v_xor_b32 v17, s{S_T1}, v9"); a(f"v_add_u32 v17, s{S_T2}, v17"); a("v_lshl_add_u32 v17, v17, 5, v7")
        d = 30 + 8*tt
        for hi in range(2):
            for jq in range(2):
                a(f"ds_read_b64_tr_b16 v[{d+4*hi+2*jq}:{d+4*hi+2*jq+1}], v17 offset:{40960*hi + 2560*jq}")
        if tt % 3 == 2: a("s_waitcnt lgkmcnt(0)")
    a("s_waitcnt lgkmcnt(0)")
    a("s_barrier")
    qkv_dma(QB[2]); qkv_dma(QB[3])
    a("v_lshrrev_b32 v5, 4, v1"); a("v_bfe_u32 v6, v1, 2, 2")
    a("v_lshlrev_b32 v7, 2, v5"); a("v_and_b32 v8, 1, v6"); a("v_add_u32 v7, v7, v8"); a("v_lshrrev_b32 v9, 1, v6"); a("v_lshl_add_u32 v7, v9, 4, v7")
    a("v_and_b32 v16, 1, v5")
    a("v_lshl_add_u32 v17, v16, 1, v8"); a("v_lshl_add_u32 v17, v9, 2, v17")
    a("v_lshl_add_u32 v21, v9, 1, v16")
    a("v_and_b32 v22, 3, v1")
    a("v_lshlrev_b32 v23, 8, v7"); a("v_lshl_add_u32 v23, v22, 3, v23")
    for t in range(2):
        a(f"s_lshl_b32 s{S_T0}, s{S_W}, 1"); a(f"s_add_u32 s{S_T0}, s{S_T0}, {t}")
        a(f"v_xor_b32 v24, s{S_T0}, v17"); a(f"v_lshl_add_u32 v{18+t}, v24, 5, v23")
    a("v_lshlrev_b32 v23, 7, v7"); a("v_lshl_add_u32 v23, v22, 3, v23"); a("v_add_u32 v23, 32768, v23")
    a(f"v_xor_b32 v24, s{S_W}, v21"); a("v_lshl_add_u32 v20, v24, 5, v23")
    KTMP = 110
    for c in range(10):
        buf = QB[c & 3]
        inflight = min(3, 9 - c)
        a(f"s_waitcnt vmcnt({10*inflight})")
        a("s_barrier")
        for r in range(3): a(f"v_add_u32 v{25+r}, {buf}, v{18+r}")
        lgp = Cnt(a, "lgkmcnt", 15)
        for tile, areg, img in (('q0', 25, 0), ('q1', 26, 0), ('k0', 25, 16384), ('k1', 26, 16384), ('v', 27, 0)):
            for hi in range(2):
                for jq in range(2):
                    lo = 4*hi + 2*jq
                    if wfrag(tile, c) is None: dst = f"v[{KTMP+8*(c-4)+lo}:{KTMP+8*(c-4)+lo+1}]"
                    else: dst = wr(tile, c, lo, 2)
                    off = img + (hi*4096 + jq*256 if tile == 'v' else hi*8192 + jq*512)
                    lgp.issue(0, f"ds_read_b64_tr_b16 {dst}, v{areg} offset:{off}")
        lgp.waitall()
        a("s_barrier")
        if c + 4 < 10: qkv_dma(buf)
    a(f"s_mul_i32 s{S_T0}, s{S_W}, 20480"); a("v_lshlrev_b32 v12, 4, v1"); a(f"v_add_u32 v12, s{S_T0}, v12")
    for tt in range(10):
        d = 30 + 8*tt
        a(f"ds_write_b128 v12, v[{d}:{d+3}] offset:{2048*tt}")
        a(f"ds_write_b128 v12, v[{d+4}:{d+7}] offset:{2048*tt+1024}")
        if tt % 5 == 4: a("s_waitcnt lgkmcnt(0)")
    a(f"s_mul_i32 s{S_T0}, s{S_W}, 12288"); a(f"s_add_u32 s{S_T0}, s{S_T0}, {L_WS}")
    a("v_lshlrev_b32 v12, 4, v1"); a(f"v_add_u32 v12, s{S_T0}, v12")
    for k in range(6):
        a(f"ds_write_b128 v12, v[{KTMP+8*k}:{KTMP+8*k+3}] offset:{2048*k}")
        a(f"ds_write_b128 v12, v[{KTMP+8*k+4}:{KTMP+8*k+7}] offset:{2048*k+1024}")
    a("s_waitcnt lgkmcnt(0)")

ROT = [0]
def gather_block(a, sreg):
    if ROT[0]:
        a(f"s_add_u32 s{sreg}, s{S_W}, s{S_J}"); a(f"s_and_b32 s{sreg}, s{sreg}, 3")
    else:
        a(f"s_mov_b32 s{sreg}, s{S_W}")

def setup_regs(a):
    LN = 19
    a(f"v_mov_b32 v{LN}, v1")
    T = 56
    a(f"v_lshrrev_b32 v{T}, 4, v{LN}")
    a(f"v_and_b32 v{T+1}, 15, v{LN}")
    a(f"v_bfe_u32 v{T+2}, v{LN}, 2, 2")
    a(f"v_and_b32 v{T+3}, 3, v{LN}")
    G, N, R_, CC = T, T+1, T+2, T+3
    t0, t1, t2 = T+4, T+5, T+6
    a(f"v_and_b32 v{t0}, 2, v{LN}"); a(f"v_cmp_eq_u32 vcc, 0, v{t0}")
    a(f"v_mov_b32 v{t1}, 0xeeeeeeee"); a(f"v_mov_b32 v{t2}, 0x44444444")
    a(f"v_cndmask_b32 v{V_IDX}, v{t1}, v{t2}, vcc")
    a(f"v_lshlrev_b32 v{V_L16}, 4, v{LN}"); a(f"v_lshlrev_b32 v{V_L8}, 3, v{LN}")
    a(f"v_lshrrev_b32 v{t0}, 1, v{G}"); a(f"v_lshlrev_b32 v{t0}, 9, v{t0}")
    a(f"v_lshl_add_u32 v{t0}, v{CC}, 7, v{t0}")
    a(f"v_and_b32 v{t1}, 1, v{G}"); a(f"v_lshl_add_u32 v{t0}, v{t1}, 6, v{t0}")
    a(f"v_lshl_add_u32 v{t0}, v{R_}, 3, v{t0}"); a(f"v_add_u32 v{t0}, {L_IMG}, v{t0}")
    a(f"v_lshrrev_b32 v{t1}, 1, v{CC}")
    a(f"v_lshl_add_u32 v{V_AT0}, v{t1}, 5, v{t0}")
    a(f"v_xor_b32 v{t1}, 1, v{t1}"); a(f"v_lshl_add_u32 v{V_AT1}, v{t1}, 5, v{t0}")
    a(f"s_lshl_b32 s{S_T0}, s{S_W}, 5"); a(f"v_add_u32 v{t0}, s{S_T0}, v{N}")
    a(f"v_lshrrev_b32 v{t1}, 2, v{t0}"); a(f"v_lshrrev_b32 v{t2}, 1, v{G}"); a(f"v_add_u32 v{t1}, v{t1}, v{t2}")
    a(f"v_lshlrev_b32 v{t0}, 5, v{t0}"); a(f"v_and_b32 v{t2}, 1, v{G}"); a(f"v_lshl_add_u32 v{t0}, v{t2}, 2, v{t0}"); a(f"v_add_u32 v{t0}, {L_XIM}, v{t0}")
    a(f"v_and_b32 v{t2}, 3, v{t1}"); a(f"v_lshl_add_u32 v{V_XWQ}, v{t2}, 3, v{t0}")
    a(f"v_add_u32 v{t1}, 2, v{t1}"); a(f"v_and_b32 v{t2}, 3, v{t1}"); a(f"v_lshl_add_u32 v{V_XWK}, v{t2}, 3, v{t0}")
    a(f"v_lshl_add_u32 v{t0}, v{G}, 2, v{R_}"); a(f"v_lshlrev_b32 v{t0}, 5, v{t0}")
    a(f"v_add_u32 v{t1}, v{CC}, v{G}"); a(f"v_and_b32 v{t1}, 3, v{t1}"); a(f"v_lshl_add_u32 v{t0}, v{t1}, 3, v{t0}")
    a(f"v_add_u32 v{V_XR}, {L_XIM}, v{t0}")
    a(f"v_add_u32 v{V_KT}, {L_KTB}, v{V_L16}")
    a(f"s_mul_i32 s{S_T0}, s{S_W}, 20480"); a(f"v_add_u32 v{V_WO}, s{S_T0}, v{V_L16}")
    a(f"s_mul_i32 s{S_T0}, s{S_W}, 12288"); a(f"s_add_u32 s{S_T0}, s{S_T0}, {L_WS}"); a(f"v_add_u32 v{V_WS}, s{S_T0}, v{V_L16}")
    a(f"s_lshl_b32 s{S_T0}, s{S_W}, 1"); a(f"v_lshrrev_b32 v{t0}, 1, v{G}"); a(f"v_add_u32 v{t0}, s{S_T0}, v{t0}")
    a(f"v_and_b32 v{t1}, 6, v{N}"); a(f"v_xor_b32 v{t0}, v{t0}, v{t1}"); a(f"v_lshlrev_b32 v{t0}, 4, v{t0}")
    a(f"v_and_b32 v{t1}, 7, v{N}"); a(f"v_lshl_add_u32 v{t0}, v{t1}, 7, v{t0}")
    a(f"v_and_b32 v{t1}, 1, v{G}"); a(f"v_lshl_add_u32 v{t0}, v{t1}, 3, v{t0}"); a(f"v_add_u32 v{V_OEW}, {L_OEX}, v{t0}")
    a(f"v_lshrrev_b32 v{t0}, 2, v{N}"); a(f"v_lshlrev_b32 v{t0}, 1, v{t0}"); a(f"v_and_b32 v{t1}, 1, v{N}"); a(f"v_add_u32 v{t0}, v{t0}, v{t1}")
    a(f"v_bfe_u32 v{t1}, v{N}, 1, 1"); a(f"v_lshl_add_u32 v{t1}, v{G}, 1, v{t1}")
    a(f"v_and_b32 v{t2}, 6, v{t0}"); a(f"v_xor_b32 v{t1}, v{t1}, v{t2}"); a(f"v_lshlrev_b32 v{t1}, 4, v{t1}")
    a(f"v_lshl_add_u32 v{t1}, v{t0}, 7, v{t1}"); a(f"v_add_u32 v{V_OER}, {L_OEX}, v{t1}")
    a(f"s_lshl_b32 s{S_T0}, s{S_W}, 8"); a(f"s_add_u32 s{S_T0}, s{S_T0}, {L_VEX}")
    a(f"v_lshlrev_b32 v{t0}, 4, v{N}"); a(f"v_add_u32 v{t0}, s{S_T0}, v{t0}")
    a(f"v_lshl_add_u32 v{V_VEW}, v{G}, 2, v{t0}")
    a(f"v_and_b32 v{t1}, 1, v{G}"); a(f"v_lshl_add_u32 v{V_VER}, v{t1}, 3, v{t0}")
    gather_block(a, S_T0)
    a(f"s_mul_i32 s{S_T0}, s{S_T0}, 2560"); a(f"s_add_u32 s{S_T0}, s{S_T0}, {L_IMG}")
    a(f"v_lshrrev_b32 v{t0}, 5, v{LN}"); a(f"v_lshlrev_b32 v{t0}, 9, v{t0}")
    a(f"v_bfe_u32 v{t1}, v{LN}, 3, 2"); a(f"v_lshl_add_u32 v{t0}, v{t1}, 7, v{t0}")
    a(f"v_lshrrev_b32 v{t1}, 1, v{t1}"); a(f"v_lshlrev_b32 v{t1}, 5, v{t1}")
    a(f"v_and_b32 v{t2}, 7, v{LN}"); a(f"v_lshlrev_b32 v{t2}, 4, v{t2}"); a(f"v_xor_b32 v{t2}, v{t2}, v{t1}")
    a(f"v_add_u32 v{t0}, v{t0}, v{t2}"); a(f"v_add_u32 v{V_IW0}, s{S_T0}, v{t0}")
    a(f"v_lshrrev_b32 v{t1}, 1, v{G}"); a(f"v_lshlrev_b32 v{t1}, 5, v{t1}"); a(f"v_lshlrev_b32 v{t2}, 3, v{N}"); a(f"v_xor_b32 v{t2}, v{t2}, v{t1}")
    a(f"v_lshl_add_u32 v{t0}, v{G}, 7, v{t2}"); a(f"v_add_u32 v{V_IW2}, s{S_T0}, v{t0}")
    a(f"v_lshrrev_b32 v{t0}, 3, v{N}"); a(f"v_lshl_add_u32 v{t0}, v{G}, 1, v{t0}"); a(f"v_mul_u32_u24 v{t0}, 10240, v{t0}")
    a(f"v_and_b32 v{t1}, 7, v{N}"); a(f"v_lshl_add_u32 v{t0}, v{t1}, 4, v{t0}")
    a(f"s_min_u32 s{S_T0}, s{S_RID}, 79"); a(f"s_lshl_b32 s{S_T0}, s{S_T0}, 7"); a(f"v_add_u32 v{V_RL}, s{S_T0}, v{t0}")
    for r in range(4): a(f"v_mov_b32 v{V_ONES+r}, 0x3f803f80")
    for k in range(4):
        a(f"v_mov_b32 v{t0}, 0")
        a(f"v_cmp_eq_u32 vcc, {2*k}, v{N}"); a(f"v_mov_b32 v{t1}, 0x3f80"); a(f"v_cndmask_b32 v{t0}, v{t0}, v{t1}, vcc")
        a(f"v_cmp_eq_u32 vcc, {2*k+1}, v{N}"); a(f"v_mov_b32 v{t1}, 0x3f800000"); a(f"v_cndmask_b32 v{V_SEL+k}, v{t0}, v{t1}, vcc")
    a(f"v_cmp_gt_u32 vcc, 2, v{G}"); a(f"v_mov_b32 v{t1}, 0xff800000"); a(f"v_mov_b32 v{t0}, 0")
    for r in range(4): a(f"v_cndmask_b32 v{V_CNEG+r}, v{t0}, v{t1}, vcc")
    a(f"s_mov_b32 s{S_C}, 0x{f32bits(128**-0.5 * 1.4426950408889634):08x}"); a(f"s_mov_b32 s{S_C+1}, s{S_C}")
    a(f"s_mov_b32 s{S_LO}, 0x00003f80"); a(f"s_mov_b32 s{S_HI}, 0x3f800000")
    a(f"s_mov_b32 s{S_EXO}, 0x00ff00ff"); a(f"s_mov_b32 s{S_EXO+1}, 0x00ff00ff")

def load_mem0(a):
    LN = 19
    T = 56
    a(f"v_bfe_u32 v{T}, v{LN}, 4, 2"); a(f"v_and_b32 v{T+1}, 15, v{LN}")
    a(f"v_mul_u32_u24 v{T+2}, 2560, v{T}")
    a(f"s_lshl_b32 s{S_T0}, s{S_W}, 5"); a(f"v_add_u32 v{T+3}, s{S_T0}, v{T+1}"); a(f"v_lshl_add_u32 v{T+2}, v{T+3}, 1, v{T+2}")
    B = 64
    for i in range(5):
        for q, off in enumerate((0, 1280, 32, 1312)):
            a(f"global_load_ushort v{B+4*i+q}, v{T+2}, {sp(P_MEM0)} offset:{256*i+off}")
    a(f"v_lshrrev_b32 v{T+3}, 1, v{T}"); a(f"v_lshlrev_b32 v{T+3}, 5, v{T+3}"); a(f"v_lshlrev_b32 v{T+4}, 3, v{T+1}"); a(f"v_xor_b32 v{T+4}, v{T+4}, v{T+3}")
    a(f"v_lshl_add_u32 v{T+4}, v{T}, 7, v{T+4}"); a(f"s_lshl_b32 s{S_T0}, s{S_W}, 9"); a(f"s_add_u32 s{S_T0}, s{S_T0}, {L_IMG}"); a(f"v_add_u32 v{T+4}, s{S_T0}, v{T+4}")
    a("s_waitcnt vmcnt(0)")
    for i in range(5):
        a(f"v_lshl_or_b32 v{B+4*i}, v{B+4*i+1}, 16, v{B+4*i}")
        a(f"v_lshl_or_b32 v{B+4*i+1}, v{B+4*i+3}, 16, v{B+4*i+2}")
        a(f"ds_write_b64 v{T+4}, v[{B+4*i}:{B+4*i+1}] offset:{2048*i}")
    a("s_waitcnt lgkmcnt(0)")

def census(a):
    from gen import XA, XB
    a(f"s_mov_b32 s{S_SPIN}, 0")
    load_tickets(a, 56, 57, 19)
    a(f"v_mov_b32 v58, {DBG_RINIT}"); a("v_cmp_eq_u32 vcc, 12, v19"); a("v_cndmask_b32 v56, v56, v58, vcc")
    a.label("L_R_census")
    a(f"global_load_dword v57, v56, {sp(P_DBG)} sc1")
    a("s_waitcnt vmcnt(0)")
    sum_tickets(a, S_T0, S_T1, 57)
    a(f"v_readlane_b32 s{S_T1}, v57, 12"); a(f"v_readlane_b32 s{S_POL}, v57, 11")
    a(f"s_cmp_ge_u32 s{S_T1}, 64"); a(f"s_cselect_b32 s{S_T0}, s{S_T0}, 0")
    a(f"s_cmp_ge_u32 s{S_T0}, 256"); a(f"s_cselect_b32 s{S_T0}, s{S_POL}, 0")
    a(f"s_cmp_lg_u32 s{S_T0}, 0"); a("s_cbranch_scc1 L_R_census_ok")
    a("s_sleep 4")
    a(f"s_add_u32 s{S_SPIN}, s{S_SPIN}, 1"); a(f"s_cmp_lt_u32 s{S_SPIN}, {SPIN_MAX}"); a("s_cbranch_scc1 L_R_census")
    a("s_endpgm")
    a.label("L_R_census_ok")
    a(f"s_cmp_eq_u32 s{S_POL}, 2"); a(f"s_cselect_b32 s{S_POL}, 8192, 0")
    a(f"v_readlane_b32 s{S_T0}, v57, {XA}"); a(f"v_readlane_b32 s{S_T1}, v57, {XB}")
    a(f"s_min_u32 s{S_T0}, s{S_T0}, s{S_T1}")
    a(f"s_cmp_ge_u32 s{S_T0}, 32")
    a("s_cbranch_scc0 L_Rslow_start")
    a("s_branch L_Rfast_start")

WS_DUMMY = 8 * MB
V_FLG = 0
V_FV = 19
S_OFFP = 96
S_OFFX = 97
S_TAG = 99
S_M0KT = 98
S_FM = 100

def backoff(a, n33, opts):
    if n33 <= 0: return
    if opts.get('slp', 1):
        k = (n33 * 33 + 32) // 64
        if k: a(f"s_sleep {k}")
    else:
        for _ in range(n33): a("s_nop 7")

def weave(a, mains, fillers, per=2):
    fi = 0
    for m in mains:
        m()
        k = 0
        while k < per and fi < len(fillers):
            f = fillers[fi]; fi += 1
            if f is None: break
            n = f()
            k += n if n else 1
    while fi < len(fillers):
        if fillers[fi] is not None: fillers[fi]()
        fi += 1

def body(a, opts, slow):
    P = "L_Rslow" if slow else "L_Rfast"
    LS = "sc1" if slow else ""
    D_RED = opts.get('d_red', 16); D_LOC = opts.get('d_loc', 12); D_REM = opts.get('d_rem', 0)
    stamps = opts.get('prof', False)
    prof = stamps or opts.get('cnt', False)
    PROF = [2, 26, 27, 23, 23, 23, 23, 23, 23] if not stamps else [2, 3, 4, 5, 6, 7, 23, 26, 27]; PRT = [20, 21, 22]
    fine = opts.get('fine', 0)
    def fstamp(i):
        if not fine: return
        a("s_memtime s[44:45]"); a("s_waitcnt lgkmcnt(0)")
        a("s_sub_u32 s45, s44, s33"); a(f"s_add_u32 s{PROF[i]}, s{PROF[i]}, s45")
        a("s_mov_b32 s33, s44")
    def stamp(i):
        if not stamps: return
        if fine and i is not None:
            i = {0: 8, 1: 8, 2: 8, 3: 8, 4: 8, 5: 8, 6: 8, 7: 8, 8: 8}[i]
        a("s_memtime s[44:45]"); a("s_waitcnt lgkmcnt(0)")
        if i is not None:
            a("s_sub_u32 s45, s44, s33"); a(f"s_add_u32 s{PROF[i]}, s{PROF[i]}, s45")
        a("s_mov_b32 s33, s44")
    I = lambda t: (lambda: a(t))
    RT = {'A': 86, 'B': 42, 'C': 22, 'D': 28, 'E': 6, 'F': 24, 'G': 20, 'H': None, 'I': 26, 'J': 2, 'K': 4}
    rt_on = opts.get('rt', 0)
    def rt(k):
        if rt_on and RT[k] is not None: a(f"s_memrealtime s[{RT[k]}:{RT[k]+1}]")
    B_PST, B_RL, B_PUBR, B_PUBL, B_GL, B_GR = 8, 10, 12, 14, 16, 18
    a.label(P + "_start")
    if prof:
        for r in PROF + PRT: a(f"s_mov_b32 s{r}, 0")
    a(f"s_mov_b32 s{S_STEP}, 0"); a(f"s_mov_b32 s{S_OFFP}, 0"); a(f"s_mov_b32 s{S_OFFX}, 0"); a(f"s_mov_b32 s{S_TAG}, 0")
    a(f"s_lshl_b32 s{S_T0}, s{S_H}, 13")
    sadd64(a, S_KT, P_WS, WS_KT); sadd64(a, S_KT, S_KT, f"s{S_T0}"); a(f"s_lshl_b32 s{S_T1}, s{S_W}, 11"); sadd64(a, S_KT, S_KT, f"s{S_T1}")
    sadd64(a, S_VT, P_WS, WS_VT); sadd64(a, S_VT, S_VT, f"s{S_T0}")
    a(f"s_lshl_b32 s{S_T1}, s{S_HF}, 2"); a(f"s_add_u32 s{S_T1}, s{S_T1}, s{S_W}"); a(f"s_lshl_b32 s{S_T2}, s{S_T1}, 10"); sadd64(a, S_VT, S_VT, f"s{S_T2}")
    a(f"s_lshl_b32 s{S_T0}, s{S_H}, 12")
    sadd64(a, S_XM, P_WS, WS_XM); sadd64(a, S_XM, S_XM, f"s{S_T0}")
    a(f"s_and_b32 s{S_XMW}, s{S_W}, 1"); a(f"s_lshl_b32 s{S_T3}, s{S_HF}, 1"); a(f"s_add_u32 s{S_XMW}, s{S_XMW}, s{S_T3}"); a(f"s_lshl_b32 s{S_XMW}, s{S_XMW}, 10")
    sadd64(a, S_XM, S_XM, f"s{S_XMW}")
    sadd64(a, S_VM, P_WS, WS_VM); sadd64(a, S_VM, S_VM, f"s{S_T0}"); a(f"s_lshl_b32 s{S_T2}, s{S_T1}, 9"); sadd64(a, S_VM, S_VM, f"s{S_T2}")
    a(f"s_lshl_b32 s{S_T0}, s{S_H}, 1"); a(f"s_add_u32 s{S_T0}, s{S_T0}, s{S_HF}"); a(f"s_lshl_b32 s{S_T0}, s{S_T0}, 6"); a(f"s_add_u32 s{S_T0}, s{S_T0}, {FM_OFF}")
    sadd64(a, S_FM, P_WS, f"s{S_T0}")
    a(f"v_lshrrev_b32 v56, 4, v{V_L16}")
    a(f"v_and_b32 v57, 3, v56"); a("v_lshlrev_b32 v57, 2, v57"); a("v_bfe_u32 v58, v56, 2, 1"); a(f"v_mul_u32_u24 v58, {FV_OFF}, v58"); a("v_add_u32 v57, v57, v58")
    a(f"s_lshl_b32 s{S_T0}, s{S_H}, 6"); a(f"v_add_u32 v{V_FV}, s{S_T0}, v57")
    a(f"s_mul_i32 s{S_T1}, s{S_PROD}, 10240"); a(f"s_mul_i32 s{S_T2}, s{S_W}, 2560"); a(f"s_add_u32 s{S_T1}, s{S_T1}, s{S_T2}")
    sadd64(a, B_PST, P_WS, WS_PART); sadd64(a, B_PST, B_PST, f"s{S_T1}")
    a(f"s_mul_i32 s{S_T1}, s{S_G}, {32*10240}"); a(f"s_add_u32 s{S_T1}, s{S_T1}, {WS_PART}")
    a(f"s_cmp_eq_u32 s{S_RACT}, 0"); a(f"s_cselect_b32 s{S_T1}, {WS_DUMMY}, s{S_T1}")
    sadd64(a, B_RL, P_WS, f"s{S_T1}")
    a(f"s_min_u32 s{S_T3}, s{S_RID}, 79")
    a(f"s_mul_i32 s{S_T1}, s{S_G}, 10240"); a(f"s_lshl_b32 s{S_T2}, s{S_T3}, 7"); a(f"s_add_u32 s{S_T2}, s{S_T2}, s{S_T1}"); a(f"s_add_u32 s{S_T2}, s{S_T2}, {WS_XPL}")
    a(f"s_lshl_b32 s{S_T0}, s{S_T3}, 7")
    a(f"s_sub_u32 s{S_T1}, s{S_T0}, {60*128}"); a(f"s_add_u32 s{S_T1}, s{S_T1}, 16384")
    a(f"s_cmp_ge_u32 s{S_T3}, 60"); a(f"s_cselect_b32 s{S_T0}, s{S_T1}, s{S_T0}")
    a(f"s_lshl_b32 s{S_T1}, s{S_G}, 15"); a(f"s_add_u32 s{S_T0}, s{S_T0}, s{S_T1}"); a(f"s_add_u32 s{S_T0}, s{S_T0}, s{S_POL}"); a(f"s_add_u32 s{S_T0}, s{S_T0}, {WS_XPR}")
    a(f"s_lshl_b32 s{S_T3}, s{S_PROD}, 8"); a(f"s_add_u32 s{S_T3}, s{S_T3}, {WS_DUMMY + 2*MB}")
    a(f"s_cmp_eq_u32 s{S_RACT}, 0"); a(f"s_cselect_b32 s{S_T0}, s{S_T3}, s{S_T0}"); a(f"s_cselect_b32 s{S_T2}, s{S_T3}, s{S_T2}")
    sadd64(a, B_PUBR, P_WS, f"s{S_T0}"); sadd64(a, B_PUBL, P_WS, f"s{S_T2}")
    gather_block(a, S_T2)
    a(f"s_mul_i32 s{S_T1}, s{S_G}, 10240"); a(f"s_mul_i32 s{S_T3}, s{S_T2}, 2560"); a(f"s_add_u32 s{S_T0}, s{S_T1}, s{S_T3}"); a(f"s_add_u32 s{S_T0}, s{S_T0}, {WS_XPL}")
    sadd64(a, B_GL, P_WS, f"s{S_T0}")
    a(f"s_cmp_eq_u32 s{S_T2}, 3"); a(f"s_cselect_b32 s{S_T3}, 16384, s{S_T3}")
    a(f"s_xor_b32 s{S_T1}, s{S_G}, 1"); a(f"s_lshl_b32 s{S_T1}, s{S_T1}, 15"); a(f"s_add_u32 s{S_T0}, s{S_T1}, s{S_T3}"); a(f"s_add_u32 s{S_T0}, s{S_T0}, s{S_POL}"); a(f"s_add_u32 s{S_T0}, s{S_T0}, {WS_XPR}")
    sadd64(a, B_GR, P_WS, f"s{S_T0}")
    a(f"s_mov_b32 s{S_OFFR}, 0")
    a("s_mov_b32 s24, -1"); a("s_mov_b32 s25, 0")
    a(f"s_lshl_b32 s{S_T0}, s{S_G}, 7"); a(f"s_add_u32 s{S_T0}, s{S_T0}, {HINT_OFF}"); sadd64(a, S_HW, P_WS, f"s{S_T0}")
    a(f"s_xor_b32 s{S_T0}, s{S_G}, 1"); a(f"s_lshl_b32 s{S_T0}, s{S_T0}, 7"); a(f"s_add_u32 s{S_T0}, s{S_T0}, {HINT_OFF}"); sadd64(a, S_HR, P_WS, f"s{S_T0}")
    a(f"s_mov_b32 s{S_XMN}, s{S_XM}"); a(f"s_mov_b32 s{S_XMN+1}, s{S_XM+1}"); a(f"s_mov_b32 s{S_VMN}, s{S_VM}"); a(f"s_mov_b32 s{S_VMN+1}, s{S_VM+1}")
    a(f"s_lshl_b32 s{S_T0}, s{S_PROD}, 2"); a(f"s_add_u32 s{S_T0}, s{S_T0}, s{S_W}"); a(f"s_lshl_b32 s{S_T0}, s{S_T0}, 10"); a(f"s_add_u32 s{S_T0}, s{S_T0}, {WS_DUMMY}")
    sadd64(a, S_XM, P_WS, f"s{S_T0}"); sadd64(a, S_VM, P_WS, f"s{S_T0}")
    a(f"s_lshl_b32 s{S_WBIT}, 1, s{S_W}")
    a(f"v_mov_b32 v{XF+14}, 0")
    def flags_load(): a(f"global_load_dword v{V_FLG}, v{V_FV}, {sp(P_WS)} sc1")
    def flags_spin(need, ret):
        stub = a.newlabel(P + "_fs")
        def fn():
            a.label(stub)
            a(f"s_mov_b32 s{S_SPIN}, 0")
            a.label(stub + "_l")
            flags_load()
            a("s_waitcnt vmcnt(0)")
            a(f"v_cmp_gt_u32 vcc, s{need}, v{V_FLG}")
            a(f"s_cbranch_vccz {ret}")
            a("s_sleep 2")
            a(f"s_add_u32 s{S_SPIN}, s{S_SPIN}, 1"); a(f"s_cmp_lt_u32 s{S_SPIN}, {SPIN_MAX}"); a(f"s_cbranch_scc1 {stub}_l")
            a("s_endpgm")
        a.defer(fn)
        return stub
    def part_bases():
        sadd64(a, S_PST, B_PST, f"s{S_OFFP}")
        sadd64(a, S_RL, B_RL, f"s{S_OFFP}")
        for t in range(1, 4): sadd64(a, S_RL+2*t, S_RL+2*t-2, 81920)
    a(f"s_mov_b32 s{S_NEED}, 1")
    pr = a.newlabel(P + "_prime")
    a(f"s_branch {flags_spin(S_NEED, pr)}")
    a.label(pr)
    a(f"s_lshl_b32 s{S_T0}, s{S_W}, 11"); a(f"s_add_u32 m0, s{S_T0}, {L_KTB}"); a(f"s_add_u32 s{S_M0KT}, s{S_T0}, {L_KTB + 8192}")
    a(f"global_load_lds_dwordx4 v{V_L16}, {sp(S_KT)} sc1")
    a(f"global_load_lds_dwordx4 v{V_L16}, {sp(S_KT)} offset:1024 sc1")
    sadd64(a, S_KT, S_KT, 32*8192)
    a(f"s_mov_b32 s{S_NEED}, 2")
    part_bases()
    for r in range(0, 20, 2): a(f"v_mov_b64 v[{ACC+r}:{ACC+r+1}], 0")
    a("s_waitcnt vmcnt(0)")
    a("s_barrier")
    stamp(None)
    rt_stamp(a, 3, 140, opts.get('tl', 0))
    a.label(P + "_loop")
    if opts.get('tl', 0):
        for st, ix in ((1, 4), (2, 5), (8, 6), (32, 7)):
            sk = a.newlabel("L_tl")
            a(f"s_cmp_eq_u32 s{S_STEP}, {st}"); a(f"s_cbranch_scc0 {sk}")
            rt_stamp(a, ix, 140, True)
            a.label(sk)
    if prof:
        sk = a.newlabel("L_pr")
        a(f"s_cmp_eq_u32 s{S_STEP}, 32"); a(f"s_cbranch_scc0 {sk}")
        for r in PROF + PRT: a(f"s_mov_b32 s{r}, 0")
        a.label(sk)
    if rt_on:
        rt('A'); a("s_waitcnt lgkmcnt(0)")
    lg = Cnt(a, "lgkmcnt", 15)
    def af_read(c, h):
        v = V_AT0 if h == 0 else V_AT1
        return lambda: lg.issue(('af', c), f"ds_read_b64_tr_b16 v[{AF+4*c+2*h}:{AF+4*c+2*h+1}], v{v} offset:{1024*c}")
    def ks_read(c, h):
        b = VS + 8*(c & 1) + 4*h
        return lambda: lg.issue(('ks', c), f"ds_read_b128 v[{b}:{b+3}], v{V_WS} offset:{2048*(c-4)+1024*h}")
    def kt_read(i):
        return lambda: lg.issue(('kt', i), f"ds_read_b128 v[{KT+4*i}:{KT+4*i+3}], v{V_KT} offset:{1024*i}")
    for c in range(4):
        af_read(c, 0)(); af_read(c, 1)()
    def smf(acc, c, w): a(f"v_smfmac_f32_16x16x64_bf16 v[{acc}:{acc+3}], v[{AF+4*c}:{AF+4*c+3}], {w}, v{V_IDX}")
    slot = {}
    seq = [af_read(4, 0), af_read(4, 1), ks_read(4, 0), ks_read(4, 1), af_read(5, 0), af_read(5, 1), ks_read(5, 0), ks_read(5, 1),
           af_read(6, 0), af_read(6, 1), af_read(7, 0), af_read(7, 1), kt_read(0), kt_read(1), af_read(8, 0), af_read(8, 1),
           af_read(9, 0), af_read(9, 1), kt_read(2), None,
           ks_read(6, 0), ks_read(6, 1), kt_read(3), None, ks_read(7, 0), ks_read(7, 1), kt_read(4), None,
           ks_read(8, 0), ks_read(8, 1), kt_read(5), None, ks_read(9, 0), ks_read(9, 1), kt_read(6), kt_read(7), None, None, None, None]
    XT = XF+8; VMC = XF+12; FMV = XF+14
    def x_vt(): a(f"global_load_dwordx4 v[{V_VT}:{V_VT+3}], v{V_L16}, {sp(S_VT)} sc1")
    def x_d0(): a(f"s_mov_b32 m0, s{S_M0KT}"); a(f"global_load_lds_dwordx4 v{V_L16}, {sp(S_KT)} sc1")
    def x_d1(): a(f"global_load_lds_dwordx4 v{V_L16}, {sp(S_KT)} offset:1024 sc1")
    def x_xm(): a(f"global_store_dwordx4 v{V_L16}, v[{XT}:{XT+3}], {sp(S_XM)} sc1")
    def x_vm(): a(f"global_store_dwordx2 v{V_L8}, v[{VMC}:{VMC+1}], {sp(S_VM)} sc1")
    def x_fm():
        a("s_mov_b64 exec, 1"); a(f"global_store_dword v{V_L8}, v{FMV}, {sp(S_FM)} sc1"); a("s_mov_b64 exec, -1")
        a(f"global_load_dword v{V_FLG}, v{V_FV}, {sp(P_WS)} sc1")
    extras = [x_vt, x_d0, x_d1, x_xm, x_vm, x_fm]
    X0 = opts.get('x0', 2)
    ops_per = [1, 1, 1, 1, 1, 2]
    nx22 = sum(n for e, n in enumerate(ops_per) if X0 + 4*e < 22)
    fret = a.newlabel(P + "_fret"); fstub = flags_spin(S_NEED, fret)
    KT_FIRST = 24
    seq = [af_read(4, 0), af_read(4, 1), ks_read(4, 0), ks_read(4, 1), af_read(5, 0), af_read(5, 1), ks_read(5, 0), ks_read(5, 1),
           af_read(6, 0), af_read(6, 1), af_read(7, 0), af_read(7, 1), af_read(8, 0), af_read(8, 1), af_read(9, 0), af_read(9, 1),
           None, None, None, None,
           ks_read(6, 0), ks_read(6, 1), kt_read(0), kt_read(1), ks_read(7, 0), ks_read(7, 1), kt_read(2), kt_read(3),
           ks_read(8, 0), ks_read(8, 1), kt_read(4), kt_read(5), ks_read(9, 0), ks_read(9, 1), kt_read(6), kt_read(7), None, None, None, None]
    k = 0
    for c in range(10):
        for t, tile in enumerate(('q0', 'q1', 'k0', 'k1')):
            if t == 0: lg.wait(('af', c))
            if tile == 'k1' and c >= 4:
                lg.wait(('ks', c)); b = VS + 8*(c & 1)
                smf(ACC+12, c, f"v[{b}:{b+7}]")
            else:
                smf(ACC+4*t, c, wr(tile, c))
            if k == 0:
                a(f"v_cmp_gt_u32 vcc, s{S_NEED}, v{V_FLG}")
            if k == 1:
                a(f"s_cbranch_vccnz {fstub}"); a.label(fret)
            if k == 22: a(f"s_waitcnt vmcnt({nx22})")
            if seq[k] is not None: seq[k]()
            if k >= X0 and (k - X0) % 4 == 0 and (k - X0) // 4 < len(extras):
                extras[(k - X0) // 4]()
            k += 1
    if fine == 1: lg.waitall(); fstamp(0)
    for t in range(4): a(f"v_pk_add_f32 v[{ACC+4*t}:{ACC+4*t+1}], v[{ACC+4*t}:{ACC+4*t+1}], v[{ACC+4*t+2}:{ACC+4*t+3}]")
    for t in range(4): a(f"v_cvt_pk_bf16_f32 v{ACC+4*t+2}, v{ACC+4*t}, v{ACC+4*t+1}")
    lg.issue('xw', f"ds_write2st64_b32 v{V_XWQ}, v{ACC+2}, v{ACC+6} offset0:0 offset1:2")
    lg.issue('xw', f"ds_write2st64_b32 v{V_XWK}, v{ACC+10}, v{ACC+14} offset0:0 offset1:2")
    for c in range(3): smf(ACC+16, c, wr('v', c))
    lg.waitall()
    if fine == 1: fstamp(1)
    a("s_barrier")
    stamp(0)
    for ks in range(4):
        lg.issue(('x', ks), f"ds_read_b64_tr_b16 v[{XF+4*ks}:{XF+4*ks+1}], v{V_XR} offset:{1024*ks}")
        lg.issue(('x', ks), f"ds_read_b64_tr_b16 v[{XF+4*ks+2}:{XF+4*ks+3}], v{V_XR} offset:{1024*ks+512}")
    SM, S0, S1 = ACC, ACC+4, ACC+8
    VACC = ACC+16; VM_ = ACC+12
    WOB = {0: AF, 1: AF+8, 2: AF+16, 3: AF+24, 4: AF+32, 5: VS, 6: VS+8, 7: XF+8, 8: ACC+4, 9: ACC+16}
    def wo_read(tt, h):
        b = WOB[tt] + 4*h
        return lambda: lg.issue(('wo', tt), f"ds_read_b128 v[{b}:{b+3}], v{V_WO} offset:{2048*tt+1024*h}")
    vfill = {3: wo_read(0, 0), 4: wo_read(0, 1), 5: wo_read(5, 0), 6: wo_read(5, 1), 7: wo_read(1, 0), 8: wo_read(1, 1), 9: wo_read(6, 0)}
    for c in range(3, 10):
        smf(ACC+16, c, wr('v', c)); vfill[c]()
    if fine == 1: lg.waitall(); fstamp(2)
    mains = []
    for ks in range(4):
        x = f"v[{XF+4*ks}:{XF+4*ks+3}]"
        def ma(ks=ks, x=x):
            lg.wait(('x', ks))
            cm = f"v[{V_CNEG}:{V_CNEG+3}]" if ks == 0 else f"v[{SM}:{SM+3}]"
            a(f"v_mfma_f32_16x16x32_bf16 v[{SM}:{SM+3}], {x}, {x}, {cm}")
        mains.append(ma)
        for kt, Sx in ((0, S0), (1, S1)):
            def mb(ks=ks, kt=kt, Sx=Sx, x=x):
                k = f"v[{KT+4*(2*ks+kt)}:{KT+4*(2*ks+kt)+3}]"
                cs = "0" if ks == 0 else f"v[{Sx}:{Sx+3}]"
                a(f"v_mfma_f32_16x16x32_bf16 v[{Sx}:{Sx+3}], {k}, {x}, {cs}")
            mains.append(mb)
    sfill = [[wo_read(6, 1)], [wo_read(2, 0)], [wo_read(2, 1)],
             [wo_read(3, 0), I(f"v_pk_add_f32 v[{VACC}:{VACC+1}], v[{VACC}:{VACC+1}], v[{VACC+2}:{VACC+3}]")],
             [wo_read(3, 1), I(f"v_cvt_pk_bf16_f32 v{VACC+2}, v{VACC}, v{VACC+1}")],
             [lambda: lg.issue('vw', f"ds_write_b32 v{V_VEW}, v{VACC+2}"), lambda: lg.issue('vm', f"ds_read_b64 v[{VM_}:{VM_+1}], v{V_VER}")],
             [wo_read(4, 0)], [wo_read(4, 1)], [], [], [], []]
    for m, fl in zip(mains, sfill):
        m()
        for f in fl: f()
    a("s_waitcnt vmcnt(6)")
    a(f"s_cmp_eq_u32 s{S_STEP}, {opts.get('last', 63)}"); a(f"s_cbranch_scc1 {P}_finish")
    if fine == 1: lg.waitall(); fstamp(3)
    MX = ACC+14; T1 = ACC+15
    a(f"v_max3_f32 v{MX}, v{SM}, v{SM+1}, v{SM+2}")
    a(f"v_max3_f32 v{T1}, v{SM+3}, v{S0}, v{S0+1}")
    a(f"v_max3_f32 v{MX}, v{MX}, v{S0+2}, v{S0+3}")
    a(f"v_max3_f32 v{T1}, v{T1}, v{S1}, v{S1+1}")
    a(f"v_max3_f32 v{MX}, v{MX}, v{S1+2}, v{S1+3}")
    a(f"v_max_f32 v{MX}, v{MX}, v{T1}")
    OUT = [KT+4*t for t in range(8)] + [XF, XF+4]
    zero = [I(f"v_mov_b64 v[{OUT[t]+2*h}:{OUT[t]+2*h+1}], 0") for t in range(10) for h in range(2)]
    a(f"v_mov_b32 v{T1}, v{MX}"); zero.pop(0)(); zero.pop(0)()
    a(f"v_permlane32_swap_b32 v{MX}, v{T1}")
    a(f"v_max_f32 v{MX}, v{MX}, v{T1}")
    a(f"v_mov_b32 v{T1}, v{MX}"); zero.pop(0)(); zero.pop(0)()
    a(f"v_permlane16_swap_b32 v{MX}, v{T1}")
    a(f"v_max_f32 v{MX}, v{MX}, v{T1}")
    a(f"v_mul_f32 v{MX}, s{S_C}, v{MX}")
    for r in range(0, 12, 2):
        a(f"v_pk_fma_f32 v[{ACC+r}:{ACC+r+1}], v[{ACC+r}:{ACC+r+1}], s[{S_C}:{S_C+1}], v[{MX}:{MX+1}] op_sel_hi:[1,1,0] neg_lo:[0,0,1] neg_hi:[0,0,1]")
    if fine == 1: fstamp(4)
    PT = VACC; PM = ACC+14
    for r in range(4, 12): a(f"v_exp_f32 v{ACC+r}, v{ACC+r}")
    a(f"v_exp_f32 v{SM}, v{SM}")
    a(f"v_cvt_pk_bf16_f32 v{PT}, v{S0}, v{S0+1}"); a(f"v_cvt_pk_bf16_f32 v{PT+1}, v{S0+2}, v{S0+3}")
    a(f"v_cvt_pk_bf16_f32 v{PT+2}, v{S1}, v{S1+1}"); a(f"v_cvt_pk_bf16_f32 v{PT+3}, v{S1+2}, v{S1+3}")
    a(f"v_exp_f32 v{SM+1}, v{SM+1}"); a(f"v_exp_f32 v{SM+2}, v{SM+2}")
    LL, OO = S0, S1
    a(f"v_mfma_f32_16x16x32_bf16 v[{LL}:{LL+3}], v[{V_ONES}:{V_ONES+3}], v[{PT}:{PT+3}], 0")
    a(f"v_exp_f32 v{SM+3}, v{SM+3}")
    a(f"v_mfma_f32_16x16x32_bf16 v[{OO}:{OO+3}], v[{V_VT}:{V_VT+3}], v[{PT}:{PT+3}], 0")
    a(f"v_cvt_pk_bf16_f32 v{PM}, v{SM}, v{SM+1}"); a(f"v_cvt_pk_bf16_f32 v{PM+1}, v{SM+2}, v{SM+3}")
    wo_read(7, 0)(); wo_read(7, 1)(); wo_read(9, 0)(); wo_read(9, 1)()
    lg.wait('vm')
    a(f"v_mfma_f32_16x16x16_bf16 v[{LL}:{LL+3}], v[{V_ONES}:{V_ONES+1}], v[{PM}:{PM+1}], v[{LL}:{LL+3}]")
    a(f"v_mfma_f32_16x16x16_bf16 v[{OO}:{OO+3}], v[{VM_}:{VM_+1}], v[{PM}:{PM+1}], v[{OO}:{OO+3}]")
    for _ in range(7): zero.pop(0)()
    if fine == 1: lg.waitall(); fstamp(5)
    a(f"v_rcp_f32 v{LL}, v{LL}")
    zero.pop(0)()
    a(f"v_pk_mul_f32 v[{OO}:{OO+1}], v[{OO}:{OO+1}], v[{LL}:{LL+1}] op_sel_hi:[1,0]")
    a(f"v_pk_mul_f32 v[{OO+2}:{OO+3}], v[{OO+2}:{OO+3}], v[{LL}:{LL+1}] op_sel_hi:[1,0]")
    a(f"v_cvt_pk_bf16_f32 v{OO}, v{OO}, v{OO+1}"); a(f"v_cvt_pk_bf16_f32 v{OO+1}, v{OO+2}, v{OO+3}")
    a(f"s_mov_b64 exec, {sp(S_EXO)}")
    lg.issue('ow', f"ds_write_b64 v{V_OEW}, v[{OO}:{OO+1}]")
    a("s_mov_b64 exec, -1")
    while zero: zero.pop(0)()
    efm = a.newlabel(P + "_efm"); efm2 = a.newlabel(P + "_efm2")
    a(f"s_cmp_ge_u32 s{S_STEP}, 58"); a(f"s_cbranch_scc1 {efm}")
    a.label(efm + "_r")
    lg.waitall()
    if fine == 1: fstamp(6)
    a("s_barrier")
    def fn_efm():
        a.label(efm)
        a("s_waitcnt vmcnt(0)")
        a(f"s_branch {efm}_r")
        a.label(efm2)
        a("s_mov_b64 exec, 1")
        a(f"v_mov_b32 v{ACC+14}, s{S_STEP}")
        a(f"global_store_dword v{V_L8}, v{ACC+14}, {sp(S_FM)} sc1")
        a("s_mov_b64 exec, -1")
        a(f"s_branch {efm2}_r")
    a.defer(fn_efm)
    stamp(1)
    OA = ACC
    lg.issue('oa', f"ds_read_b128 v[{OA}:{OA+3}], v{V_OER}")
    wo_read(8, 0)(); wo_read(8, 1)()
    a(f"s_cmp_ge_u32 s{S_STEP}, 58"); a(f"s_cbranch_scc1 {efm2}")
    a.label(efm2 + "_r")
    XT = XF+8
    lg.wait('oa')
    if fine == 1: lg.waitall(); fstamp(7)
    def osm(tt):
        b = WOB[tt]
        a(f"v_smfmac_f32_16x16x64_bf16 v[{OUT[tt]}:{OUT[tt]+3}], v[{OA}:{OA+3}], v[{b}:{b+7}], v{V_IDX}")
    DST = {0: OUT[0], 1: OUT[0]+2, 2: OUT[4], 3: OUT[4]+2, 4: OUT[8]}
    def post(t):
        o0, o1 = OUT[2*t], OUT[2*t+1]
        d = DST[t]
        L = [I(f"v_pk_add_f32 v[{o0}:{o0+1}], v[{o0}:{o0+1}], v[{o0+2}:{o0+3}]"),
             I(f"v_pk_add_f32 v[{o1}:{o1+1}], v[{o1}:{o1+1}], v[{o1+2}:{o1+3}]"),
             I(f"v_cvt_pk_bf16_f32 v{d}, v{o0}, v{o0+1}"),
             I(f"v_cvt_pk_bf16_f32 v{d+1}, v{o1}, v{o1+1}"),
             I(f"v_and_or_b32 v{d}, v{d}, -2, s{S_TAG}")]
        if t in (1, 3): L.append(I(f"global_store_dwordx4 v{V_L16}, v[{DST[t-1]}:{DST[t-1]+3}], {sp(S_PST)} offset:{1024*(t//2)} {LS}"))
        elif t == 4: L.append(I(f"global_store_dwordx2 v{V_L8}, v[{d}:{d+1}], {sp(S_PST)} offset:2048 {LS}"))
        return L
    p = [post(t) for t in range(5)]
    osm(0); osm(1); osm(2); osm(3); osm(4); osm(5); osm(6); osm(7)
    a(f"v_add_u32 v{XT+4}, s{S_XMW}, v{V_XR}")
    p[0][0](); osm(9); p[0][1]()
    lg.wait(('wo', 8)); osm(8)
    lg.issue('xt', f"ds_read_b64_tr_b16 v[{XT}:{XT+1}], v{XT+4}")
    lg.issue('xt', f"ds_read_b64_tr_b16 v[{XT+2}:{XT+3}], v{XT+4} offset:512")
    for f in p[0][2:]: f()
    for t in (1, 2, 3, 4):
        for f in p[t]: f()
    stamp(2)
    rt('B')
    for r, b, o in ((S_PUBR, B_PUBR, S_OFFR), (S_PUBL, B_PUBL, S_OFFX), (S_GL, B_GL, S_OFFX), (S_GR, B_GR, S_OFFR)): sadd64(a, r, b, f"s{o}")
    nored = a.newlabel(P + "_nored"); redj = a.newlabel(P + "_redj")
    a(f"s_cmp_eq_u32 s{S_RACT}, 0"); a(f"s_cbranch_scc1 {nored}")
    def fn_nored():
        a.label(nored)
        if not opts.get('hint', 0):
            a(f"s_branch {redj}"); return
        a(f"s_cmp_eq_u32 s{S_W}, 3"); a(f"s_cbranch_scc0 {redj}")
        a(f"s_add_u32 s{S_T0}, s{S_STEP}, 1")
        nw = a.newlabel(P + "_nohw")
        a(f"s_cmp_eq_u32 s{S_J}, {opts.get('hj', 0)}"); a(f"s_cbranch_scc0 {nw}")
        for _ in range(opts.get('d_hw', D_RED + 2)): a("s_nop 7")
        a("s_mov_b64 exec, 1")
        a(f"v_mov_b32 v{XF+2}, s{S_T0}")
        a(f"global_store_dword v{V_L8}, v{XF+2}, {sp(S_HW)} sc1")
        a("s_mov_b64 exec, -1")
        a.label(nw)
        a(f"s_mov_b32 s{S_SPIN}, 0")
        a("s_waitcnt lgkmcnt(0)")
        hl = a.newlabel(P + "_hl"); hd = a.newlabel(P + "_hd")
        a.label(hl)
        a(f"s_load_dword s{S_T1}, {sp(S_HR)}, 0x0 glc")
        a(f"s_add_u32 s{S_SPIN}, s{S_SPIN}, 1")
        a("s_waitcnt lgkmcnt(0)")
        a(f"s_cmp_ge_u32 s{S_T1}, s{S_T0}"); a(f"s_cbranch_scc1 {hd}")
        a(f"s_cmp_lt_u32 s{S_SPIN}, {SPIN_MAX}"); a(f"s_cbranch_scc1 {hl}")
        a("s_endpgm")
        a.label(hd)
        for _ in range(opts.get('d_hint', 0)): a("s_nop 7")
        a(f"s_branch {redj}")
    a.defer(fn_nored)
    backoff(a, D_RED, opts)
    RD = AF; RA = AF + 48; TM = AF + 52; PB = KT
    MSK = [S_T0, S_T2, S_PST, S_EXX]
    def r_load(t): a(f"global_load_dwordx4 v[{RD+4*t}:{RD+4*t+3}], v{V_RL}, {sp(S_RL+2*t)} sc1")
    rt('C')
    for t in range(4): r_load(t)
    for t in range(4):
        a(f"s_waitcnt vmcnt({3-t})")
        c = "0" if t == 0 else f"v[{RA}:{RA+3}]"
        a(f"v_mfma_f32_16x16x32_bf16 v[{RA}:{RA+3}], v[{V_SEL}:{V_SEL+3}], v[{RD+4*t}:{RD+4*t+3}], {c}")
        if t == 0: a(f"v_xor_b32 v{TM}, s{S_TAG}, v{RD}")
        else: a(f"v_bitop3_b32 v{TM}, v{TM}, v{RD+4*t}, s{S_TAG} bitop3:0xf6")
        a(f"v_bitop3_b32 v{TM}, v{TM}, v{RD+4*t+2}, s{S_TAG} bitop3:0xf6")
    a(f"v_and_b32 v{TM}, 1, v{TM}")
    a(f"v_cmp_ne_u32 vcc, 0, v{TM}")
    rs1 = a.newlabel(P + "_rs1"); rok = a.newlabel(P + "_rok")
    a(f"s_cbranch_vccnz {rs1}")
    a.label(rok)
    rt('D')
    def masked_poll(stub, nld, check_fn, load_fn, cnt_reg, depth):
        a(f"s_mov_b32 s{S_SPIN}, 0")
        a("s_or_b32 exec_lo, vcc_lo, 1"); a("s_mov_b32 exec_hi, vcc_hi")
        for _ in range(depth - 1):
            for t in range(nld): load_fn(t)
        a.label(stub + "_l")
        for t in range(nld): load_fn(t)
        if prof: a(f"s_add_u32 s{cnt_reg}, s{cnt_reg}, 1")
        a(f"s_add_u32 s{S_SPIN}, s{S_SPIN}, 1")
        a(f"s_waitcnt vmcnt({nld*(depth-1)})")
        check_fn()
        a(f"s_cbranch_vccz {stub}_ok")
        a("s_or_b32 exec_lo, vcc_lo, 1"); a("s_mov_b32 exec_hi, vcc_hi")
        a(f"s_cmp_lt_u32 s{S_SPIN}, {SPIN_MAX}"); a(f"s_cbranch_scc1 {stub}_l")
        a("s_endpgm")
        a.label(stub + "_ok")
        a("s_mov_b64 exec, -1")
    def r_check():
        a(f"v_xor_b32 v{TM}, s{S_TAG}, v{RD}")
        a(f"v_bitop3_b32 v{TM}, v{TM}, v{RD+2}, s{S_TAG} bitop3:0xf6")
        for t in range(1, 4):
            a(f"v_bitop3_b32 v{TM}, v{TM}, v{RD+4*t}, s{S_TAG} bitop3:0xf6")
            a(f"v_bitop3_b32 v{TM}, v{TM}, v{RD+4*t+2}, s{S_TAG} bitop3:0xf6")
        a(f"v_and_b32 v{TM}, 1, v{TM}")
        a(f"v_cmp_ne_u32 vcc, 0, v{TM}")
    def fn_rslow():
        a.label(rs1)
        masked_poll(rs1, 4, r_check, r_load, PRT[2], opts.get('dr', 1))
        for t in range(4):
            c = "0" if t == 0 else f"v[{RA}:{RA+3}]"
            a(f"v_mfma_f32_16x16x32_bf16 v[{RA}:{RA+3}], v[{V_SEL}:{V_SEL+3}], v[{RD+4*t}:{RD+4*t+3}], {c}")
        a("s_nop 7"); a(f"s_branch {rok}")
    a.defer(fn_rslow)
    for r in range(4): a(f"v_add_f32_dpp v{RA+r}, v{RA+r}, v{RA+r} row_ror:8 row_mask:0xf bank_mask:0xf")
    a(f"v_cvt_pk_bf16_f32 v{PB}, v{RA}, v{RA+1}"); a(f"v_cvt_pk_bf16_f32 v{PB+1}, v{RA+2}, v{RA+3}")
    a(f"v_permlane16_swap_b32 v{PB}, v{PB+2}"); a(f"v_permlane16_swap_b32 v{PB+1}, v{PB+3}")
    a(f"v_and_or_b32 v{PB}, v{PB}, -2, s{S_TAG}"); a(f"v_and_or_b32 v{PB+2}, v{PB+2}, -2, s{S_TAG}")
    a("s_mov_b64 exec, 0xff")
    a(f"global_store_dwordx4 v{V_L16}, v[{PB}:{PB+3}], {sp(S_PUBR)} sc1")
    a(f"global_store_dwordx4 v{V_L16}, v[{PB}:{PB+3}], {sp(S_PUBL)} {LS}")
    a("s_mov_b64 exec, -1")
    a.label(redj)
    rt('E')
    a("s_barrier")
    rt('F')
    stamp(3)
    lg.waitall()
    a(f"v_mov_b64 v[{VMC}:{VMC+1}], v[{VM_}:{VM_+1}]")
    a(f"v_mov_b32 v{FMV}, s{S_STEP}")
    for r in range(0, 20, 2): a(f"v_mov_b64 v[{ACC+r}:{ACC+r+1}], 0")
    backoff(a, D_LOC, opts)
    GLc = AF; GF = AF + 12; TMG = AF + 48
    GR = KT
    def g_load(base, sb):
        def f(t):
            if t == 0: a(f"global_load_dwordx4 v[{base}:{base+3}], v{V_L16}, {sp(sb)} sc1")
            elif t == 1: a(f"global_load_dwordx4 v[{base+4}:{base+7}], v{V_L16}, {sp(sb)} offset:1024 sc1")
            else: a(f"global_load_dwordx2 v[{base+8}:{base+9}], v{V_L8}, {sp(sb)} offset:2048 sc1")
        return f
    def chk(base):
        a(f"v_xor_b32 v{TMG}, s{S_TAG}, v{base}")
        a(f"v_bitop3_b32 v{TMG}, v{TMG}, v{base+4}, s{S_TAG} bitop3:0xf6")
        a(f"v_bitop3_b32 v{TMG}, v{TMG}, v{base+8}, s{S_TAG} bitop3:0xf6")
        a(f"v_and_b32 v{TMG}, 1, v{TMG}")
        a(f"v_cmp_ne_u32 vcc, 0, v{TMG}")
    GM = [S_T0, S_T2, S_EXX]
    def gmasks(base):
        def f():
            for t in range(3): a(f"v_xor_b32 v{TMG+t}, s{S_TAG}, v{base+4*t}")
            for t in range(3): a(f"v_and_b32 v{TMG+t}, 1, v{TMG+t}")
            for t in range(3): a(f"v_cmp_ne_u32 {sp(GM[t])}, 0, v{TMG+t}")
        return f
    rt('G')
    for t in range(3): g_load(GLc, S_GL)(t)
    for _ in range(D_REM): a("s_nop 7")
    rt('H')
    for t in range(3): g_load(GR, S_GR)(t)
    stamp(6)
    a(f"s_add_u32 s{S_STEP}, s{S_STEP}, 1")
    a(f"s_xor_b32 s{S_OFFP}, s{S_OFFP}, {64*10240}")
    a(f"s_xor_b32 s{S_OFFX}, s{S_OFFX}, 20480"); a(f"s_xor_b32 s{S_OFFR}, s{S_OFFR}, 65536")
    part_bases()
    a(f"s_and_b32 s{S_T0}, s{S_STEP}, 1"); a(f"s_lshl_b32 s{S_T0}, s{S_T0}, 13"); a(f"s_add_u32 s{S_T0}, s{S_T0}, {L_KTB}")
    a(f"v_add_u32 v{V_KT}, s{S_T0}, v{V_L16}")
    a(f"s_xor_b32 s{S_T0}, s{S_STEP}, 1"); a(f"s_and_b32 s{S_T0}, s{S_T0}, 1"); a(f"s_lshl_b32 s{S_T0}, s{S_T0}, 13"); a(f"s_add_u32 s{S_T0}, s{S_T0}, {L_KTB}")
    a(f"s_lshl_b32 s{S_T1}, s{S_W}, 11"); a(f"s_add_u32 s{S_M0KT}, s{S_T0}, s{S_T1}")
    a(f"s_cmp_lt_u32 s{S_STEP}, 63"); a(f"s_cselect_b32 s{S_T0}, {32*8192}, 0")
    sadd64(a, S_KT, S_KT, f"s{S_T0}")
    sadd64(a, S_VT, S_VT, 32*8192)
    a(f"s_add_u32 s{S_NEED}, s{S_STEP}, 2"); a(f"s_min_u32 s{S_NEED}, s{S_NEED}, 64")
    a(f"s_mov_b32 s{S_XM}, s{S_XMN}"); a(f"s_mov_b32 s{S_XM+1}, s{S_XMN+1}"); a(f"s_mov_b32 s{S_VM}, s{S_VMN}"); a(f"s_mov_b32 s{S_VM+1}, s{S_VMN+1}")
    sadd64(a, S_XMN, S_XMN, 32*4096); sadd64(a, S_VMN, S_VMN, 32*4096)
    a("s_waitcnt vmcnt(3)")
    lre = a.newlabel(P + "_lre"); lok = a.newlabel(P + "_lok")
    chk(GLc)
    a(f"s_cbranch_vccnz {lre}")
    a.label(lok)
    def fn_l():
        a.label(lre)
        masked_poll(lre, 3, lambda: chk(GLc), g_load(GLc, S_GL), PRT[0], 2)
        a("s_waitcnt vmcnt(0)")
        a(f"s_branch {lok}")
    a.defer(fn_l)
    rt('I')
    stamp(8)
    for i in range(10):
        a(f"v_lshlrev_b32 v{GF+2*i}, 16, v{GLc+i}"); a(f"v_and_b32 v{GF+2*i+1}, 0xffff0000, v{GLc+i}")
    a("s_waitcnt vmcnt(0)")
    chk(GR)
    gs1 = a.newlabel(P + "_gs1"); gok = a.newlabel(P + "_gok")
    a(f"s_cbranch_vccnz {gs1}")
    a.label(gok)
    def fn_gslow():
        a.label(gs1)
        masked_poll(gs1, 3, lambda: chk(GR), g_load(GR, S_GR), PRT[1], opts.get('dg', 2))
        a(f"s_branch {gok}")
    a.defer(fn_gslow)
    stamp(4)
    rt('J')
    def dots(i):
        a(f"v_dot2_f32_bf16 v{GF+2*i}, v{GR+i}, s{S_LO}, v{GF+2*i}")
        a(f"v_dot2_f32_bf16 v{GF+2*i+1}, v{GR+i}, s{S_HI}, v{GF+2*i+1}")
    def cv(i): a(f"v_cvt_pk_bf16_f32 v{GLc+i}, v{GF+2*i}, v{GF+2*i+1}")
    for i in range(4): dots(i)
    for t in range(5):
        cv(2*t); cv(2*t+1)
        a(f"ds_write_b64 v{V_IW2}, v[{GLc+2*t}:{GLc+2*t+1}] offset:{512*t}")
        for i in (2*t+4, 2*t+5):
            if i < 10: dots(i)
    rt('K')
    a(f"s_lshr_b32 s{S_TAG}, s{S_STEP}, 1"); a(f"s_and_b32 s{S_TAG}, s{S_TAG}, 1")
    a("s_waitcnt lgkmcnt(0)")
    a("s_barrier")
    stamp(5)
    a(f"s_branch {P}_loop")
    a.label(P + "_finish")
    if rt_on:
        a("s_waitcnt lgkmcnt(0)")
        a(f"s_lshl_b32 s44, s{S_PROD}, 2"); a(f"s_add_u32 s44, s44, s{S_W}"); a("s_lshl_b32 s44, s44, 6"); a(f"s_add_u32 s44, s44, {WS_PROF}")
        a("s_mov_b64 exec, 1")
        a(f"v_mov_b32 v{XF}, s44")
        for i, kk in enumerate("ABCDEFGHIJK"):
            a(f"v_mov_b32 v{XF+1}, s{RT[kk] if RT[kk] is not None else RT['G']}"); a(f"global_store_dword v{XF}, v{XF+1}, {sp(P_WS)} offset:{4*i}"); a("s_nop 1")
        a("s_mov_b64 exec, -1")
    rt_stamp(a, 2, 140, opts.get('tl', 0))
    if prof:
        a(f"s_lshl_b32 s44, s{S_PROD}, 2"); a(f"s_add_u32 s44, s44, s{S_W}"); a("s_lshl_b32 s44, s44, 6"); a(f"s_add_u32 s44, s44, {WS_PROF}")
        a("s_mov_b64 exec, 1")
        a(f"v_mov_b32 v{XF}, s44")
        for i, r in enumerate(PROF[:6] + PRT + PROF[6:]):
            a(f"v_mov_b32 v{XF+1}, s{r}"); a(f"global_store_dword v{XF}, v{XF+1}, {sp(P_WS)} offset:{4*i}"); a("s_nop 1")
        a("s_mov_b64 exec, -1")
    a("s_waitcnt lgkmcnt(0)")
    a(f"v_add_u32 v{AF+4}, s{S_XMW}, v{V_XR}")
    a(f"ds_read_b64_tr_b16 v[{AF}:{AF+1}], v{AF+4}")
    a(f"ds_read_b64_tr_b16 v[{AF+2}:{AF+3}], v{AF+4} offset:512")
    a("s_waitcnt lgkmcnt(0)")
    a(f"global_store_dwordx4 v{V_L16}, v[{AF}:{AF+3}], {sp(S_XMN)} sc1")
    a(f"global_store_dwordx2 v{V_L8}, v[{ACC+12}:{ACC+13}], {sp(S_VMN)} sc1")
    a("s_waitcnt vmcnt(0)")
    a("s_barrier")
    a(f"s_cmp_eq_u32 s{S_W}, 0"); a(f"s_cbranch_scc0 {P}_end")
    a("s_mov_b64 exec, 1")
    a(f"v_mov_b32 v{XF+2}, 64")
    a(f"global_store_dword v{V_L8}, v{XF+2}, {sp(S_FM)} sc1")
    a("s_waitcnt vmcnt(0)")
    rt_stamp(a, 8, 140, opts.get('tl', 0))
    a.label(P + "_end")
    a("s_endpgm")
    a.flush()
```

```python
import sys
from gen_common import *
from gen_init import gen_ln
from gen_proj import gen_proj

XA, XB = 0, 1

def gen_dispatch(a, roles, fake_xcc=None, tl=False):
    a.comment("workgroups beyond the 256 resident ones exit; the others take a ticket of the die they run on, which selects their role.")
    a("s_cmp_ge_u32 s2, 256")
    a("s_cbranch_scc1 L_exit")
    load_kernargs(a)
    a("v_lshrrev_b32 v1, 6, v0")
    a("v_readfirstlane_b32 s32, v1")
    if fake_xcc is None:
        a("s_getreg_b32 s36, hwreg(HW_REG_XCC_ID)")
        a("s_and_b32 s36, s36, 15")
    else:
        fake_xcc(a)
    a("s_waitcnt lgkmcnt(0)")
    a("s_cmp_eq_u32 s32, 0")
    a("s_cbranch_scc0 L_tk_wait")
    a("v_lshlrev_b32 v2, 2, v0"); a("s_lshl_b32 s37, s2, 8"); a("v_add_u32 v2, s37, v2"); a("v_mov_b32 v3, 0")
    a(f"global_store_dword v2, v3, {sp(P_WS)} sc1")
    a("s_and_b32 s37, s36, 3"); a("s_lshr_b32 s38, s36, 2"); a("s_lshl_b32 s38, s38, 5"); a("s_add_u32 s37, s37, s38")
    a("s_cmp_lt_u32 s36, 8"); a("s_cselect_b32 s37, s37, 10"); a("s_lshl_b32 s37, s37, 2")
    a("s_waitcnt vmcnt(0)")
    a("s_mov_b64 exec, 1")
    a("v_mov_b32 v2, 1")
    a("v_mov_b32 v3, s37")
    a(f"global_atomic_add v4, v3, v2, {sp(P_DBG)} sc0")
    a("s_waitcnt vmcnt(0)")
    a("v_readfirstlane_b32 s37, v4")
    a("s_cmp_lt_u32 s36, 8"); a("s_cselect_b32 s38, 1, 0")
    a("s_cmp_lt_u32 s37, 32"); a("s_cselect_b32 s39, 1, 0")
    a("s_and_b32 s38, s38, s39")
    a("s_cmp_eq_u32 s38, 1")
    a("s_cbranch_scc0 L_tk_float")
    a("s_lshl_b32 s33, s36, 5"); a("s_add_u32 s33, s33, s37")
    a("s_branch L_tk_have")
    a.label("L_tk_float")
    a("s_mov_b32 s38, 0")
    a("s_mov_b64 exec, -1")
    load_tickets(a, 6, 7, 0)
    a.label("L_tk_spin")
    a(f"global_load_dword v7, v6, {sp(P_DBG)} sc1")
    a("s_waitcnt vmcnt(0)")
    sum_tickets(a, 39, 40, 7)
    a("s_cmp_ge_u32 s39, 256"); a("s_cbranch_scc1 L_tk_all")
    a("s_sleep 8")
    a("s_add_u32 s38, s38, 1"); a("s_cmp_lt_u32 s38, 0x40000"); a("s_cbranch_scc1 L_tk_spin")
    a("s_endpgm")
    a.label("L_tk_all")
    a("s_mov_b64 exec, 1")
    a("v_mov_b32 v3, 36")
    a(f"global_atomic_add v4, v3, v2, {sp(P_DBG)} sc0")
    a("s_waitcnt vmcnt(0)")
    a("v_readfirstlane_b32 s37, v4")
    a("s_mov_b32 s33, 0x7fffffff")
    for x in range(8):
        nx = a.newlabel("L_tk_x")
        a(f"v_readlane_b32 s39, v7, {x}")
        a("s_min_u32 s39, s39, 32")
        a("s_sub_u32 s40, 32, s39")
        a("s_cmp_lt_u32 s37, s40"); a(f"s_cbranch_scc0 {nx}")
        a(f"s_add_u32 s33, s39, {32*x}"); a("s_add_u32 s33, s33, s37")
        a("s_branch L_tk_have")
        a.label(nx)
        a("s_sub_u32 s37, s37, s40")
    a.label("L_tk_have")
    a("v_mov_b32 v3, 0"); a("v_mov_b32 v4, s33")
    a("ds_write_b32 v3, v4")
    a("s_waitcnt lgkmcnt(0)")
    a("s_mov_b64 exec, -1")
    a.label("L_tk_wait")
    a("s_barrier")
    a("v_mov_b32 v3, 0")
    a("ds_read_b32 v4, v3")
    a("s_waitcnt lgkmcnt(0)")
    a("v_readfirstlane_b32 s33, v4")
    a("s_barrier")
    a("s_cmp_ge_u32 s33, 256"); a("s_cbranch_scc1 L_exit")
    if tl:
        a("s_mov_b32 s3, s33"); rt_stamp(a, 0, 250)
    a("s_lshr_b32 s35, s33, 5")
    a("s_and_b32 s34, s33, 31")
    table = {XA: 'RA', XB: 'RB'}
    rest = [x for x in range(8) if x not in (XA, XB)]
    for x, r in zip(rest, ['K', 'Q', 'V', 'F0', 'F1', 'F2']): table[x] = r
    def go(role):
        return f"s_branch L_{role}" if role in roles else "s_endpgm"
    for x in range(8):
        nx = a.newlabel("L_dx")
        a(f"s_cmp_eq_u32 s35, {x}"); a(f"s_cbranch_scc0 {nx}")
        r = table[x]
        if r in ('K', 'V', 'Q'): a(go(r))
        elif r == 'RA': a("s_mov_b32 s35, 0"); a(go('R'))
        elif r == 'RB': a("s_mov_b32 s35, 1"); a(go('R'))
        elif r in ('F0', 'F1', 'F2'):
            st = int(r[1]); n2 = a.newlabel("L_dh")
            a("s_cmp_lt_u32 s34, 20"); a(f"s_cbranch_scc0 {n2}")
            a(f"s_mov_b32 s35, {st}"); a(f"s_add_u32 s59, s34, {20*st}"); a("s_branch L_LN")
            a.label(n2)
            if st == 0:
                a("s_sub_u32 s34, s34, 20"); a(go('H'))
            elif st == 1:
                n3 = a.newlabel("L_da")
                a("s_cmp_lt_u32 s34, 22"); a(f"s_cbranch_scc0 {n3}")
                a("s_sub_u32 s34, s34, 8"); a(go('H'))
                a.label(n3)
                a("s_sub_u32 s34, s34, 22"); a(go('A'))
            else:
                a("s_sub_u32 s34, s34, 10")
                n4 = a.newlabel("L_dl")
                a("s_cmp_lt_u32 s34, 16"); a(f"s_cbranch_scc0 {n4}")
                a(go('A'))
                a.label(n4)
                a("s_add_u32 s59, s34, 44")
                a("s_cmp_lt_u32 s59, 64"); a("s_cbranch_scc1 L_LN")
                a("s_endpgm")
        a.label(nx)
    a.label("L_exit")
    a("s_endpgm")

def build(roles=('K', 'V', 'Q', 'H', 'R', 'A', 'F'), fake_xcc=None, opts=None):
    opts = opts or {}
    b = Asm()
    gen_dispatch(b, roles, fake_xcc, opts.get('tl', 0))
    gen_ln(b, opts.get('tl', 0))
    if 'F' not in roles:
        b.label("L_F_main"); b("s_endpgm")
    for k in ('K', 'V', 'Q', 'H'):
        if k in roles: gen_proj(b, k, opts)
    if 'R' in roles:
        from gen_r import gen_r
        gen_r(b, opts)
    if 'A' in roles:
        from gen_att import gen_att
        gen_att(b, opts)
    if 'F' in roles:
        from gen_fin import gen_fin
        gen_fin(b, opts)
    mega_lines = b.finish()
    hdr = open('cdna_kernels/' + NAME + '.s.ref').read().split('\n')
    top = []
    for l in hdr:
        if l.startswith('; @launch') or l.startswith('; Override') or l.startswith('; grid=ceil'): continue
        if not l.startswith(';'): break
        top.append(l)
    top.append("; @launch grid=(256,1,1) block=(256,1,1) lds=163840")
    KN = NAME + "_kernel"
    out = top + ['.amdgcn_target "amdgcn-amd-amdhsa--gfx950"', '.text']
    out += ['.globl ' + KN, '.p2align 8', f'.type {KN},@function', KN + ':'] + mega_lines
    out += ['.section .rodata,"a"', '.p2align 6', f'.amdhsa_kernel {KN}', '  .amdhsa_next_free_vgpr 512', '  .amdhsa_next_free_sgpr 102', '  .amdhsa_accum_offset 256',
            '  .amdhsa_group_segment_fixed_size 0', '  .amdhsa_kernarg_size 112', '  .amdhsa_user_sgpr_count 2',
            '  .amdhsa_user_sgpr_kernarg_segment_ptr 1', '  .amdhsa_system_sgpr_workgroup_id_x 1', '.end_amdhsa_kernel']
    print(f"; max {b.maxreg} nops {b.nops_inserted} lines {len(out)}", file=sys.stderr)
    return '\n'.join(out) + '\n'

if __name__ == '__main__':
    roles = sys.argv[2].split(',') if len(sys.argv) > 2 else ['K', 'V', 'Q', 'H', 'R', 'A', 'F']
    opts = {}
    for kv in sys.argv[3:]:
        k, v = kv.split('='); opts[k] = int(v)
    fake = None
    if opts.get('fake') == 1:
        def fake(a):
            a("s_mul_hi_u32 s36, s2, 0x1c71c71d"); a("s_mul_i32 s36, s36, 9"); a("s_sub_u32 s36, s2, s36")
    if opts.get('fake') == 2:
        def fake(a):
            a("s_and_b32 s36, s2, 7"); a("s_add_u32 s36, s36, 8")
    src = build(roles, fake_xcc=fake, opts=opts)
    open(sys.argv[1], 'w').write(src)
```

```python
from gen_common import *
from gen_init import f32bits
from gen_proj import flag_store

L_WO  = 0
L_WS  = 81920
L_IMG = 131072
L_KTB = 141312
L_XIM = 157696
L_OEX = 161792
L_VEX = 162816
L_STG = 81920

V_IDX, V_L16, V_L8, V_AT0, V_AT1, V_XWQ, V_XWK, V_XR, V_KT, V_WO, V_WS, V_OEW, V_OER, V_VEW, V_VER, V_IW0, V_IW2, V_RL = range(1, 19)
V_ONES = 20
V_SEL  = 24
V_CNEG = 28
ACC = 32
V_VT = 52
POOL = 56
AF = POOL; VS = POOL + 40; KT = POOL + 56; XF = POOL + 88
WREG = 160

def wfrag(tile, c):
    order = []
    for cc in range(10):
        for t in ('q0', 'q1', 'k0'): order.append((t, cc))
    for cc in range(4): order.append(('k1', cc))
    for cc in range(10): order.append(('v', cc))
    if (tile, c) not in order: return None
    f = order.index((tile, c))
    return ('a', 8*f) if f < 32 else ('v', WREG + 8*(f - 32))
def wr(tile, c, lo=0, n=8):
    k, b = wfrag(tile, c)
    return f"{k}[{b+lo}:{b+lo+n-1}]"

S_W, S_J, S_G = 32, 34, 35
S_H, S_HF, S_PROD, S_RID, S_RACT, S_STEP = 36, 37, 38, 39, 40, 41
S_T0, S_T1, S_T2, S_T3 = 44, 45, 46, 47
S_PST = 48
S_RL  = 50
S_PUBR, S_PUBL = 58, 60
S_GL, S_GR = 62, 64
S_KT, S_VT, S_XM, S_VM = 66, 68, 70, 72
S_SPIN = 74
S_XMN, S_VMN = 76, 78
S_POI_OLD = 76
S_PXR, S_PXL = 84, 86
S_C = 88
S_LO, S_HI = 90, 91
S_EXO = 92
S_NEED = 94
S_XMW = 95
S_WBIT = 87
S_EXX = 84
S_HW, S_HR = 80, 82
S_POL = 86
S_OFFR = 85
S_DUM = 42

SPIN_MAX = 0x20000

def gen_r(a, opts):
    ROT[0] = opts.get('rot', 0)
    D_RED = opts.get('d_red', 5); D_LOC = opts.get('d_loc', 2); D_REM = opts.get('d_rem', 1)
    prof = opts.get('prof', False)
    a.label("L_R")
    a("v_and_b32 v1, 63, v0")
    a(f"s_lshr_b32 s{S_T0}, s{S_J}, 1"); a(f"s_lshl_b32 s{S_H}, s{S_G}, 4"); a(f"s_add_u32 s{S_H}, s{S_H}, s{S_T0}")
    a(f"s_and_b32 s{S_HF}, s{S_J}, 1")
    a(f"s_lshl_b32 s{S_PROD}, s{S_G}, 5"); a(f"s_add_u32 s{S_PROD}, s{S_PROD}, s{S_J}")
    a(f"s_lshl_b32 s{S_RID}, s{S_W}, 5"); a(f"s_add_u32 s{S_RID}, s{S_RID}, s{S_J}")
    a(f"s_cmp_lt_u32 s{S_RID}, 80"); a(f"s_cselect_b32 s{S_RACT}, 1, 0")
    init_handoff(a)
    prologue_weights(a)
    setup_regs(a)
    load_mem0(a)
    rt_stamp(a, 1, 140, opts.get('tl', 0))
    census(a)
    body(a, opts, slow=False)
    body(a, opts, slow=True)

def init_handoff(a):
    for r in range(4, 8): a(f"v_mov_b32 v{r}, -1")
    a("v_lshlrev_b32 v2, 4, v0")
    a(f"s_mul_i32 s{S_T0}, s{S_PROD}, 10240")
    sadd64(a, 48, P_WS, WS_PART); sadd64(a, 48, 48, f"s{S_T0}")
    a("v_add_u32 v3, 4096, v2"); a("v_min_u32 v8, 2032, v2"); a("v_add_u32 v8, 8192, v8")
    for sl in range(2):
        for v in (2, 3, 8): a(f"global_store_dwordx4 v{v}, v[4:7], s[48:49] sc1")
        if sl == 0: sadd64(a, 48, 48, 64*10240)
    a(f"s_lshl_b32 s{S_T0}, s{S_G}, 15"); a(f"s_lshl_b32 s{S_T1}, s{S_J}, 10"); a(f"s_add_u32 s{S_T0}, s{S_T0}, s{S_T1}")
    a(f"s_and_b32 s{S_T1}, s{S_W}, 1"); a(f"s_lshl_b32 s{S_T1}, s{S_T1}, 16"); a(f"s_add_u32 s{S_T0}, s{S_T0}, s{S_T1}")
    sadd64(a, 48, P_WS, WS_XPR); sadd64(a, 48, 48, f"s{S_T0}")
    a("v_lshlrev_b32 v9, 4, v1")
    a("global_store_dwordx4 v9, v[4:7], s[48:49] sc1")
    a(f"s_mul_i32 s{S_T0}, s{S_G}, 10240"); a(f"s_mul_i32 s{S_T1}, s{S_J}, 320"); a(f"s_add_u32 s{S_T0}, s{S_T0}, s{S_T1}")
    a(f"s_and_b32 s{S_T1}, s{S_W}, 1"); a(f"s_mul_i32 s{S_T1}, s{S_T1}, 20480"); a(f"s_add_u32 s{S_T0}, s{S_T0}, s{S_T1}")
    sadd64(a, 48, P_WS, WS_XPL); sadd64(a, 48, 48, f"s{S_T0}")
    a("v_min_u32 v9, 304, v9")
    a("global_store_dwordx4 v9, v[4:7], s[48:49] sc1")

def prologue_weights(a):
    QB = [0, 40960, 81920, 122880]
    a(f"s_lshl_b32 s{S_T0}, s{S_H}, 8")
    sadd64(a, 50, P_WQ, f"s{S_T0}"); sadd64(a, 52, P_WK, f"s{S_T0}")
    a(f"s_lshl_b32 s{S_T1}, s{S_HF}, 7"); a(f"s_add_u32 s{S_T0}, s{S_T0}, s{S_T1}")
    sadd64(a, 54, P_WV, f"s{S_T0}")
    a("v_lshrrev_b32 v2, 4, v1"); a("v_and_b32 v3, 15, v1")
    a("v_lshrrev_b32 v4, 1, v3"); a("v_and_b32 v5, 1, v3")
    a("v_and_b32 v6, 1, v2")
    a(f"s_and_b32 s{S_T0}, s{S_W}, 1"); a(f"s_lshl_b32 s{S_T0}, s{S_T0}, 2")
    a(f"v_or_b32 v6, s{S_T0}, v6")
    a(f"s_lshl_b32 s{S_T1}, s{S_W}, 4")
    a(f"v_add_u32 v7, s{S_T1}, v2")
    for i in range(4):
        a(f"v_or_b32 v8, {(i & 1) << 1}, v6"); a("v_xor_b32 v8, v8, v4"); a("v_lshl_add_u32 v8, v8, 1, v5")
        a(f"v_add_u32 v9, {4*i}, v7"); a("v_lshlrev_b32 v9, 13, v9"); a(f"v_lshl_add_u32 v{10+i}, v8, 4, v9")
    a("v_lshrrev_b32 v2, 3, v1"); a("v_and_b32 v3, 7, v1")
    a("v_lshrrev_b32 v4, 1, v3"); a("v_and_b32 v5, 1, v3")
    a("v_bfe_u32 v6, v2, 2, 1")
    a(f"s_and_b32 s{S_T0}, s{S_W}, 1"); a(f"s_lshl_b32 s{S_T0}, s{S_T0}, 1"); a(f"v_or_b32 v6, s{S_T0}, v6")
    a("v_xor_b32 v6, v6, v4"); a("v_lshl_add_u32 v6, v6, 1, v5")
    for i in range(2):
        a(f"s_lshl_b32 s{S_T1}, s{S_W}, 4"); a(f"s_add_u32 s{S_T1}, s{S_T1}, {8*i}")
        a(f"v_add_u32 v9, s{S_T1}, v2"); a("v_lshlrev_b32 v9, 13, v9"); a(f"v_lshl_add_u32 v{14+i}, v6, 4, v9")
    def qkv_dma(buf):
        a(f"s_lshl_b32 s{S_T0}, s{S_W}, 12"); a(f"s_add_u32 s{S_T0}, s{S_T0}, {buf}")
        for i in range(4):
            a(f"s_add_u32 m0, s{S_T0}, {1024*i}"); a(f"global_load_lds_dwordx4 v{10+i}, s[50:51]")
        for i in range(4):
            a(f"s_add_u32 m0, s{S_T0}, {16384 + 1024*i}"); a(f"global_load_lds_dwordx4 v{10+i}, s[52:53]")
        a(f"s_lshl_b32 s{S_T0}, s{S_W}, 11"); a(f"s_add_u32 s{S_T0}, s{S_T0}, {buf + 32768}")
        for i in range(2):
            a(f"s_add_u32 m0, s{S_T0}, {1024*i}"); a(f"global_load_lds_dwordx4 v{14+i}, s[54:55]")
        for p in (50, 52, 54): sadd64(a, p, p, 64*8192)
    a(f"s_lshl_b32 s{S_T0}, s{S_H}, 7"); a(f"s_lshl_b32 s{S_T1}, s{S_HF}, 6"); a(f"s_add_u32 s{S_T0}, s{S_T0}, s{S_T1}")
    a(f"s_mul_i32 s{S_T0}, s{S_T0}, 1280")
    sadd64(a, 48, P_WO, f"s{S_T0}")
    a(f"s_mul_i32 s{S_T2}, s{S_W}, 1280"); a(f"v_add_u32 v16, s{S_T2}, v1")
    a(f"s_mul_i32 s{S_T2}, s{S_W}, 20480"); a(f"s_add_u32 s{S_T2}, s{S_T2}, {L_STG}")
    a(f"s_mov_b32 s{S_T3}, 52429")
    for i in range(20):
        a(f"v_mul_lo_u32 v17, v16, s{S_T3}"); a("v_lshrrev_b32 v17, 22, v17")
        a("v_mul_u32_u24 v18, 80, v17"); a("v_sub_u32 v18, v16, v18")
        a("v_and_b32 v19, 1, v17"); a("v_bfe_u32 v20, v17, 2, 2"); a("v_lshl_add_u32 v19, v20, 1, v19")
        a("v_lshlrev_b32 v19, 1, v19"); a("v_xor_b32 v18, v18, v19")
        a("v_mul_u32_u24 v17, 1280, v17"); a("v_lshl_add_u32 v17, v18, 4, v17")
        a(f"s_add_u32 m0, s{S_T2}, {1024*i}")
        a("global_load_lds_dwordx4 v17, s[48:49]")
        a("v_add_u32 v16, 64, v16")
    qkv_dma(QB[0]); qkv_dma(QB[1])
    a("v_lshrrev_b32 v5, 4, v1")
    a("v_bfe_u32 v6, v1, 2, 2")
    a("v_lshrrev_b32 v7, 1, v5"); a("v_lshlrev_b32 v7, 4, v7")
    a("v_and_b32 v8, 1, v5"); a("v_lshl_add_u32 v7, v8, 2, v7")
    a("v_and_b32 v9, 1, v6"); a("v_add_u32 v7, v7, v9")
    a("v_lshrrev_b32 v16, 1, v6"); a("v_lshl_add_u32 v7, v16, 3, v7")
    a("v_mul_u32_u24 v7, 1280, v7")
    a("v_and_b32 v17, 3, v1"); a("v_lshl_add_u32 v7, v17, 3, v7"); a(f"v_add_u32 v7, {L_STG}, v7")
    a("v_lshl_add_u32 v9, v8, 1, v9"); a("v_lshl_add_u32 v9, v16, 2, v9")
    a("s_waitcnt vmcnt(20)")
    a("s_barrier")
    a(f"s_cmp_eq_u32 s{S_W}, 0"); a("s_cbranch_scc0 L_R_noid")
    init_done(a, 28, DBG_RINIT)
    a.label("L_R_noid")
    for tt in range(10):
        a(f"s_mul_i32 s{S_T0}, s{S_W}, 10"); a(f"s_add_u32 s{S_T0}, s{S_T0}, {tt}")
        a(f"s_and_b32 s{S_T1}, s{S_T0}, 7"); a(f"s_and_b32 s{S_T2}, s{S_T0}, 0xf8")
        a(f"v_xor_b32 v17, s{S_T1}, v9"); a(f"v_add_u32 v17, s{S_T2}, v17"); a("v_lshl_add_u32 v17, v17, 5, v7")
        d = 30 + 8*tt
        for hi in range(2):
            for jq in range(2):
                a(f"ds_read_b64_tr_b16 v[{d+4*hi+2*jq}:{d+4*hi+2*jq+1}], v17 offset:{40960*hi + 2560*jq}")
        if tt % 3 == 2: a("s_waitcnt lgkmcnt(0)")
    a("s_waitcnt lgkmcnt(0)")
    a("s_barrier")
    qkv_dma(QB[2]); qkv_dma(QB[3])
    a("v_lshrrev_b32 v5, 4, v1"); a("v_bfe_u32 v6, v1, 2, 2")
    a("v_lshlrev_b32 v7, 2, v5"); a("v_and_b32 v8, 1, v6"); a("v_add_u32 v7, v7, v8"); a("v_lshrrev_b32 v9, 1, v6"); a("v_lshl_add_u32 v7, v9, 4, v7")
    a("v_and_b32 v16, 1, v5")
    a("v_lshl_add_u32 v17, v16, 1, v8"); a("v_lshl_add_u32 v17, v9, 2, v17")
    a("v_lshl_add_u32 v21, v9, 1, v16")
    a("v_and_b32 v22, 3, v1")
    a("v_lshlrev_b32 v23, 8, v7"); a("v_lshl_add_u32 v23, v22, 3, v23")
    for t in range(2):
        a(f"s_lshl_b32 s{S_T0}, s{S_W}, 1"); a(f"s_add_u32 s{S_T0}, s{S_T0}, {t}")
        a(f"v_xor_b32 v24, s{S_T0}, v17"); a(f"v_lshl_add_u32 v{18+t}, v24, 5, v23")
    a("v_lshlrev_b32 v23, 7, v7"); a("v_lshl_add_u32 v23, v22, 3, v23"); a("v_add_u32 v23, 32768, v23")
    a(f"v_xor_b32 v24, s{S_W}, v21"); a("v_lshl_add_u32 v20, v24, 5, v23")
    KTMP = 110
    for c in range(10):
        buf = QB[c & 3]
        inflight = min(3, 9 - c)
        a(f"s_waitcnt vmcnt({10*inflight})")
        a("s_barrier")
        for r in range(3): a(f"v_add_u32 v{25+r}, {buf}, v{18+r}")
        lgp = Cnt(a, "lgkmcnt", 15)
        for tile, areg, img in (('q0', 25, 0), ('q1', 26, 0), ('k0', 25, 16384), ('k1', 26, 16384), ('v', 27, 0)):
            for hi in range(2):
                for jq in range(2):
                    lo = 4*hi + 2*jq
                    if wfrag(tile, c) is None: dst = f"v[{KTMP+8*(c-4)+lo}:{KTMP+8*(c-4)+lo+1}]"
                    else: dst = wr(tile, c, lo, 2)
                    off = img + (hi*4096 + jq*256 if tile == 'v' else hi*8192 + jq*512)
                    lgp.issue(0, f"ds_read_b64_tr_b16 {dst}, v{areg} offset:{off}")
        lgp.waitall()
        a("s_barrier")
        if c + 4 < 10: qkv_dma(buf)
    a(f"s_mul_i32 s{S_T0}, s{S_W}, 20480"); a("v_lshlrev_b32 v12, 4, v1"); a(f"v_add_u32 v12, s{S_T0}, v12")
    for tt in range(10):
        d = 30 + 8*tt
        a(f"ds_write_b128 v12, v[{d}:{d+3}] offset:{2048*tt}")
        a(f"ds_write_b128 v12, v[{d+4}:{d+7}] offset:{2048*tt+1024}")
        if tt % 5 == 4: a("s_waitcnt lgkmcnt(0)")
    a(f"s_mul_i32 s{S_T0}, s{S_W}, 12288"); a(f"s_add_u32 s{S_T0}, s{S_T0}, {L_WS}")
    a("v_lshlrev_b32 v12, 4, v1"); a(f"v_add_u32 v12, s{S_T0}, v12")
    for k in range(6):
        a(f"ds_write_b128 v12, v[{KTMP+8*k}:{KTMP+8*k+3}] offset:{2048*k}")
        a(f"ds_write_b128 v12, v[{KTMP+8*k+4}:{KTMP+8*k+7}] offset:{2048*k+1024}")
    a("s_waitcnt lgkmcnt(0)")

ROT = [0]
def gather_block(a, sreg):
    if ROT[0]:
        a(f"s_add_u32 s{sreg}, s{S_W}, s{S_J}"); a(f"s_and_b32 s{sreg}, s{sreg}, 3")
    else:
        a(f"s_mov_b32 s{sreg}, s{S_W}")

def setup_regs(a):
    LN = 19
    a(f"v_mov_b32 v{LN}, v1")
    T = 56
    a(f"v_lshrrev_b32 v{T}, 4, v{LN}")
    a(f"v_and_b32 v{T+1}, 15, v{LN}")
    a(f"v_bfe_u32 v{T+2}, v{LN}, 2, 2")
    a(f"v_and_b32 v{T+3}, 3, v{LN}")
    G, N, R_, CC = T, T+1, T+2, T+3
    t0, t1, t2 = T+4, T+5, T+6
    a(f"v_and_b32 v{t0}, 2, v{LN}"); a(f"v_cmp_eq_u32 vcc, 0, v{t0}")
    a(f"v_mov_b32 v{t1}, 0xeeeeeeee"); a(f"v_mov_b32 v{t2}, 0x44444444")
    a(f"v_cndmask_b32 v{V_IDX}, v{t1}, v{t2}, vcc")
    a(f"v_lshlrev_b32 v{V_L16}, 4, v{LN}"); a(f"v_lshlrev_b32 v{V_L8}, 3, v{LN}")
    a(f"v_lshrrev_b32 v{t0}, 1, v{G}"); a(f"v_lshlrev_b32 v{t0}, 9, v{t0}")
    a(f"v_lshl_add_u32 v{t0}, v{CC}, 7, v{t0}")
    a(f"v_and_b32 v{t1}, 1, v{G}"); a(f"v_lshl_add_u32 v{t0}, v{t1}, 6, v{t0}")
    a(f"v_lshl_add_u32 v{t0}, v{R_}, 3, v{t0}"); a(f"v_add_u32 v{t0}, {L_IMG}, v{t0}")
    a(f"v_lshrrev_b32 v{t1}, 1, v{CC}")
    a(f"v_lshl_add_u32 v{V_AT0}, v{t1}, 5, v{t0}")
    a(f"v_xor_b32 v{t1}, 1, v{t1}"); a(f"v_lshl_add_u32 v{V_AT1}, v{t1}, 5, v{t0}")
    a(f"s_lshl_b32 s{S_T0}, s{S_W}, 5"); a(f"v_add_u32 v{t0}, s{S_T0}, v{N}")
    a(f"v_lshrrev_b32 v{t1}, 2, v{t0}"); a(f"v_lshrrev_b32 v{t2}, 1, v{G}"); a(f"v_add_u32 v{t1}, v{t1}, v{t2}")
    a(f"v_lshlrev_b32 v{t0}, 5, v{t0}"); a(f"v_and_b32 v{t2}, 1, v{G}"); a(f"v_lshl_add_u32 v{t0}, v{t2}, 2, v{t0}"); a(f"v_add_u32 v{t0}, {L_XIM}, v{t0}")
    a(f"v_and_b32 v{t2}, 3, v{t1}"); a(f"v_lshl_add_u32 v{V_XWQ}, v{t2}, 3, v{t0}")
    a(f"v_add_u32 v{t1}, 2, v{t1}"); a(f"v_and_b32 v{t2}, 3, v{t1}"); a(f"v_lshl_add_u32 v{V_XWK}, v{t2}, 3, v{t0}")
    a(f"v_lshl_add_u32 v{t0}, v{G}, 2, v{R_}"); a(f"v_lshlrev_b32 v{t0}, 5, v{t0}")
    a(f"v_add_u32 v{t1}, v{CC}, v{G}"); a(f"v_and_b32 v{t1}, 3, v{t1}"); a(f"v_lshl_add_u32 v{t0}, v{t1}, 3, v{t0}")
    a(f"v_add_u32 v{V_XR}, {L_XIM}, v{t0}")
    a(f"v_add_u32 v{V_KT}, {L_KTB}, v{V_L16}")
    a(f"s_mul_i32 s{S_T0}, s{S_W}, 20480"); a(f"v_add_u32 v{V_WO}, s{S_T0}, v{V_L16}")
    a(f"s_mul_i32 s{S_T0}, s{S_W}, 12288"); a(f"s_add_u32 s{S_T0}, s{S_T0}, {L_WS}"); a(f"v_add_u32 v{V_WS}, s{S_T0}, v{V_L16}")
    a(f"s_lshl_b32 s{S_T0}, s{S_W}, 1"); a(f"v_lshrrev_b32 v{t0}, 1, v{G}"); a(f"v_add_u32 v{t0}, s{S_T0}, v{t0}")
    a(f"v_and_b32 v{t1}, 6, v{N}"); a(f"v_xor_b32 v{t0}, v{t0}, v{t1}"); a(f"v_lshlrev_b32 v{t0}, 4, v{t0}")
    a(f"v_and_b32 v{t1}, 7, v{N}"); a(f"v_lshl_add_u32 v{t0}, v{t1}, 7, v{t0}")
    a(f"v_and_b32 v{t1}, 1, v{G}"); a(f"v_lshl_add_u32 v{t0}, v{t1}, 3, v{t0}"); a(f"v_add_u32 v{V_OEW}, {L_OEX}, v{t0}")
    a(f"v_lshrrev_b32 v{t0}, 2, v{N}"); a(f"v_lshlrev_b32 v{t0}, 1, v{t0}"); a(f"v_and_b32 v{t1}, 1, v{N}"); a(f"v_add_u32 v{t0}, v{t0}, v{t1}")
    a(f"v_bfe_u32 v{t1}, v{N}, 1, 1"); a(f"v_lshl_add_u32 v{t1}, v{G}, 1, v{t1}")
    a(f"v_and_b32 v{t2}, 6, v{t0}"); a(f"v_xor_b32 v{t1}, v{t1}, v{t2}"); a(f"v_lshlrev_b32 v{t1}, 4, v{t1}")
    a(f"v_lshl_add_u32 v{t1}, v{t0}, 7, v{t1}"); a(f"v_add_u32 v{V_OER}, {L_OEX}, v{t1}")
    a(f"s_lshl_b32 s{S_T0}, s{S_W}, 8"); a(f"s_add_u32 s{S_T0}, s{S_T0}, {L_VEX}")
    a(f"v_lshlrev_b32 v{t0}, 4, v{N}"); a(f"v_add_u32 v{t0}, s{S_T0}, v{t0}")
    a(f"v_lshl_add_u32 v{V_VEW}, v{G}, 2, v{t0}")
    a(f"v_and_b32 v{t1}, 1, v{G}"); a(f"v_lshl_add_u32 v{V_VER}, v{t1}, 3, v{t0}")
    gather_block(a, S_T0)
    a(f"s_mul_i32 s{S_T0}, s{S_T0}, 2560"); a(f"s_add_u32 s{S_T0}, s{S_T0}, {L_IMG}")
    a(f"v_lshrrev_b32 v{t0}, 5, v{LN}"); a(f"v_lshlrev_b32 v{t0}, 9, v{t0}")
    a(f"v_bfe_u32 v{t1}, v{LN}, 3, 2"); a(f"v_lshl_add_u32 v{t0}, v{t1}, 7, v{t0}")
    a(f"v_lshrrev_b32 v{t1}, 1, v{t1}"); a(f"v_lshlrev_b32 v{t1}, 5, v{t1}")
    a(f"v_and_b32 v{t2}, 7, v{LN}"); a(f"v_lshlrev_b32 v{t2}, 4, v{t2}"); a(f"v_xor_b32 v{t2}, v{t2}, v{t1}")
    a(f"v_add_u32 v{t0}, v{t0}, v{t2}"); a(f"v_add_u32 v{V_IW0}, s{S_T0}, v{t0}")
    a(f"v_lshrrev_b32 v{t1}, 1, v{G}"); a(f"v_lshlrev_b32 v{t1}, 5, v{t1}"); a(f"v_lshlrev_b32 v{t2}, 3, v{N}"); a(f"v_xor_b32 v{t2}, v{t2}, v{t1}")
    a(f"v_lshl_add_u32 v{t0}, v{G}, 7, v{t2}"); a(f"v_add_u32 v{V_IW2}, s{S_T0}, v{t0}")
    a(f"v_lshrrev_b32 v{t0}, 3, v{N}"); a(f"v_lshl_add_u32 v{t0}, v{G}, 1, v{t0}"); a(f"v_mul_u32_u24 v{t0}, 10240, v{t0}")
    a(f"v_and_b32 v{t1}, 7, v{N}"); a(f"v_lshl_add_u32 v{t0}, v{t1}, 4, v{t0}")
    a(f"s_min_u32 s{S_T0}, s{S_RID}, 79"); a(f"s_lshl_b32 s{S_T0}, s{S_T0}, 7"); a(f"v_add_u32 v{V_RL}, s{S_T0}, v{t0}")
    for r in range(4): a(f"v_mov_b32 v{V_ONES+r}, 0x3f803f80")
    for k in range(4):
        a(f"v_mov_b32 v{t0}, 0")
        a(f"v_cmp_eq_u32 vcc, {2*k}, v{N}"); a(f"v_mov_b32 v{t1}, 0x3f80"); a(f"v_cndmask_b32 v{t0}, v{t0}, v{t1}, vcc")
        a(f"v_cmp_eq_u32 vcc, {2*k+1}, v{N}"); a(f"v_mov_b32 v{t1}, 0x3f800000"); a(f"v_cndmask_b32 v{V_SEL+k}, v{t0}, v{t1}, vcc")
    a(f"v_cmp_gt_u32 vcc, 2, v{G}"); a(f"v_mov_b32 v{t1}, 0xff800000"); a(f"v_mov_b32 v{t0}, 0")
    for r in range(4): a(f"v_cndmask_b32 v{V_CNEG+r}, v{t0}, v{t1}, vcc")
    a(f"s_mov_b32 s{S_C}, 0x{f32bits(128**-0.5 * 1.4426950408889634):08x}"); a(f"s_mov_b32 s{S_C+1}, s{S_C}")
    a(f"s_mov_b32 s{S_LO}, 0x00003f80"); a(f"s_mov_b32 s{S_HI}, 0x3f800000")
    a(f"s_mov_b32 s{S_EXO}, 0x00ff00ff"); a(f"s_mov_b32 s{S_EXO+1}, 0x00ff00ff")

def load_mem0(a):
    LN = 19
    T = 56
    a(f"v_bfe_u32 v{T}, v{LN}, 4, 2"); a(f"v_and_b32 v{T+1}, 15, v{LN}")
    a(f"v_mul_u32_u24 v{T+2}, 2560, v{T}")
    a(f"s_lshl_b32 s{S_T0}, s{S_W}, 5"); a(f"v_add_u32 v{T+3}, s{S_T0}, v{T+1}"); a(f"v_lshl_add_u32 v{T+2}, v{T+3}, 1, v{T+2}")
    B = 64
    for i in range(5):
        for q, off in enumerate((0, 1280, 32, 1312)):
            a(f"global_load_ushort v{B+4*i+q}, v{T+2}, {sp(P_MEM0)} offset:{256*i+off}")
    a(f"v_lshrrev_b32 v{T+3}, 1, v{T}"); a(f"v_lshlrev_b32 v{T+3}, 5, v{T+3}"); a(f"v_lshlrev_b32 v{T+4}, 3, v{T+1}"); a(f"v_xor_b32 v{T+4}, v{T+4}, v{T+3}")
    a(f"v_lshl_add_u32 v{T+4}, v{T}, 7, v{T+4}"); a(f"s_lshl_b32 s{S_T0}, s{S_W}, 9"); a(f"s_add_u32 s{S_T0}, s{S_T0}, {L_IMG}"); a(f"v_add_u32 v{T+4}, s{S_T0}, v{T+4}")

def finish_mem0(a):
    T = 56; B = 64
    for i in range(5):
        a(f"v_lshl_or_b32 v{B+4*i}, v{B+4*i+1}, 16, v{B+4*i}")
        a(f"v_lshl_or_b32 v{B+4*i+1}, v{B+4*i+3}, 16, v{B+4*i+2}")
        a(f"ds_write_b64 v{T+4}, v[{B+4*i}:{B+4*i+1}] offset:{2048*i}")

def census(a):
    from gen import XA, XB
    a(f"s_mov_b32 s{S_SPIN}, 0")
    load_tickets(a, 90, 91, 19)
    a(f"v_mov_b32 v92, {DBG_RINIT}"); a("v_cmp_eq_u32 vcc, 12, v19"); a("v_cndmask_b32 v90, v90, v92, vcc")
    a(f"global_load_dword v91, v90, {sp(P_DBG)} sc1")
    a("s_waitcnt vmcnt(0)")
    finish_mem0(a)
    a("s_branch L_R_census_chk")
    a.label("L_R_census")
    a(f"global_load_dword v91, v90, {sp(P_DBG)} sc1")
    a("s_waitcnt vmcnt(0)")
    a.label("L_R_census_chk")
    sum_tickets(a, S_T0, S_T1, 91)
    a(f"v_readlane_b32 s{S_T1}, v91, 12"); a(f"v_readlane_b32 s{S_POL}, v91, 11")
    a(f"s_cmp_ge_u32 s{S_T1}, 64"); a(f"s_cselect_b32 s{S_T0}, s{S_T0}, 0")
    a(f"s_cmp_ge_u32 s{S_T0}, 256"); a(f"s_cselect_b32 s{S_T0}, s{S_POL}, 0")
    a(f"s_cmp_lg_u32 s{S_T0}, 0"); a("s_cbranch_scc1 L_R_census_ok")
    a("s_sleep 4")
    a(f"s_add_u32 s{S_SPIN}, s{S_SPIN}, 1"); a(f"s_cmp_lt_u32 s{S_SPIN}, {SPIN_MAX}"); a("s_cbranch_scc1 L_R_census")
    a("s_endpgm")
    a.label("L_R_census_ok")
    a(f"s_cmp_eq_u32 s{S_POL}, 2"); a(f"s_cselect_b32 s{S_POL}, 8192, 0")
    a(f"v_readlane_b32 s{S_T0}, v91, {XA}"); a(f"v_readlane_b32 s{S_T1}, v91, {XB}")
    a(f"s_min_u32 s{S_T0}, s{S_T0}, s{S_T1}")
    a("s_waitcnt lgkmcnt(0)")
    a(f"s_cmp_ge_u32 s{S_T0}, 32")
    a("s_cbranch_scc0 L_Rslow_start")
    a("s_branch L_Rfast_start")

WS_DUMMY = 8 * MB
V_FLG = 0
V_FV = 19
S_OFFP = 96
S_OFFX = 97
S_TAG = 99
S_M0KT = 98
S_FM = 100

def backoff(a, n33, opts):
    if n33 <= 0: return
    if opts.get('slp', 1):
        k = (n33 * 33 + 32) // 64
        if k: a(f"s_sleep {k}")
    else:
        for _ in range(n33): a("s_nop 7")

def weave(a, mains, fillers, per=2):
    fi = 0
    for m in mains:
        m()
        k = 0
        while k < per and fi < len(fillers):
            f = fillers[fi]; fi += 1
            if f is None: break
            n = f()
            k += n if n else 1
    while fi < len(fillers):
        if fillers[fi] is not None: fillers[fi]()
        fi += 1

def body(a, opts, slow):
    P = "L_Rslow" if slow else "L_Rfast"
    LS = "sc1" if slow else ""
    D_RED = opts.get('d_red', 8); D_LOC = opts.get('d_loc', 10); D_REM = opts.get('d_rem', 0)
    stamps = opts.get('prof', False)
    prof = stamps or opts.get('cnt', False)
    PROF = [2, 26, 27, 23, 23, 23, 23, 23, 23] if not stamps else [2, 3, 4, 5, 6, 7, 23, 26, 27]; PRT = [20, 21, 22]
    fine = opts.get('fine', 0)
    def fstamp(i):
        if not fine: return
        a("s_memtime s[44:45]"); a("s_waitcnt lgkmcnt(0)")
        a("s_sub_u32 s45, s44, s33"); a(f"s_add_u32 s{PROF[i]}, s{PROF[i]}, s45")
        a("s_mov_b32 s33, s44")
    def stamp(i):
        if not stamps: return
        if fine and i is not None:
            i = {0: 8, 1: 8, 2: 8, 3: 8, 4: 8, 5: 8, 6: 8, 7: 8, 8: 8}[i]
        a("s_memtime s[44:45]"); a("s_waitcnt lgkmcnt(0)")
        if i is not None:
            a("s_sub_u32 s45, s44, s33"); a(f"s_add_u32 s{PROF[i]}, s{PROF[i]}, s45")
        a("s_mov_b32 s33, s44")
    I = lambda t: (lambda: a(t))
    RT = {'A': 86, 'B': 42, 'C': 22, 'D': 28, 'E': 6, 'F': 24, 'G': 20, 'H': None, 'I': 26, 'J': 2, 'K': 4}
    rt_on = opts.get('rt', 0)
    def rt(k):
        if rt_on and RT[k] is not None: a(f"s_memrealtime s[{RT[k]}:{RT[k]+1}]")
    B_PST, B_RL, B_PUBR, B_PUBL, B_GL, B_GR = 8, 10, 12, 14, 16, 18
    a.label(P + "_start")
    if prof:
        for r in PROF + PRT: a(f"s_mov_b32 s{r}, 0")
    a(f"s_mov_b32 s{S_STEP}, 0"); a(f"s_mov_b32 s{S_OFFP}, 0"); a(f"s_mov_b32 s{S_OFFX}, 0"); a(f"s_mov_b32 s{S_TAG}, 0")
    a(f"s_lshl_b32 s{S_T0}, s{S_H}, 13")
    sadd64(a, S_KT, P_WS, WS_KT); sadd64(a, S_KT, S_KT, f"s{S_T0}"); a(f"s_lshl_b32 s{S_T1}, s{S_W}, 11"); sadd64(a, S_KT, S_KT, f"s{S_T1}")
    sadd64(a, S_VT, P_WS, WS_VT); sadd64(a, S_VT, S_VT, f"s{S_T0}")
    a(f"s_lshl_b32 s{S_T1}, s{S_HF}, 2"); a(f"s_add_u32 s{S_T1}, s{S_T1}, s{S_W}"); a(f"s_lshl_b32 s{S_T2}, s{S_T1}, 10"); sadd64(a, S_VT, S_VT, f"s{S_T2}")
    a(f"s_lshl_b32 s{S_T0}, s{S_H}, 12")
    sadd64(a, S_XM, P_WS, WS_XM); sadd64(a, S_XM, S_XM, f"s{S_T0}")
    a(f"s_and_b32 s{S_XMW}, s{S_W}, 1"); a(f"s_lshl_b32 s{S_T3}, s{S_HF}, 1"); a(f"s_add_u32 s{S_XMW}, s{S_XMW}, s{S_T3}"); a(f"s_lshl_b32 s{S_XMW}, s{S_XMW}, 10")
    sadd64(a, S_XM, S_XM, f"s{S_XMW}")
    sadd64(a, S_VM, P_WS, WS_VM); sadd64(a, S_VM, S_VM, f"s{S_T0}"); a(f"s_lshl_b32 s{S_T2}, s{S_T1}, 9"); sadd64(a, S_VM, S_VM, f"s{S_T2}")
    a(f"s_lshl_b32 s{S_T0}, s{S_H}, 1"); a(f"s_add_u32 s{S_T0}, s{S_T0}, s{S_HF}"); a(f"s_lshl_b32 s{S_T0}, s{S_T0}, 6"); a(f"s_add_u32 s{S_T0}, s{S_T0}, {FM_OFF}")
    sadd64(a, S_FM, P_WS, f"s{S_T0}")
    a(f"v_lshrrev_b32 v56, 4, v{V_L16}")
    a(f"v_and_b32 v57, 3, v56"); a("v_lshlrev_b32 v57, 2, v57"); a("v_bfe_u32 v58, v56, 2, 1"); a(f"v_mul_u32_u24 v58, {FV_OFF}, v58"); a("v_add_u32 v57, v57, v58")
    a(f"s_lshl_b32 s{S_T0}, s{S_H}, 6"); a(f"v_add_u32 v{V_FV}, s{S_T0}, v57")
    a(f"s_mul_i32 s{S_T1}, s{S_PROD}, 10240"); a(f"s_mul_i32 s{S_T2}, s{S_W}, 2560"); a(f"s_add_u32 s{S_T1}, s{S_T1}, s{S_T2}")
    sadd64(a, B_PST, P_WS, WS_PART); sadd64(a, B_PST, B_PST, f"s{S_T1}")
    a(f"s_mul_i32 s{S_T1}, s{S_G}, {32*10240}"); a(f"s_add_u32 s{S_T1}, s{S_T1}, {WS_PART}")
    a(f"s_cmp_eq_u32 s{S_RACT}, 0"); a(f"s_cselect_b32 s{S_T1}, {WS_DUMMY}, s{S_T1}")
    sadd64(a, B_RL, P_WS, f"s{S_T1}")
    a(f"s_min_u32 s{S_T3}, s{S_RID}, 79")
    a(f"s_mul_i32 s{S_T1}, s{S_G}, 10240"); a(f"s_lshl_b32 s{S_T2}, s{S_T3}, 7"); a(f"s_add_u32 s{S_T2}, s{S_T2}, s{S_T1}"); a(f"s_add_u32 s{S_T2}, s{S_T2}, {WS_XPL}")
    a(f"s_lshl_b32 s{S_T0}, s{S_T3}, 7")
    a(f"s_sub_u32 s{S_T1}, s{S_T0}, {60*128}"); a(f"s_add_u32 s{S_T1}, s{S_T1}, 16384")
    a(f"s_cmp_ge_u32 s{S_T3}, 60"); a(f"s_cselect_b32 s{S_T0}, s{S_T1}, s{S_T0}")
    a(f"s_lshl_b32 s{S_T1}, s{S_G}, 15"); a(f"s_add_u32 s{S_T0}, s{S_T0}, s{S_T1}"); a(f"s_add_u32 s{S_T0}, s{S_T0}, s{S_POL}"); a(f"s_add_u32 s{S_T0}, s{S_T0}, {WS_XPR}")
    a(f"s_lshl_b32 s{S_T3}, s{S_PROD}, 8"); a(f"s_add_u32 s{S_T3}, s{S_T3}, {WS_DUMMY + 2*MB}")
    a(f"s_cmp_eq_u32 s{S_RACT}, 0"); a(f"s_cselect_b32 s{S_T0}, s{S_T3}, s{S_T0}"); a(f"s_cselect_b32 s{S_T2}, s{S_T3}, s{S_T2}")
    sadd64(a, B_PUBR, P_WS, f"s{S_T0}"); sadd64(a, B_PUBL, P_WS, f"s{S_T2}")
    gather_block(a, S_T2)
    a(f"s_mul_i32 s{S_T1}, s{S_G}, 10240"); a(f"s_mul_i32 s{S_T3}, s{S_T2}, 2560"); a(f"s_add_u32 s{S_T0}, s{S_T1}, s{S_T3}"); a(f"s_add_u32 s{S_T0}, s{S_T0}, {WS_XPL}")
    sadd64(a, B_GL, P_WS, f"s{S_T0}")
    a(f"s_cmp_eq_u32 s{S_T2}, 3"); a(f"s_cselect_b32 s{S_T3}, 16384, s{S_T3}")
    a(f"s_xor_b32 s{S_T1}, s{S_G}, 1"); a(f"s_lshl_b32 s{S_T1}, s{S_T1}, 15"); a(f"s_add_u32 s{S_T0}, s{S_T1}, s{S_T3}"); a(f"s_add_u32 s{S_T0}, s{S_T0}, s{S_POL}"); a(f"s_add_u32 s{S_T0}, s{S_T0}, {WS_XPR}")
    sadd64(a, B_GR, P_WS, f"s{S_T0}")
    a(f"s_mov_b32 s{S_OFFR}, 0")
    a("s_mov_b32 s24, -1"); a("s_mov_b32 s25, 0")
    a(f"s_lshl_b32 s{S_T0}, s{S_G}, 7"); a(f"s_add_u32 s{S_T0}, s{S_T0}, {HINT_OFF}"); sadd64(a, S_HW, P_WS, f"s{S_T0}")
    a(f"s_xor_b32 s{S_T0}, s{S_G}, 1"); a(f"s_lshl_b32 s{S_T0}, s{S_T0}, 7"); a(f"s_add_u32 s{S_T0}, s{S_T0}, {HINT_OFF}"); sadd64(a, S_HR, P_WS, f"s{S_T0}")
    a(f"s_mov_b32 s{S_XMN}, s{S_XM}"); a(f"s_mov_b32 s{S_XMN+1}, s{S_XM+1}"); a(f"s_mov_b32 s{S_VMN}, s{S_VM}"); a(f"s_mov_b32 s{S_VMN+1}, s{S_VM+1}")
    a(f"s_lshl_b32 s{S_T0}, s{S_PROD}, 2"); a(f"s_add_u32 s{S_T0}, s{S_T0}, s{S_W}"); a(f"s_lshl_b32 s{S_T0}, s{S_T0}, 10"); a(f"s_add_u32 s{S_T0}, s{S_T0}, {WS_DUMMY}")
    sadd64(a, S_XM, P_WS, f"s{S_T0}"); sadd64(a, S_VM, P_WS, f"s{S_T0}")
    a(f"s_lshl_b32 s{S_WBIT}, 1, s{S_W}")
    a(f"v_mov_b32 v{XF+14}, 0")
    def flags_load(): a(f"global_load_dword v{V_FLG}, v{V_FV}, {sp(P_WS)} sc1")
    def flags_spin(need, ret):
        stub = a.newlabel(P + "_fs")
        def fn():
            a.label(stub)
            a(f"s_mov_b32 s{S_SPIN}, 0")
            a.label(stub + "_l")
            flags_load()
            a("s_waitcnt vmcnt(0)")
            a(f"v_cmp_gt_u32 vcc, s{need}, v{V_FLG}")
            a(f"s_cbranch_vccz {ret}")
            a("s_sleep 2")
            a(f"s_add_u32 s{S_SPIN}, s{S_SPIN}, 1"); a(f"s_cmp_lt_u32 s{S_SPIN}, {SPIN_MAX}"); a(f"s_cbranch_scc1 {stub}_l")
            a("s_endpgm")
        a.defer(fn)
        return stub
    def part_bases():
        sadd64(a, S_PST, B_PST, f"s{S_OFFP}")
        sadd64(a, S_RL, B_RL, f"s{S_OFFP}")
        for t in range(1, 4): sadd64(a, S_RL+2*t, S_RL+2*t-2, 81920)
    a(f"s_mov_b32 s{S_NEED}, 1")
    pr = a.newlabel(P + "_prime")
    a(f"s_branch {flags_spin(S_NEED, pr)}")
    a.label(pr)
    a(f"s_lshl_b32 s{S_T0}, s{S_W}, 11"); a(f"s_add_u32 m0, s{S_T0}, {L_KTB}"); a(f"s_add_u32 s{S_M0KT}, s{S_T0}, {L_KTB + 8192}")
    a(f"global_load_lds_dwordx4 v{V_L16}, {sp(S_KT)} sc1")
    a(f"global_load_lds_dwordx4 v{V_L16}, {sp(S_KT)} offset:1024 sc1")
    sadd64(a, S_KT, S_KT, 32*8192)
    a(f"s_mov_b32 s{S_NEED}, 2")
    part_bases()
    for r in range(0, 20, 2): a(f"v_mov_b64 v[{ACC+r}:{ACC+r+1}], 0")
    a("s_waitcnt vmcnt(0)")
    a("s_barrier")
    stamp(None)
    rt_stamp(a, 3, 140, opts.get('tl', 0))
    a.label(P + "_loop")
    if opts.get('tl', 0):
        for st, ix in ((1, 4), (2, 5), (8, 6), (32, 7)):
            sk = a.newlabel("L_tl")
            a(f"s_cmp_eq_u32 s{S_STEP}, {st}"); a(f"s_cbranch_scc0 {sk}")
            rt_stamp(a, ix, 140, True)
            a.label(sk)
    if prof:
        sk = a.newlabel("L_pr")
        a(f"s_cmp_eq_u32 s{S_STEP}, 32"); a(f"s_cbranch_scc0 {sk}")
        for r in PROF + PRT: a(f"s_mov_b32 s{r}, 0")
        a.label(sk)
    if rt_on:
        rt('A'); a("s_waitcnt lgkmcnt(0)")
    lg = Cnt(a, "lgkmcnt", 15)
    def af_read(c, h):
        v = V_AT0 if h == 0 else V_AT1
        return lambda: lg.issue(('af', c), f"ds_read_b64_tr_b16 v[{AF+4*c+2*h}:{AF+4*c+2*h+1}], v{v} offset:{1024*c}")
    def ks_read(c, h):
        b = VS + 8*(c & 1) + 4*h
        return lambda: lg.issue(('ks', c), f"ds_read_b128 v[{b}:{b+3}], v{V_WS} offset:{2048*(c-4)+1024*h}")
    def kt_read(i):
        return lambda: lg.issue(('kt', i), f"ds_read_b128 v[{KT+4*i}:{KT+4*i+3}], v{V_KT} offset:{1024*i}")
    for c in range(4):
        af_read(c, 0)(); af_read(c, 1)()
    def smf(acc, c, w): a(f"v_smfmac_f32_16x16x64_bf16 v[{acc}:{acc+3}], v[{AF+4*c}:{AF+4*c+3}], {w}, v{V_IDX}")
    slot = {}
    seq = [af_read(4, 0), af_read(4, 1), ks_read(4, 0), ks_read(4, 1), af_read(5, 0), af_read(5, 1), ks_read(5, 0), ks_read(5, 1),
           af_read(6, 0), af_read(6, 1), af_read(7, 0), af_read(7, 1), kt_read(0), kt_read(1), af_read(8, 0), af_read(8, 1),
           af_read(9, 0), af_read(9, 1), kt_read(2), None,
           ks_read(6, 0), ks_read(6, 1), kt_read(3), None, ks_read(7, 0), ks_read(7, 1), kt_read(4), None,
           ks_read(8, 0), ks_read(8, 1), kt_read(5), None, ks_read(9, 0), ks_read(9, 1), kt_read(6), kt_read(7), None, None, None, None]
    XT = XF+8; VMC = XF+12; FMV = XF+14
    def x_vt(): a(f"global_load_dwordx4 v[{V_VT}:{V_VT+3}], v{V_L16}, {sp(S_VT)} sc1")
    def x_d0(): a(f"s_mov_b32 m0, s{S_M0KT}"); a(f"global_load_lds_dwordx4 v{V_L16}, {sp(S_KT)} sc1")
    def x_d1(): a(f"global_load_lds_dwordx4 v{V_L16}, {sp(S_KT)} offset:1024 sc1")
    def x_xm(): a(f"global_store_dwordx4 v{V_L16}, v[{XT}:{XT+3}], {sp(S_XM)} sc1")
    def x_vm(): a(f"global_store_dwordx2 v{V_L8}, v[{VMC}:{VMC+1}], {sp(S_VM)} sc1")
    def x_fm():
        a("s_mov_b64 exec, 1"); a(f"global_store_dword v{V_L8}, v{FMV}, {sp(S_FM)} sc1"); a("s_mov_b64 exec, -1")
        a(f"global_load_dword v{V_FLG}, v{V_FV}, {sp(P_WS)} sc1")
    extras = [x_vt, x_d0, x_d1, x_xm, x_vm, x_fm]
    if opts.get('x_noext') == 1: extras = [x_vt, x_d0, x_d1, lambda: a('s_nop 0'), lambda: a('s_nop 0'), lambda: a('s_nop 0')]
    if opts.get('x_noext') == 2: extras = [lambda: a('s_nop 0')]*6
    X0 = opts.get('x0', 2)
    ops_per = [1, 1, 1, 1, 1, 2]
    nx22 = sum(n for e, n in enumerate(ops_per) if X0 + 4*e < 22)
    fret = a.newlabel(P + "_fret"); fstub = flags_spin(S_NEED, fret)
    KT_FIRST = 24
    seq = [af_read(4, 0), af_read(4, 1), ks_read(4, 0), ks_read(4, 1), af_read(5, 0), af_read(5, 1), ks_read(5, 0), ks_read(5, 1),
           af_read(6, 0), af_read(6, 1), af_read(7, 0), af_read(7, 1), af_read(8, 0), af_read(8, 1), af_read(9, 0), af_read(9, 1),
           None, None, None, None,
           ks_read(6, 0), ks_read(6, 1), kt_read(0), kt_read(1), ks_read(7, 0), ks_read(7, 1), kt_read(2), kt_read(3),
           ks_read(8, 0), ks_read(8, 1), kt_read(4), kt_read(5), ks_read(9, 0), ks_read(9, 1), kt_read(6), kt_read(7), None, None, None, None]
    k = 0
    for c in range(10):
        for t, tile in enumerate(('q0', 'q1', 'k0', 'k1')):
            if t == 0: lg.wait(('af', c))
            if tile == 'k1' and c >= 4:
                lg.wait(('ks', c)); b = VS + 8*(c & 1)
                smf(ACC+12, c, f"v[{b}:{b+7}]")
            else:
                smf(ACC+4*t, c, wr(tile, c))
            if k == 0:
                a(f"v_cmp_gt_u32 vcc, s{S_NEED}, v{V_FLG}")
            if k == 1:
                a(f"s_cbranch_vccnz {fstub}"); a.label(fret)
            if k == 22: a(f"s_waitcnt vmcnt({nx22 if not opts.get('x_noext') else 0})")
            if seq[k] is not None: seq[k]()
            if k >= X0 and (k - X0) % 4 == 0 and (k - X0) // 4 < len(extras):
                extras[(k - X0) // 4]()
            k += 1
    if fine == 1: lg.waitall(); fstamp(0)
    for t in range(4): a(f"v_pk_add_f32 v[{ACC+4*t}:{ACC+4*t+1}], v[{ACC+4*t}:{ACC+4*t+1}], v[{ACC+4*t+2}:{ACC+4*t+3}]")
    for t in range(4): a(f"v_cvt_pk_bf16_f32 v{ACC+4*t+2}, v{ACC+4*t}, v{ACC+4*t+1}")
    lg.issue('xw', f"ds_write2st64_b32 v{V_XWQ}, v{ACC+2}, v{ACC+6} offset0:0 offset1:2")
    lg.issue('xw', f"ds_write2st64_b32 v{V_XWK}, v{ACC+10}, v{ACC+14} offset0:0 offset1:2")
    for c in range(3): smf(ACC+16, c, wr('v', c))
    lg.waitall()
    if fine == 1: fstamp(1)
    a("s_barrier")
    stamp(0)
    for ks in range(4):
        lg.issue(('x', ks), f"ds_read_b64_tr_b16 v[{XF+4*ks}:{XF+4*ks+1}], v{V_XR} offset:{1024*ks}")
        lg.issue(('x', ks), f"ds_read_b64_tr_b16 v[{XF+4*ks+2}:{XF+4*ks+3}], v{V_XR} offset:{1024*ks+512}")
    SM, S0, S1 = ACC, ACC+4, ACC+8
    VACC = ACC+16; VM_ = ACC+12
    WOB = {0: AF, 1: AF+8, 2: AF+16, 3: AF+24, 4: AF+32, 5: VS, 6: VS+8, 7: XF+8, 8: ACC+4, 9: ACC+16}
    def wo_read(tt, h):
        b = WOB[tt] + 4*h
        return lambda: lg.issue(('wo', tt), f"ds_read_b128 v[{b}:{b+3}], v{V_WO} offset:{2048*tt+1024*h}")
    vfill = {3: wo_read(0, 0), 4: wo_read(0, 1), 5: wo_read(5, 0), 6: wo_read(5, 1), 7: wo_read(1, 0), 8: wo_read(1, 1), 9: wo_read(6, 0)}
    for c in range(3, 10):
        smf(ACC+16, c, wr('v', c)); vfill[c]()
    if fine == 1: lg.waitall(); fstamp(2)
    mains = []
    for ks in range(4):
        x = f"v[{XF+4*ks}:{XF+4*ks+3}]"
        def ma(ks=ks, x=x):
            lg.wait(('x', ks))
            cm = f"v[{V_CNEG}:{V_CNEG+3}]" if ks == 0 else f"v[{SM}:{SM+3}]"
            a(f"v_mfma_f32_16x16x32_bf16 v[{SM}:{SM+3}], {x}, {x}, {cm}")
        mains.append(ma)
        for kt, Sx in ((0, S0), (1, S1)):
            def mb(ks=ks, kt=kt, Sx=Sx, x=x):
                k = f"v[{KT+4*(2*ks+kt)}:{KT+4*(2*ks+kt)+3}]"
                cs = "0" if ks == 0 else f"v[{Sx}:{Sx+3}]"
                a(f"v_mfma_f32_16x16x32_bf16 v[{Sx}:{Sx+3}], {k}, {x}, {cs}")
            mains.append(mb)
    sfill = [[wo_read(6, 1)], [wo_read(2, 0)], [wo_read(2, 1)],
             [wo_read(3, 0), I(f"v_pk_add_f32 v[{VACC}:{VACC+1}], v[{VACC}:{VACC+1}], v[{VACC+2}:{VACC+3}]")],
             [wo_read(3, 1), I(f"v_cvt_pk_bf16_f32 v{VACC+2}, v{VACC}, v{VACC+1}")],
             [lambda: lg.issue('vw', f"ds_write_b32 v{V_VEW}, v{VACC+2}"), lambda: lg.issue('vm', f"ds_read_b64 v[{VM_}:{VM_+1}], v{V_VER}")],
             [wo_read(4, 0)], [wo_read(4, 1)], [], [], [], []]
    for m, fl in zip(mains, sfill):
        m()
        for f in fl: f()
    a(f"s_waitcnt vmcnt({6 if not opts.get('x_noext') else 0})")
    a(f"s_cmp_eq_u32 s{S_STEP}, {opts.get('last', 63)}"); a(f"s_cbranch_scc1 {P}_finish")
    if fine == 1: lg.waitall(); fstamp(3)
    MX = ACC+14; T1 = ACC+15
    a(f"v_max3_f32 v{MX}, v{SM}, v{SM+1}, v{SM+2}")
    a(f"v_max3_f32 v{T1}, v{SM+3}, v{S0}, v{S0+1}")
    a(f"v_max3_f32 v{MX}, v{MX}, v{S0+2}, v{S0+3}")
    a(f"v_max3_f32 v{T1}, v{T1}, v{S1}, v{S1+1}")
    a(f"v_max3_f32 v{MX}, v{MX}, v{S1+2}, v{S1+3}")
    a(f"v_max_f32 v{MX}, v{MX}, v{T1}")
    OUT = [KT+4*t for t in range(8)] + [XF, XF+4]
    zero = [I(f"v_mov_b64 v[{OUT[t]+2*h}:{OUT[t]+2*h+1}], 0") for t in range(10) for h in range(2)]
    a(f"v_mov_b32 v{T1}, v{MX}"); zero.pop(0)(); zero.pop(0)()
    a(f"v_permlane32_swap_b32 v{MX}, v{T1}")
    a(f"v_max_f32 v{MX}, v{MX}, v{T1}")
    a(f"v_mov_b32 v{T1}, v{MX}"); zero.pop(0)(); zero.pop(0)()
    a(f"v_permlane16_swap_b32 v{MX}, v{T1}")
    a(f"v_max_f32 v{MX}, v{MX}, v{T1}")
    a(f"v_mul_f32 v{MX}, s{S_C}, v{MX}")
    for r in range(0, 12, 2):
        a(f"v_pk_fma_f32 v[{ACC+r}:{ACC+r+1}], v[{ACC+r}:{ACC+r+1}], s[{S_C}:{S_C+1}], v[{MX}:{MX+1}] op_sel_hi:[1,1,0] neg_lo:[0,0,1] neg_hi:[0,0,1]")
    if fine == 1: fstamp(4)
    PT = VACC; PM = ACC+14
    for r in range(4, 12): a(f"v_exp_f32 v{ACC+r}, v{ACC+r}")
    a(f"v_exp_f32 v{SM}, v{SM}")
    a(f"v_cvt_pk_bf16_f32 v{PT}, v{S0}, v{S0+1}"); a(f"v_cvt_pk_bf16_f32 v{PT+1}, v{S0+2}, v{S0+3}")
    a(f"v_cvt_pk_bf16_f32 v{PT+2}, v{S1}, v{S1+1}"); a(f"v_cvt_pk_bf16_f32 v{PT+3}, v{S1+2}, v{S1+3}")
    a(f"v_exp_f32 v{SM+1}, v{SM+1}"); a(f"v_exp_f32 v{SM+2}, v{SM+2}")
    LL, OO = S0, S1
    a(f"v_mfma_f32_16x16x32_bf16 v[{LL}:{LL+3}], v[{V_ONES}:{V_ONES+3}], v[{PT}:{PT+3}], 0")
    a(f"v_exp_f32 v{SM+3}, v{SM+3}")
    a(f"v_mfma_f32_16x16x32_bf16 v[{OO}:{OO+3}], v[{V_VT}:{V_VT+3}], v[{PT}:{PT+3}], 0")
    a(f"v_cvt_pk_bf16_f32 v{PM}, v{SM}, v{SM+1}"); a(f"v_cvt_pk_bf16_f32 v{PM+1}, v{SM+2}, v{SM+3}")
    wo_read(7, 0)(); wo_read(7, 1)(); wo_read(9, 0)(); wo_read(9, 1)()
    lg.wait('vm')
    a(f"v_mfma_f32_16x16x16_bf16 v[{LL}:{LL+3}], v[{V_ONES}:{V_ONES+1}], v[{PM}:{PM+1}], v[{LL}:{LL+3}]")
    a(f"v_mfma_f32_16x16x16_bf16 v[{OO}:{OO+3}], v[{VM_}:{VM_+1}], v[{PM}:{PM+1}], v[{OO}:{OO+3}]")
    for _ in range(7): zero.pop(0)()
    if fine == 1: lg.waitall(); fstamp(5)
    a(f"v_rcp_f32 v{LL}, v{LL}")
    zero.pop(0)()
    a(f"v_pk_mul_f32 v[{OO}:{OO+1}], v[{OO}:{OO+1}], v[{LL}:{LL+1}] op_sel_hi:[1,0]")
    a(f"v_pk_mul_f32 v[{OO+2}:{OO+3}], v[{OO+2}:{OO+3}], v[{LL}:{LL+1}] op_sel_hi:[1,0]")
    a(f"v_cvt_pk_bf16_f32 v{OO}, v{OO}, v{OO+1}"); a(f"v_cvt_pk_bf16_f32 v{OO+1}, v{OO+2}, v{OO+3}")
    a(f"s_mov_b64 exec, {sp(S_EXO)}")
    lg.issue('ow', f"ds_write_b64 v{V_OEW}, v[{OO}:{OO+1}]")
    a("s_mov_b64 exec, -1")
    while zero: zero.pop(0)()
    efm = a.newlabel(P + "_efm"); efm2 = a.newlabel(P + "_efm2")
    a(f"s_cmp_ge_u32 s{S_STEP}, 58"); a(f"s_cbranch_scc1 {efm}")
    a.label(efm + "_r")
    lg.waitall()
    if fine == 1: fstamp(6)
    a("s_barrier")
    def fn_efm():
        a.label(efm)
        a("s_waitcnt vmcnt(0)")
        a(f"s_branch {efm}_r")
        a.label(efm2)
        a("s_mov_b64 exec, 1")
        a(f"v_mov_b32 v{ACC+14}, s{S_STEP}")
        a(f"global_store_dword v{V_L8}, v{ACC+14}, {sp(S_FM)} sc1")
        a("s_mov_b64 exec, -1")
        a(f"s_branch {efm2}_r")
    a.defer(fn_efm)
    stamp(1)
    OA = ACC
    lg.issue('oa', f"ds_read_b128 v[{OA}:{OA+3}], v{V_OER}")
    wo_read(8, 0)(); wo_read(8, 1)()
    a(f"s_cmp_ge_u32 s{S_STEP}, 58"); a(f"s_cbranch_scc1 {efm2}")
    a.label(efm2 + "_r")
    XT = XF+8
    lg.wait('oa')
    if fine == 1: lg.waitall(); fstamp(7)
    def osm(tt):
        b = WOB[tt]
        a(f"v_smfmac_f32_16x16x64_bf16 v[{OUT[tt]}:{OUT[tt]+3}], v[{OA}:{OA+3}], v[{b}:{b+7}], v{V_IDX}")
    DST = {0: OUT[0], 1: OUT[0]+2, 2: OUT[4], 3: OUT[4]+2, 4: OUT[8]}
    def post(t):
        o0, o1 = OUT[2*t], OUT[2*t+1]
        d = DST[t]
        L = [I(f"v_pk_add_f32 v[{o0}:{o0+1}], v[{o0}:{o0+1}], v[{o0+2}:{o0+3}]"),
             I(f"v_pk_add_f32 v[{o1}:{o1+1}], v[{o1}:{o1+1}], v[{o1+2}:{o1+3}]"),
             I(f"v_cvt_pk_bf16_f32 v{d}, v{o0}, v{o0+1}"),
             I(f"v_cvt_pk_bf16_f32 v{d+1}, v{o1}, v{o1+1}"),
             I(f"v_and_or_b32 v{d}, v{d}, -2, s{S_TAG}")]
        if t in (1, 3): L.append(I(f"global_store_dwordx4 v{V_L16}, v[{DST[t-1]}:{DST[t-1]+3}], {sp(S_PST)} offset:{1024*(t//2)} {LS}"))
        elif t == 4: L.append(I(f"global_store_dwordx2 v{V_L8}, v[{d}:{d+1}], {sp(S_PST)} offset:2048 {LS}"))
        return L
    p = [post(t) for t in range(5)]
    osm(0); osm(1); osm(2); osm(3); osm(4); osm(5); osm(6); osm(7)
    a(f"v_add_u32 v{XT+4}, s{S_XMW}, v{V_XR}")
    p[0][0](); osm(9); p[0][1]()
    lg.wait(('wo', 8)); osm(8)
    lg.issue('xt', f"ds_read_b64_tr_b16 v[{XT}:{XT+1}], v{XT+4}")
    lg.issue('xt', f"ds_read_b64_tr_b16 v[{XT+2}:{XT+3}], v{XT+4} offset:512")
    for f in p[0][2:]: f()
    for t in (1, 2, 3, 4):
        for f in p[t]: f()
    stamp(2)
    rt('B')
    for r, b, o in ((S_PUBR, B_PUBR, S_OFFR), (S_PUBL, B_PUBL, S_OFFX), (S_GL, B_GL, S_OFFX), (S_GR, B_GR, S_OFFR)): sadd64(a, r, b, f"s{o}")
    nored = a.newlabel(P + "_nored"); redj = a.newlabel(P + "_redj")
    a(f"s_cmp_eq_u32 s{S_RACT}, 0"); a(f"s_cbranch_scc1 {nored}")
    def fn_nored():
        a.label(nored)
        if not opts.get('hint', 0):
            a(f"s_branch {redj}"); return
        a(f"s_cmp_eq_u32 s{S_W}, 3"); a(f"s_cbranch_scc0 {redj}")
        a(f"s_add_u32 s{S_T0}, s{S_STEP}, 1")
        nw = a.newlabel(P + "_nohw")
        a(f"s_cmp_eq_u32 s{S_J}, {opts.get('hj', 0)}"); a(f"s_cbranch_scc0 {nw}")
        for _ in range(opts.get('d_hw', D_RED + 2)): a("s_nop 7")
        a("s_mov_b64 exec, 1")
        a(f"v_mov_b32 v{XF+2}, s{S_T0}")
        a(f"global_store_dword v{V_L8}, v{XF+2}, {sp(S_HW)} sc1")
        a("s_mov_b64 exec, -1")
        a.label(nw)
        a(f"s_mov_b32 s{S_SPIN}, 0")
        a("s_waitcnt lgkmcnt(0)")
        hl = a.newlabel(P + "_hl"); hd = a.newlabel(P + "_hd")
        a.label(hl)
        a(f"s_load_dword s{S_T1}, {sp(S_HR)}, 0x0 glc")
        a(f"s_add_u32 s{S_SPIN}, s{S_SPIN}, 1")
        a("s_waitcnt lgkmcnt(0)")
        a(f"s_cmp_ge_u32 s{S_T1}, s{S_T0}"); a(f"s_cbranch_scc1 {hd}")
        a(f"s_cmp_lt_u32 s{S_SPIN}, {SPIN_MAX}"); a(f"s_cbranch_scc1 {hl}")
        a("s_endpgm")
        a.label(hd)
        for _ in range(opts.get('d_hint', 0)): a("s_nop 7")
        a(f"s_branch {redj}")
    a.defer(fn_nored)
    backoff(a, D_RED, opts)
    RD = AF; RA = AF + 48; TM = AF + 52; PB = KT
    MSK = [S_T0, S_T2, S_PST, S_EXX]
    def r_load(t, RD=RD): a(f"global_load_dwordx4 v[{RD+4*t}:{RD+4*t+3}], v{V_RL}, {sp(S_RL+2*t)} sc1")
    RMODE = opts.get('rmode', 2)
    def r_reduce(RDx, younger):
        for t in range(4):
            a(f"s_waitcnt vmcnt({3-t+younger})")
            c = "0" if t == 0 else f"v[{RA}:{RA+3}]"
            a(f"v_mfma_f32_16x16x32_bf16 v[{RA}:{RA+3}], v[{V_SEL}:{V_SEL+3}], v[{RDx+4*t}:{RDx+4*t+3}], {c}")
            if t == 0: a(f"v_xor_b32 v{TM}, s{S_TAG}, v{RDx}")
            else: a(f"v_bitop3_b32 v{TM}, v{TM}, v{RDx+4*t}, s{S_TAG} bitop3:0xf6")
            a(f"v_bitop3_b32 v{TM}, v{TM}, v{RDx+4*t+2}, s{S_TAG} bitop3:0xf6")
        a(f"v_and_b32 v{TM}, 1, v{TM}")
        a(f"v_cmp_ne_u32 vcc, 0, v{TM}")
    rt('C')
    for t in range(4): r_load(t)
    if RMODE == 2:
        backoff(a, opts.get('d_r2', 6), opts)
        for t in range(4): r_load(t, RD+16)
    r_reduce(RD, 4 if RMODE == 2 else 0)
    rs1 = a.newlabel(P + "_rs1"); rok = a.newlabel(P + "_rok")
    a(f"s_cbranch_vccnz {rs1}")
    a.label(rok)
    rt('D')
    def masked_poll(stub, nld, check_fn, load_fn, cnt_reg, depth):
        a(f"s_mov_b32 s{S_SPIN}, 0")
        a("s_or_b32 exec_lo, vcc_lo, 1"); a("s_mov_b32 exec_hi, vcc_hi")
        for _ in range(depth - 1):
            for t in range(nld): load_fn(t)
        a.label(stub + "_l")
        for t in range(nld): load_fn(t)
        if prof: a(f"s_add_u32 s{cnt_reg}, s{cnt_reg}, 1")
        a(f"s_add_u32 s{S_SPIN}, s{S_SPIN}, 1")
        a(f"s_waitcnt vmcnt({nld*(depth-1)})")
        check_fn()
        a(f"s_cbranch_vccz {stub}_ok")
        a("s_or_b32 exec_lo, vcc_lo, 1"); a("s_mov_b32 exec_hi, vcc_hi")
        a(f"s_cmp_lt_u32 s{S_SPIN}, {SPIN_MAX}"); a(f"s_cbranch_scc1 {stub}_l")
        a("s_endpgm")
        a.label(stub + "_ok")
        a("s_mov_b64 exec, -1")
    def r_check():
        a(f"v_xor_b32 v{TM}, s{S_TAG}, v{RD}")
        a(f"v_bitop3_b32 v{TM}, v{TM}, v{RD+2}, s{S_TAG} bitop3:0xf6")
        for t in range(1, 4):
            a(f"v_bitop3_b32 v{TM}, v{TM}, v{RD+4*t}, s{S_TAG} bitop3:0xf6")
            a(f"v_bitop3_b32 v{TM}, v{TM}, v{RD+4*t+2}, s{S_TAG} bitop3:0xf6")
        a(f"v_and_b32 v{TM}, 1, v{TM}")
        a(f"v_cmp_ne_u32 vcc, 0, v{TM}")
    def fn_rslow():
        a.label(rs1)
        if RMODE == 2:
            a(f"s_mov_b32 s{S_SPIN}, 0")
            a.label(rs1 + "_l")
            for (x, y) in ((RD, RD+16), (RD+16, RD)):
                if prof: a(f"s_add_u32 s{PRT[2]}, s{PRT[2]}, 1")
                for t in range(4): r_load(t, x)
                r_reduce(y, 4)
                nx = a.newlabel(rs1 + "_n")
                a(f"s_cbranch_vccnz {nx}")
                a("s_nop 7"); a(f"s_branch {rok}")
                a.label(nx)
            a(f"s_add_u32 s{S_SPIN}, s{S_SPIN}, 1"); a(f"s_cmp_lt_u32 s{S_SPIN}, {SPIN_MAX}"); a(f"s_cbranch_scc1 {rs1}_l")
            a("s_endpgm")
            return
        masked_poll(rs1, 4, r_check, r_load, PRT[2], opts.get('dr', 1))
        for t in range(4):
            c = "0" if t == 0 else f"v[{RA}:{RA+3}]"
            a(f"v_mfma_f32_16x16x32_bf16 v[{RA}:{RA+3}], v[{V_SEL}:{V_SEL+3}], v[{RD+4*t}:{RD+4*t+3}], {c}")
        a("s_nop 7"); a(f"s_branch {rok}")
    a.defer(fn_rslow)
    for r in range(4): a(f"v_add_f32_dpp v{RA+r}, v{RA+r}, v{RA+r} row_ror:8 row_mask:0xf bank_mask:0xf")
    a(f"v_cvt_pk_bf16_f32 v{PB}, v{RA}, v{RA+1}"); a(f"v_cvt_pk_bf16_f32 v{PB+1}, v{RA+2}, v{RA+3}")
    a(f"v_permlane16_swap_b32 v{PB}, v{PB+2}"); a(f"v_permlane16_swap_b32 v{PB+1}, v{PB+3}")
    a(f"v_and_or_b32 v{PB}, v{PB}, -2, s{S_TAG}"); a(f"v_and_or_b32 v{PB+2}, v{PB+2}, -2, s{S_TAG}")
    a("s_mov_b64 exec, 0xff")
    a(f"global_store_dwordx4 v{V_L16}, v[{PB}:{PB+3}], {sp(S_PUBR)} sc1")
    a(f"global_store_dwordx4 v{V_L16}, v[{PB}:{PB+3}], {sp(S_PUBL)} {LS}")
    a("s_mov_b64 exec, -1")
    a.label(redj)
    rt('E')
    a("s_barrier")
    rt('F')
    stamp(3)
    lg.waitall()
    a(f"v_mov_b64 v[{VMC}:{VMC+1}], v[{VM_}:{VM_+1}]")
    a(f"v_mov_b32 v{FMV}, s{S_STEP}")
    for r in range(0, 20, 2): a(f"v_mov_b64 v[{ACC+r}:{ACC+r+1}], 0")
    backoff(a, D_LOC, opts)
    GLc = AF; GF = AF + 12; TMG = AF + 48
    GR = KT
    def g_load(base, sb):
        def f(t):
            if t == 0: a(f"global_load_dwordx4 v[{base}:{base+3}], v{V_L16}, {sp(sb)} sc1")
            elif t == 1: a(f"global_load_dwordx4 v[{base+4}:{base+7}], v{V_L16}, {sp(sb)} offset:1024 sc1")
            else: a(f"global_load_dwordx2 v[{base+8}:{base+9}], v{V_L8}, {sp(sb)} offset:2048 sc1")
        return f
    def chk(base):
        a(f"v_xor_b32 v{TMG}, s{S_TAG}, v{base}")
        for o in (2, 4, 6, 8): a(f"v_bitop3_b32 v{TMG}, v{TMG}, v{base+o}, s{S_TAG} bitop3:0xf6")
        a(f"v_and_b32 v{TMG}, 1, v{TMG}")
        a(f"v_cmp_ne_u32 vcc, 0, v{TMG}")
    GM = [S_T0, S_T2, S_EXX]
    def gmasks(base):
        def f():
            for t in range(3): a(f"v_xor_b32 v{TMG+t}, s{S_TAG}, v{base+4*t}")
            for t in range(3): a(f"v_and_b32 v{TMG+t}, 1, v{TMG+t}")
            for t in range(3): a(f"v_cmp_ne_u32 {sp(GM[t])}, 0, v{TMG+t}")
        return f
    rt('G')
    for t in range(3): g_load(GLc, S_GL)(t)
    for _ in range(D_REM): a("s_nop 7")
    rt('H')
    GMODE = opts.get('gmode', 1)
    GR1 = KT + 10
    for t in range(3): g_load(GR, S_GR)(t)
    stamp(6)
    a(f"s_add_u32 s{S_STEP}, s{S_STEP}, 1")
    a(f"s_xor_b32 s{S_OFFP}, s{S_OFFP}, {64*10240}")
    a(f"s_xor_b32 s{S_OFFX}, s{S_OFFX}, 20480"); a(f"s_xor_b32 s{S_OFFR}, s{S_OFFR}, 65536")
    part_bases()
    a(f"s_and_b32 s{S_T0}, s{S_STEP}, 1"); a(f"s_lshl_b32 s{S_T0}, s{S_T0}, 13"); a(f"s_add_u32 s{S_T0}, s{S_T0}, {L_KTB}")
    a(f"v_add_u32 v{V_KT}, s{S_T0}, v{V_L16}")
    a(f"s_xor_b32 s{S_T0}, s{S_STEP}, 1"); a(f"s_and_b32 s{S_T0}, s{S_T0}, 1"); a(f"s_lshl_b32 s{S_T0}, s{S_T0}, 13"); a(f"s_add_u32 s{S_T0}, s{S_T0}, {L_KTB}")
    a(f"s_lshl_b32 s{S_T1}, s{S_W}, 11"); a(f"s_add_u32 s{S_M0KT}, s{S_T0}, s{S_T1}")
    a(f"s_cmp_lt_u32 s{S_STEP}, 63"); a(f"s_cselect_b32 s{S_T0}, {32*8192}, 0")
    sadd64(a, S_KT, S_KT, f"s{S_T0}")
    sadd64(a, S_VT, S_VT, 32*8192)
    a(f"s_add_u32 s{S_NEED}, s{S_STEP}, 2"); a(f"s_min_u32 s{S_NEED}, s{S_NEED}, 64")
    a(f"s_mov_b32 s{S_XM}, s{S_XMN}"); a(f"s_mov_b32 s{S_XM+1}, s{S_XMN+1}"); a(f"s_mov_b32 s{S_VM}, s{S_VMN}"); a(f"s_mov_b32 s{S_VM+1}, s{S_VMN+1}")
    sadd64(a, S_XMN, S_XMN, 32*4096); sadd64(a, S_VMN, S_VMN, 32*4096)
    if GMODE == 2:
        backoff(a, opts.get('d_g2', 0), opts)
        for t in range(3): g_load(GR1, S_GR)(t)
    a(f"s_waitcnt vmcnt({6 if GMODE == 2 else 3})")
    lre = a.newlabel(P + "_lre"); lok = a.newlabel(P + "_lok")
    chk(GLc)
    a(f"s_cbranch_vccnz {lre}")
    a.label(lok)
    def fn_l():
        a.label(lre)
        masked_poll(lre, 3, lambda: chk(GLc), g_load(GLc, S_GL), PRT[0], 2)
        a("s_waitcnt vmcnt(0)")
        a(f"s_branch {lok}")
    a.defer(fn_l)
    rt('I')
    stamp(8)
    for i in range(10):
        a(f"v_lshlrev_b32 v{GF+2*i}, 16, v{GLc+i}"); a(f"v_and_b32 v{GF+2*i+1}, 0xffff0000, v{GLc+i}")
    def stage(G):
        def dots(i):
            a(f"v_dot2_f32_bf16 v{GF+2*i}, v{G+i}, s{S_LO}, v{GF+2*i}")
            a(f"v_dot2_f32_bf16 v{GF+2*i+1}, v{G+i}, s{S_HI}, v{GF+2*i+1}")
        def cv(i): a(f"v_cvt_pk_bf16_f32 v{GLc+i}, v{GF+2*i}, v{GF+2*i+1}")
        for i in range(4): dots(i)
        for t in range(5):
            cv(2*t); cv(2*t+1)
            a(f"ds_write_b64 v{V_IW2}, v[{GLc+2*t}:{GLc+2*t+1}] offset:{512*t}")
            for i in (2*t+4, 2*t+5):
                if i < 10: dots(i)
    a(f"s_waitcnt vmcnt({3 if GMODE == 2 else 0})")
    chk(GR)
    gs1 = a.newlabel(P + "_gs1"); gok = a.newlabel(P + "_gok")
    a(f"s_cbranch_vccnz {gs1}")
    if GMODE == 2:
        stamp(4)
        rt('J')
        stage(GR)
        a.label(gok)
        def fn_gslow():
            a.label(gs1)
            a(f"s_mov_b32 s{S_SPIN}, 0")
            a.label(gs1 + "_l")
            for (x, y) in ((GR, GR1), (GR1, GR)):
                if prof: a(f"s_add_u32 s{PRT[1]}, s{PRT[1]}, 1")
                for t in range(3): g_load(x, S_GR)(t)
                a("s_waitcnt vmcnt(3)")
                chk(y)
                nx = a.newlabel(gs1 + "_n")
                a(f"s_cbranch_vccnz {nx}")
                rt('J')
                stage(y)
                a(f"s_branch {gok}")
                a.label(nx)
            a(f"s_add_u32 s{S_SPIN}, s{S_SPIN}, 1"); a(f"s_cmp_lt_u32 s{S_SPIN}, {SPIN_MAX}"); a(f"s_cbranch_scc1 {gs1}_l")
            a("s_endpgm")
        a.defer(fn_gslow)
    else:
        a.label(gok)
        def fn_gslow():
            a.label(gs1)
            masked_poll(gs1, 3, lambda: chk(GR), g_load(GR, S_GR), PRT[1], opts.get('dg', 2))
            a(f"s_branch {gok}")
        a.defer(fn_gslow)
        stamp(4)
        rt('J')
        stage(GR)
    rt('K')
    a(f"s_lshr_b32 s{S_TAG}, s{S_STEP}, 1"); a(f"s_and_b32 s{S_TAG}, s{S_TAG}, 1")
    a("s_waitcnt lgkmcnt(0)")
    a("s_barrier")
    stamp(5)
    a(f"s_branch {P}_loop")
    a.label(P + "_finish")
    if rt_on:
        a("s_waitcnt lgkmcnt(0)")
        a(f"s_lshl_b32 s44, s{S_PROD}, 2"); a(f"s_add_u32 s44, s44, s{S_W}"); a("s_lshl_b32 s44, s44, 6"); a(f"s_add_u32 s44, s44, {WS_PROF}")
        a("s_mov_b64 exec, 1")
        a(f"v_mov_b32 v{XF}, s44")
        for i, kk in enumerate("ABCDEFGHIJK"):
            a(f"v_mov_b32 v{XF+1}, s{RT[kk] if RT[kk] is not None else RT['G']}"); a(f"global_store_dword v{XF}, v{XF+1}, {sp(P_WS)} offset:{4*i}"); a("s_nop 1")
        a("s_mov_b64 exec, -1")
    rt_stamp(a, 2, 140, opts.get('tl', 0))
    if prof:
        a(f"s_lshl_b32 s44, s{S_PROD}, 2"); a(f"s_add_u32 s44, s44, s{S_W}"); a("s_lshl_b32 s44, s44, 6"); a(f"s_add_u32 s44, s44, {WS_PROF}")
        a("s_mov_b64 exec, 1")
        a(f"v_mov_b32 v{XF}, s44")
        for i, r in enumerate(PROF[:6] + PRT + PROF[6:]):
            a(f"v_mov_b32 v{XF+1}, s{r}"); a(f"global_store_dword v{XF}, v{XF+1}, {sp(P_WS)} offset:{4*i}"); a("s_nop 1")
        a("s_mov_b64 exec, -1")
    a("s_waitcnt lgkmcnt(0)")
    a(f"v_add_u32 v{AF+4}, s{S_XMW}, v{V_XR}")
    a(f"ds_read_b64_tr_b16 v[{AF}:{AF+1}], v{AF+4}")
    a(f"ds_read_b64_tr_b16 v[{AF+2}:{AF+3}], v{AF+4} offset:512")
    a("s_waitcnt lgkmcnt(0)")
    a(f"global_store_dwordx4 v{V_L16}, v[{AF}:{AF+3}], {sp(S_XMN)} sc1")
    a(f"global_store_dwordx2 v{V_L8}, v[{ACC+12}:{ACC+13}], {sp(S_VMN)} sc1")
    a("s_waitcnt vmcnt(0)")
    a("s_barrier")
    a(f"s_cmp_eq_u32 s{S_W}, 0"); a(f"s_cbranch_scc0 {P}_end")
    a("s_mov_b64 exec, 1")
    a(f"v_mov_b32 v{XF+2}, 64")
    a(f"global_store_dword v{V_L8}, v{XF+2}, {sp(S_FM)} sc1")
    a("s_waitcnt vmcnt(0)")
    rt_stamp(a, 8, 140, opts.get('tl', 0))
    a.label(P + "_end")
    a("s_endpgm")
    a.flush()
```

```python
from gen_common import *
from gen_init import f32bits

def flag_store(a, sflag_pair, voff_reg, sval, vtmp):
    a("s_mov_b64 exec, 1")
    a(f"v_mov_b32 v{vtmp}, {sval}")
    a(f"global_store_dword v{voff_reg}, v{vtmp}, {sp(sflag_pair)} sc1")
    a("s_mov_b64 exec, -1")

def gen_proj(a, kind, opts={}):
    tl = opts.get('tl', 0)
    L = f"L_{kind}"
    wptr = {'K': P_WK, 'Q': P_WQ, 'V': P_WV, 'H': P_W1}[kind]
    rstride = 3456 if kind == 'H' else 8192
    a.comment({'K': "==== role K: token keys of one head for all segments (weights in registers) ====",
               'V': "==== role V: token values of one head for all segments ====",
               'Q': "==== role Q: token queries of one head for all segments ====",
               'H': "==== role H: mish(xn @ w1 + b1), 128 columns, all segments ===="}[kind])
    a.label(L)
    a("v_and_b32 v1, 63, v0")
    if kind == 'Q':
        a.comment("placement probe (speed only): which of the alternating 8 KB windows of the cross-die buffer are closer to this side of the chip")
        a("s_cmp_eq_u32 s34, 0"); a("s_cbranch_scc0 L_Q_noprobe")
        a("s_cmp_eq_u32 s32, 0"); a("s_cbranch_scc0 L_Q_probed")
        a("s_mov_b64 exec, 1")
        a("v_mov_b32 v3, -1")
        for cand in range(2):
            a(f"v_mov_b32 v2, {WS_XPR + 7680 + 8192*cand}")
            a(f"s_mov_b32 s{40+cand}, -1")
            for rep in range(3):
                a(f"global_store_dword v2, v3, {sp(P_WS)} sc1"); a("s_waitcnt vmcnt(0)")
                a("s_memtime s[42:43]"); a("s_waitcnt lgkmcnt(0)")
                a(f"global_load_dword v4, v2, {sp(P_WS)} sc1"); a("s_waitcnt vmcnt(0)")
                a("s_memtime s[44:45]"); a("s_waitcnt lgkmcnt(0)")
                a("s_sub_u32 s46, s44, s42"); a(f"s_min_u32 s{40+cand}, s{40+cand}, s46")
        a("s_cmp_lt_u32 s41, s40"); a("s_cselect_b32 s40, 2, 1")
        a("v_mov_b32 v2, 44"); a("v_mov_b32 v3, s40")
        a(f"global_store_dword v2, v3, {sp(P_DBG)} sc1")
        a("s_waitcnt vmcnt(0)")
        a("s_mov_b64 exec, -1")
        a.label("L_Q_probed")
        a("s_barrier")
        a.label("L_Q_noprobe")
    early = (kind == 'Q' and not opts.get('stagq', 1))
    if kind in ('Q', 'H') and not early:
        wait_init(a, kind, sleep=32)
        if opts.get('stag', 1): wait_first_keys(a, kind)
    a("s_lshl_b32 s35, s34, 8")
    sadd64(a, 36, wptr, "s35")
    a(f"s_mul_i32 s35, s32, {160*rstride}")
    sadd64(a, 36, 36, "s35")
    a("v_lshrrev_b32 v4, 4, v1")
    a("v_and_b32 v5, 15, v1")
    a("v_lshrrev_b32 v6, 1, v5"); a("v_lshlrev_b32 v7, 1, v4"); a("v_xor_b32 v6, v6, v7")
    a("v_and_b32 v5, 1, v5"); a("v_lshl_add_u32 v6, v6, 1, v5")
    if kind == 'H':
        a("s_cmp_eq_u32 s34, 13"); a("s_cselect_b32 s35, 7, 15"); a("v_and_b32 v6, s35, v6")
    a(f"s_mov_b32 s35, {rstride}")
    a("v_mul_lo_u32 v2, v4, s35")
    a("v_lshl_add_u32 v2, v6, 4, v2")
    a(f"s_mul_i32 s40, s32, 40960")
    for i in range(40):
        a("s_mov_b32 m0, s40")
        a("global_load_lds_dwordx4 v2, s[36:37]")
        a("s_add_u32 s40, s40, 1024")
        sadd64(a, 36, 36, 4*rstride)
    a("v_lshrrev_b32 v10, 5, v1")
    a("v_bfe_u32 v11, v1, 2, 2")
    a("v_lshl_add_u32 v12, v10, 3, v11")
    a("v_lshlrev_b32 v12, 8, v12")
    a("v_bfe_u32 v13, v1, 4, 1")
    a("s_lshl_b32 s35, s32, 1")
    a("v_add_u32 v13, s35, v13")
    a("v_lshlrev_b32 v14, 1, v11")
    a("v_xor_b32 v13, v13, v14")
    a("v_lshl_add_u32 v12, v13, 5, v12")
    a("v_and_b32 v13, 3, v1")
    a("v_lshl_add_u32 v15, v13, 3, v12")
    a("v_add_u32 v16, 0x10000, v15"); a("v_add_u32 v17, 0x20000, v15")
    a("s_waitcnt vmcnt(0)")
    a("s_barrier")
    lgp = Cnt(a, "lgkmcnt", 15)
    for ks in range(40):
        for jq in range(2):
            lgp.issue(ks, f"ds_read_b64_tr_b16 a[{4*ks+2*jq}:{4*ks+2*jq+1}], v{15 + ks//16} offset:{4096*(ks % 16) + 1024*jq}")
    lgp.waitall()
    a("s_barrier")
    if kind == 'H':
        a("s_lshl_b32 s35, s34, 7"); a("s_lshl_b32 s38, s32, 5"); a("s_add_u32 s35, s35, s38")
        a("v_lshrrev_b32 v10, 5, v1"); a("v_lshlrev_b32 v10, 2, v10"); a("v_add_u32 v10, s35, v10")
        a("v_min_u32 v10, 1700, v10")
        a("v_lshlrev_b32 v10, 1, v10")
        for q in range(4):
            a(f"global_load_dwordx2 v[{64+2*q}:{65+2*q}], v10, {sp(P_B1)} offset:{16*q}")
        a("s_waitcnt vmcnt(0)")
        for q in range(4):
            for k in range(2):
                a(f"v_lshlrev_b32 v{80+4*q+2*k}, 16, v{64+2*q+k}")
                a(f"v_and_b32 v{81+4*q+2*k}, 0xffff0000, v{64+2*q+k}")
        a(f"s_mov_b32 s60, 0x{f32bits(-1.4426950408889634):08x}")
    if kind in ('K', 'V') or early: wait_init(a, kind)
    a("v_lshlrev_b32 v9, 6, v1"); a(f"v_add_u32 v9, {FX_OFF}, v9")
    def wait_x(tag, sreg_seg):
        sk = f"{L}_wx{tag}_sk"; lp = f"{L}_wx{tag}"
        a("s_cmp_eq_u32 s62, 1"); a(f"s_cbranch_scc1 {sk}")
        a("s_mov_b32 s57, 0")
        a.label(lp)
        a(f"global_load_dword v10, v9, {sp(P_WS)} sc1")
        a("s_waitcnt vmcnt(0)")
        a("v_cmp_ne_u32 vcc, 0, v10")
        a("s_cmp_eq_u64 vcc, exec"); a("s_cselect_b32 s62, 1, 0")
        a(f"s_bitcmp1_b64 vcc, s{sreg_seg}")
        a.retry(lp, 57, 0x40000, cond='scc0', sleep=2)
        a.label(sk)
    a("s_mov_b32 s62, 0"); a("s_mov_b32 s63, 0")
    wait_x("0", 63)
    a("s_mul_i32 s35, s32, 10240")
    a("v_lshlrev_b32 v5, 4, v1")
    a("v_add_u32 v2, s35, v5"); a("v_add_u32 v3, 4096, v2"); a("v_add_u32 v4, 8192, v2")
    sadd64(a, 36, P_WS, WS_XN)
    a("s_mov_b32 s40, s35")
    if kind in ('K', 'Q', 'V'):
        ob = {'K': WS_KT, 'Q': WS_QT, 'V': WS_VT}[kind]
        a("s_lshl_b32 s35, s34, 13")
        sadd64(a, 38, P_WS, ob); sadd64(a, 38, 38, "s35")
        a("v_bfe_u32 v10, v1, 4, 1"); a("v_lshlrev_b32 v10, 10, v10")
        a("v_lshrrev_b32 v11, 5, v1"); a("v_lshl_add_u32 v10, v11, 8, v10")
        a("v_and_b32 v11, 15, v1"); a("v_lshl_add_u32 v10, v11, 4, v10")
        a("s_lshl_b32 s35, s32, 11"); a("v_add_u32 v6, s35, v10")
        ostep = 32*8192
        fo = {'K': FK_OFF, 'Q': FQ_OFF, 'V': FV_OFF}[kind]
    else:
        a("s_lshl_b32 s35, s34, 13"); a("s_lshl_b32 s41, s32, 11"); a("s_add_u32 s35, s35, s41")
        sadd64(a, 38, P_WS, WS_H1); sadd64(a, 38, 38, "s35")
        a("v_lshlrev_b32 v6, 4, v1")
        ostep = 108*1024
        fo = FH_OFF
    a("s_lshl_b32 s35, s34, 6"); a("s_lshl_b32 s41, s32, 2"); a("s_add_u32 s35, s35, s41"); a(f"s_add_u32 s35, s35, {fo}")
    a("v_mov_b32 v7, s35")
    if kind == 'H':
        a("s_cmp_eq_u32 s34, 13"); a("s_cselect_b32 s61, 1, 0"); a("s_lshr_b32 s41, s32, 1"); a("s_and_b32 s61, s61, s41"); a("s_xor_b32 s61, s61, 1")
    def dma():
        for g in range(3):
            a(f"s_add_u32 m0, s40, {4096*g}") if g else a("s_mov_b32 m0, s40")
            for i in range(4 if g < 2 else 2):
                a(f"global_load_lds_dwordx4 v{2+g}, s[36:37] offset:{1024*i} sc1")
    rt_stamp(a, 1, 250, tl)
    dma()
    a("s_mov_b32 s42, 0")
    a("s_waitcnt vmcnt(0)")
    a.label(L + "_loop")
    a("s_waitcnt vmcnt(3)")
    a("s_barrier")
    a("s_add_u32 s63, s42, 1"); a("s_min_u32 s63, s63, 63")
    wait_x("n", 63)
    a("s_cmp_lt_u32 s42, 63"); a("s_cselect_b32 s35, 40960, 0")
    sadd64(a, 36, 36, "s35")
    a("s_xor_b32 s43, s42, 1"); a("s_and_b32 s43, s43, 1"); a("s_mul_i32 s43, s43, 40960")
    a("s_mul_i32 s40, s32, 10240"); a("s_add_u32 s40, s40, s43")
    dma()
    NR = 8
    def rd(ks): a(f"ds_read_b128 v[{32+4*(ks%NR)}:{35+4*(ks%NR)}], v5 offset:{1024*ks}")
    for ks in range(NR): rd(ks)
    for ks in range(40):
        left = min(NR - 1, 39 - ks)
        a(f"s_waitcnt lgkmcnt({left})")
        f = f"v[{32+4*(ks%NR)}:{35+4*(ks%NR)}]"; wv = f"a[{4*ks}:{4*ks+3}]"
        c = "0" if ks == 0 else "v[16:31]"
        if kind == 'V': a(f"v_mfma_f32_32x32x16_bf16 v[16:31], {f}, {wv}, {c}")
        else: a(f"v_mfma_f32_32x32x16_bf16 v[16:31], {wv}, {f}, {c}")
        if ks + NR < 40: rd(ks + NR)
    a("v_xor_b32 v5, 0xa000, v5")
    a("s_waitcnt vmcnt(10)")
    flag_store(a, P_WS, 7, "s42", 8)
    if kind == 'H':
        a("s_cmp_eq_u32 s61, 0"); a(f"s_cbranch_scc1 {L}_skip")
        for g0 in (0, 8):
            R = range(g0, g0 + 8)
            for r in R: a(f"v_add_f32 v{16+r}, v{16+r}, v{80+r}")
            for r in R: a(f"v_mul_f32 v{96+r}, s60, abs(v{16+r})")
            for r in R: a(f"v_exp_f32 v{96+r}, v{96+r}")
            for k, r in enumerate(R): a(f"v_cmp_lt_f32 s[{44+2*k}:{45+2*k}], 0, v{16+r}")
            for r in R: a(f"v_mul_f32 v{112+r}, v{96+r}, v{96+r}")
            for r in R: a(f"v_fma_f32 v{128+r}, 2.0, v{96+r}, 1.0")
            for r in R: a(f"v_fma_f32 v{96+r}, 2.0, v{96+r}, v{112+r}")
            for r in R: a(f"v_add_f32 v{112+r}, v{112+r}, v{112+r}")
            for k, r in enumerate(R): a(f"v_cndmask_b32 v{96+r}, v{96+r}, v{128+r}, s[{44+2*k}:{45+2*k}]")
            for k, r in enumerate(R): a(f"v_cndmask_b32 v{112+r}, 2.0, v{112+r}, s[{44+2*k}:{45+2*k}]")
            for r in R: a(f"v_add_f32 v{112+r}, v{112+r}, v{96+r}")
            for r in R: a(f"v_rcp_f32 v{112+r}, v{112+r}")
            for r in R: a(f"v_mul_f32 v{16+r}, v{16+r}, v{96+r}")
            for r in R: a(f"v_mul_f32 v{16+r}, v{16+r}, v{112+r}")
        for k in range(8): a(f"v_cvt_pk_bf16_f32 v{64+k}, v{16+2*k}, v{17+2*k}")
        a("global_store_dwordx4 v6, v[64:67], s[38:39] sc1")
        a("global_store_dwordx4 v6, v[68:71], s[38:39] offset:1024 sc1")
        a(f"s_branch {L}_done")
        a.label(L + "_skip")
        a(f"global_load_dword v64, v7, {sp(P_WS)} sc1")
        a(f"global_load_dword v65, v7, {sp(P_WS)} sc1")
        a.label(L + "_done")
    else:
        order = [0, 1, 4, 5, 2, 3, 6, 7]
        for pos, dd in enumerate(order):
            a(f"v_cvt_pk_bf16_f32 v{64+pos}, v{16+2*dd}, v{17+2*dd}")
        a("global_store_dwordx4 v6, v[64:67], s[38:39] sc1")
        a("global_store_dwordx4 v6, v[68:71], s[38:39] offset:512 sc1")
    a("s_cmp_eq_u32 s42, 0"); a(f"s_cbranch_scc0 {L}_nf0")
    a("s_waitcnt vmcnt(0)")
    flag_store(a, P_WS, 7, 1, 8)
    a("s_waitcnt vmcnt(0)")
    a.label(L + "_nf0")
    sadd64(a, 38, 38, ostep)
    a("s_add_u32 s42, s42, 1")
    a("s_cmp_lt_u32 s42, 64")
    a(f"s_cbranch_scc1 {L}_loop")
    a("s_waitcnt vmcnt(0)")
    flag_store(a, P_WS, 7, 64, 8)
    a("s_waitcnt vmcnt(0)")
    rt_stamp(a, 2, 250, tl)
    a("s_endpgm")
    a.flush()
```

```python
from gen_common import *
from gen_init import f32bits
from gen_proj import flag_store

L_WO  = 0
L_WS  = 81920
L_IMG = 131072
L_KTB = 141312
L_XIM = 157696
L_OEX = 161792
L_VEX = 162816
L_STG = 81920

V_IDX, V_L16, V_L8, V_AT0, V_AT1, V_XWQ, V_XWK, V_XR, V_KT, V_WO, V_WS, V_OEW, V_OER, V_VEW, V_VER, V_IW0, V_IW2, V_RL = range(1, 19)
V_ONES = 20
V_SEL  = 24
V_CNEG = 28
ACC = 32
V_VT = 52
POOL = 56
AF = POOL; VS = POOL + 40; KT = POOL + 56; XF = POOL + 88
WREG = 160

def wfrag(tile, c):
    order = []
    for cc in range(10):
        for t in ('q0', 'q1', 'k0'): order.append((t, cc))
    for cc in range(4): order.append(('k1', cc))
    for cc in range(10): order.append(('v', cc))
    if (tile, c) not in order: return None
    f = order.index((tile, c))
    return ('a', 8*f) if f < 32 else ('v', WREG + 8*(f - 32))
def wr(tile, c, lo=0, n=8):
    k, b = wfrag(tile, c)
    return f"{k}[{b+lo}:{b+lo+n-1}]"

S_W, S_J, S_G = 32, 34, 35
S_H, S_HF, S_PROD, S_RID, S_RACT, S_STEP = 36, 37, 38, 39, 40, 41
S_T0, S_T1, S_T2, S_T3 = 44, 45, 46, 47
S_PST = 48
S_RL  = 50
S_PUBR, S_PUBL = 58, 60
S_GL, S_GR = 62, 64
S_KT, S_VT, S_XM, S_VM = 66, 68, 70, 72
S_SPIN = 74
S_XMN, S_VMN = 76, 78
S_POI_OLD = 76
S_PXR, S_PXL = 84, 86
S_C = 88
S_LO, S_HI = 90, 91
S_EXO = 92
S_NEED = 94
S_XMW = 95
S_WBIT = 87
S_EXX = 84
S_HW, S_HR = 80, 82
S_POL = 86
S_OFFR = 85
S_DUM = 42

SPIN_MAX = 0x20000

DBGT = [0]
def dbg_stamp(a, word, first=False):
    if not DBGT[0]: return
    sk = a.newlabel("L_dt")
    a(f"s_or_b32 s4, s{S_PROD}, s{S_W}"); a("s_cmp_eq_u32 s4, 0"); a(f"s_cbranch_scc0 {sk}")
    a("s_memrealtime s[4:5]"); a("s_waitcnt lgkmcnt(0)")
    if first: a("s_mov_b32 s3, s4")
    a("s_sub_u32 s4, s4, s3")
    a("s_mov_b64 s[6:7], exec"); a("s_mov_b64 exec, 1")
    a(f"v_mov_b32 v142, {4*word}"); a("v_mov_b32 v143, s4")
    a("global_store_dword v142, v143, s[28:29] sc1")
    a("s_waitcnt vmcnt(0)")
    a("s_mov_b64 exec, s[6:7]")
    a.label(sk)

def gen_r(a, opts):
    DBGT[0] = opts.get('dbgt', 0)
    ROT[0] = opts.get('rot', 0)
    PRETOUCH[0] = opts.get('pre', 0)
    D_RED = opts.get('d_red', 5); D_LOC = opts.get('d_loc', 2); D_REM = opts.get('d_rem', 1)
    prof = opts.get('prof', False)
    a.label("L_R")
    a("v_and_b32 v1, 63, v0")
    a(f"s_lshr_b32 s{S_T0}, s{S_J}, 1"); a(f"s_lshl_b32 s{S_H}, s{S_G}, 4"); a(f"s_add_u32 s{S_H}, s{S_H}, s{S_T0}")
    a(f"s_and_b32 s{S_HF}, s{S_J}, 1")
    a(f"s_lshl_b32 s{S_PROD}, s{S_G}, 5"); a(f"s_add_u32 s{S_PROD}, s{S_PROD}, s{S_J}")
    a(f"s_lshl_b32 s{S_RID}, s{S_W}, 5"); a(f"s_add_u32 s{S_RID}, s{S_RID}, s{S_J}")
    a(f"s_cmp_lt_u32 s{S_RID}, 80"); a(f"s_cselect_b32 s{S_RACT}, 1, 0")
    dbg_stamp(a, 12, first=True)
    init_handoff(a)
    prologue_weights(a)
    dbg_stamp(a, 12)
    setup_regs(a)
    load_mem0(a)
    rt_stamp(a, 1, 140, opts.get('tl', 0))
    census(a)
    body(a, opts, slow=False)
    body(a, opts, slow=True)

def init_handoff(a):
    for r in range(4, 8): a(f"v_mov_b32 v{r}, -1")
    a("v_lshlrev_b32 v2, 4, v0")
    a(f"s_mul_i32 s{S_T0}, s{S_PROD}, 10240")
    sadd64(a, 48, P_WS, WS_PART); sadd64(a, 48, 48, f"s{S_T0}")
    a("v_add_u32 v3, 4096, v2"); a("v_min_u32 v8, 2032, v2"); a("v_add_u32 v8, 8192, v8")
    for sl in range(2):
        for v in (2, 3, 8): a(f"global_store_dwordx4 v{v}, v[4:7], s[48:49] sc1")
        if sl == 0: sadd64(a, 48, 48, 64*10240)
    a(f"s_lshl_b32 s{S_T0}, s{S_G}, 15"); a(f"s_lshl_b32 s{S_T1}, s{S_J}, 10"); a(f"s_add_u32 s{S_T0}, s{S_T0}, s{S_T1}")
    a(f"s_and_b32 s{S_T1}, s{S_W}, 1"); a(f"s_lshl_b32 s{S_T1}, s{S_T1}, 16"); a(f"s_add_u32 s{S_T0}, s{S_T0}, s{S_T1}")
    sadd64(a, 48, P_WS, WS_XPR); sadd64(a, 48, 48, f"s{S_T0}")
    a("v_lshlrev_b32 v9, 4, v1")
    a("global_store_dwordx4 v9, v[4:7], s[48:49] sc1")
    a(f"s_mul_i32 s{S_T0}, s{S_G}, 10240"); a(f"s_mul_i32 s{S_T1}, s{S_J}, 320"); a(f"s_add_u32 s{S_T0}, s{S_T0}, s{S_T1}")
    a(f"s_and_b32 s{S_T1}, s{S_W}, 1"); a(f"s_mul_i32 s{S_T1}, s{S_T1}, 20480"); a(f"s_add_u32 s{S_T0}, s{S_T0}, s{S_T1}")
    sadd64(a, 48, P_WS, WS_XPL); sadd64(a, 48, 48, f"s{S_T0}")
    a("v_min_u32 v9, 304, v9")
    a("global_store_dwordx4 v9, v[4:7], s[48:49] sc1")

def prologue_weights(a):
    QB = [0, 40960, 81920, 122880]
    a(f"s_lshl_b32 s{S_T0}, s{S_H}, 8")
    sadd64(a, 50, P_WQ, f"s{S_T0}"); sadd64(a, 52, P_WK, f"s{S_T0}")
    a(f"s_lshl_b32 s{S_T1}, s{S_HF}, 7"); a(f"s_add_u32 s{S_T0}, s{S_T0}, s{S_T1}")
    sadd64(a, 54, P_WV, f"s{S_T0}")
    a("v_lshrrev_b32 v2, 4, v1"); a("v_and_b32 v3, 15, v1")
    a("v_lshrrev_b32 v4, 1, v3"); a("v_and_b32 v5, 1, v3")
    a("v_and_b32 v6, 1, v2")
    a(f"s_and_b32 s{S_T0}, s{S_W}, 1"); a(f"s_lshl_b32 s{S_T0}, s{S_T0}, 2")
    a(f"v_or_b32 v6, s{S_T0}, v6")
    a(f"s_lshl_b32 s{S_T1}, s{S_W}, 4")
    a(f"v_add_u32 v7, s{S_T1}, v2")
    for i in range(4):
        a(f"v_or_b32 v8, {(i & 1) << 1}, v6"); a("v_xor_b32 v8, v8, v4"); a("v_lshl_add_u32 v8, v8, 1, v5")
        a(f"v_add_u32 v9, {4*i}, v7"); a("v_lshlrev_b32 v9, 13, v9"); a(f"v_lshl_add_u32 v{10+i}, v8, 4, v9")
    a("v_lshrrev_b32 v2, 3, v1"); a("v_and_b32 v3, 7, v1")
    a("v_lshrrev_b32 v4, 1, v3"); a("v_and_b32 v5, 1, v3")
    a("v_bfe_u32 v6, v2, 2, 1")
    a(f"s_and_b32 s{S_T0}, s{S_W}, 1"); a(f"s_lshl_b32 s{S_T0}, s{S_T0}, 1"); a(f"v_or_b32 v6, s{S_T0}, v6")
    a("v_xor_b32 v6, v6, v4"); a("v_lshl_add_u32 v6, v6, 1, v5")
    for i in range(2):
        a(f"s_lshl_b32 s{S_T1}, s{S_W}, 4"); a(f"s_add_u32 s{S_T1}, s{S_T1}, {8*i}")
        a(f"v_add_u32 v9, s{S_T1}, v2"); a("v_lshlrev_b32 v9, 13, v9"); a(f"v_lshl_add_u32 v{14+i}, v6, 4, v9")
    def qkv_dma(buf):
        a(f"s_lshl_b32 s{S_T0}, s{S_W}, 12"); a(f"s_add_u32 s{S_T0}, s{S_T0}, {buf}")
        for i in range(4):
            a(f"s_add_u32 m0, s{S_T0}, {1024*i}"); a(f"global_load_lds_dwordx4 v{10+i}, s[50:51]")
        for i in range(4):
            a(f"s_add_u32 m0, s{S_T0}, {16384 + 1024*i}"); a(f"global_load_lds_dwordx4 v{10+i}, s[52:53]")
        a(f"s_lshl_b32 s{S_T0}, s{S_W}, 11"); a(f"s_add_u32 s{S_T0}, s{S_T0}, {buf + 32768}")
        for i in range(2):
            a(f"s_add_u32 m0, s{S_T0}, {1024*i}"); a(f"global_load_lds_dwordx4 v{14+i}, s[54:55]")
        for p in (50, 52, 54): sadd64(a, p, p, 64*8192)
    a(f"s_lshl_b32 s{S_T0}, s{S_H}, 7"); a(f"s_lshl_b32 s{S_T1}, s{S_HF}, 6"); a(f"s_add_u32 s{S_T0}, s{S_T0}, s{S_T1}")
    a(f"s_mul_i32 s{S_T0}, s{S_T0}, 1280")
    sadd64(a, 48, P_WO, f"s{S_T0}")
    a(f"s_mul_i32 s{S_T2}, s{S_W}, 1280"); a(f"v_add_u32 v16, s{S_T2}, v1")
    a(f"s_mul_i32 s{S_T2}, s{S_W}, 20480"); a(f"s_add_u32 s{S_T2}, s{S_T2}, {L_STG}")
    a(f"s_mov_b32 s{S_T3}, 52429")
    for i in range(20):
        a(f"v_mul_lo_u32 v17, v16, s{S_T3}"); a("v_lshrrev_b32 v17, 22, v17")
        a("v_mul_u32_u24 v18, 80, v17"); a("v_sub_u32 v18, v16, v18")
        a("v_and_b32 v19, 1, v17"); a("v_bfe_u32 v20, v17, 2, 2"); a("v_lshl_add_u32 v19, v20, 1, v19")
        a("v_lshlrev_b32 v19, 1, v19"); a("v_xor_b32 v18, v18, v19")
        a("v_mul_u32_u24 v17, 1280, v17"); a("v_lshl_add_u32 v17, v18, 4, v17")
        a(f"s_add_u32 m0, s{S_T2}, {1024*i}")
        a("global_load_lds_dwordx4 v17, s[48:49]")
        a("v_add_u32 v16, 64, v16")
    qkv_dma(QB[0]); qkv_dma(QB[1])
    a("v_lshrrev_b32 v5, 4, v1")
    a("v_bfe_u32 v6, v1, 2, 2")
    a("v_lshrrev_b32 v7, 1, v5"); a("v_lshlrev_b32 v7, 4, v7")
    a("v_and_b32 v8, 1, v5"); a("v_lshl_add_u32 v7, v8, 2, v7")
    a("v_and_b32 v9, 1, v6"); a("v_add_u32 v7, v7, v9")
    a("v_lshrrev_b32 v16, 1, v6"); a("v_lshl_add_u32 v7, v16, 3, v7")
    a("v_mul_u32_u24 v7, 1280, v7")
    a("v_and_b32 v17, 3, v1"); a("v_lshl_add_u32 v7, v17, 3, v7"); a(f"v_add_u32 v7, {L_STG}, v7")
    a("v_lshl_add_u32 v9, v8, 1, v9"); a("v_lshl_add_u32 v9, v16, 2, v9")
    a("s_waitcnt vmcnt(20)")
    a("s_barrier")
    a(f"s_cmp_eq_u32 s{S_W}, 0"); a("s_cbranch_scc0 L_R_noid")
    init_done(a, 28, DBG_RINIT)
    a.label("L_R_noid")
    if PRETOUCH[0]:
        a("v_lshlrev_b32 v28, 4, v0"); a("v_add_u32 v29, 4096, v28"); a("v_min_u32 v24, 2032, v28"); a("v_add_u32 v24, 8192, v24")
        a(f"s_mul_i32 s{S_T0}, s{S_PROD}, 10240")
        sadd64(a, 56, P_WS, WS_PART); sadd64(a, 56, 56, f"s{S_T0}")
        for sl in range(2):
            for k, v in enumerate((28, 29, 24)): a(f"global_load_dwordx4 v[{110+12*sl+4*k}:{113+12*sl+4*k}], v{v}, s[56:57] sc1")
            if sl == 0: sadd64(a, 56, 56, 64*10240)
        a(f"s_mul_i32 s{S_T0}, s{S_G}, 10240"); a(f"s_mul_i32 s{S_T1}, s{S_J}, 320"); a(f"s_add_u32 s{S_T0}, s{S_T0}, s{S_T1}")
        a(f"s_and_b32 s{S_T1}, s{S_W}, 1"); a(f"s_mul_i32 s{S_T1}, s{S_T1}, 20480"); a(f"s_add_u32 s{S_T0}, s{S_T0}, s{S_T1}")
        sadd64(a, 56, P_WS, WS_XPL); sadd64(a, 56, 56, f"s{S_T0}")
        a("v_lshlrev_b32 v28, 4, v1"); a("v_min_u32 v28, 304, v28")
        a("global_load_dwordx4 v[134:137], v28, s[56:57] sc1")
    for tt in range(10):
        a(f"s_mul_i32 s{S_T0}, s{S_W}, 10"); a(f"s_add_u32 s{S_T0}, s{S_T0}, {tt}")
        a(f"s_and_b32 s{S_T1}, s{S_T0}, 7"); a(f"s_and_b32 s{S_T2}, s{S_T0}, 0xf8")
        a(f"v_xor_b32 v17, s{S_T1}, v9"); a(f"v_add_u32 v17, s{S_T2}, v17"); a("v_lshl_add_u32 v17, v17, 5, v7")
        d = 30 + 8*tt
        for hi in range(2):
            for jq in range(2):
                a(f"ds_read_b64_tr_b16 v[{d+4*hi+2*jq}:{d+4*hi+2*jq+1}], v17 offset:{40960*hi + 2560*jq}")
        if tt % 3 == 2: a("s_waitcnt lgkmcnt(0)")
    a("s_waitcnt lgkmcnt(0)")
    a("s_barrier")
    qkv_dma(QB[2]); qkv_dma(QB[3])
    a("v_lshrrev_b32 v5, 4, v1"); a("v_bfe_u32 v6, v1, 2, 2")
    a("v_lshlrev_b32 v7, 2, v5"); a("v_and_b32 v8, 1, v6"); a("v_add_u32 v7, v7, v8"); a("v_lshrrev_b32 v9, 1, v6"); a("v_lshl_add_u32 v7, v9, 4, v7")
    a("v_and_b32 v16, 1, v5")
    a("v_lshl_add_u32 v17, v16, 1, v8"); a("v_lshl_add_u32 v17, v9, 2, v17")
    a("v_lshl_add_u32 v21, v9, 1, v16")
    a("v_and_b32 v22, 3, v1")
    a("v_lshlrev_b32 v23, 8, v7"); a("v_lshl_add_u32 v23, v22, 3, v23")
    for t in range(2):
        a(f"s_lshl_b32 s{S_T0}, s{S_W}, 1"); a(f"s_add_u32 s{S_T0}, s{S_T0}, {t}")
        a(f"v_xor_b32 v24, s{S_T0}, v17"); a(f"v_lshl_add_u32 v{18+t}, v24, 5, v23")
    a("v_lshlrev_b32 v23, 7, v7"); a("v_lshl_add_u32 v23, v22, 3, v23"); a("v_add_u32 v23, 32768, v23")
    a(f"v_xor_b32 v24, s{S_W}, v21"); a("v_lshl_add_u32 v20, v24, 5, v23")
    KTMP = 110
    for c in range(10):
        buf = QB[c & 3]
        inflight = min(3, 9 - c)
        a(f"s_waitcnt vmcnt({10*inflight})")
        a("s_barrier")
        for r in range(3): a(f"v_add_u32 v{25+r}, {buf}, v{18+r}")
        lgp = Cnt(a, "lgkmcnt", 15)
        for tile, areg, img in (('q0', 25, 0), ('q1', 26, 0), ('k0', 25, 16384), ('k1', 26, 16384), ('v', 27, 0)):
            for hi in range(2):
                for jq in range(2):
                    lo = 4*hi + 2*jq
                    if wfrag(tile, c) is None: dst = f"v[{KTMP+8*(c-4)+lo}:{KTMP+8*(c-4)+lo+1}]"
                    else: dst = wr(tile, c, lo, 2)
                    off = img + (hi*4096 + jq*256 if tile == 'v' else hi*8192 + jq*512)
                    lgp.issue(0, f"ds_read_b64_tr_b16 {dst}, v{areg} offset:{off}")
        lgp.waitall()
        a("s_barrier")
        if c + 4 < 10: qkv_dma(buf)
    a(f"s_mul_i32 s{S_T0}, s{S_W}, 20480"); a("v_lshlrev_b32 v12, 4, v1"); a(f"v_add_u32 v12, s{S_T0}, v12")
    for tt in range(10):
        d = 30 + 8*tt
        a(f"ds_write_b128 v12, v[{d}:{d+3}] offset:{2048*tt}")
        a(f"ds_write_b128 v12, v[{d+4}:{d+7}] offset:{2048*tt+1024}")
        if tt % 5 == 4: a("s_waitcnt lgkmcnt(0)")
    a(f"s_mul_i32 s{S_T0}, s{S_W}, 12288"); a(f"s_add_u32 s{S_T0}, s{S_T0}, {L_WS}")
    a("v_lshlrev_b32 v12, 4, v1"); a(f"v_add_u32 v12, s{S_T0}, v12")
    for k in range(6):
        a(f"ds_write_b128 v12, v[{KTMP+8*k}:{KTMP+8*k+3}] offset:{2048*k}")
        a(f"ds_write_b128 v12, v[{KTMP+8*k+4}:{KTMP+8*k+7}] offset:{2048*k+1024}")
    a("s_waitcnt lgkmcnt(0)")

ROT = [0]
PRETOUCH = [1]
def gather_block(a, sreg):
    if ROT[0]:
        a(f"s_add_u32 s{sreg}, s{S_W}, s{S_J}"); a(f"s_and_b32 s{sreg}, s{sreg}, 3")
    else:
        a(f"s_mov_b32 s{sreg}, s{S_W}")

def setup_regs(a):
    LN = 19
    a(f"v_mov_b32 v{LN}, v1")
    T = 56
    a(f"v_lshrrev_b32 v{T}, 4, v{LN}")
    a(f"v_and_b32 v{T+1}, 15, v{LN}")
    a(f"v_bfe_u32 v{T+2}, v{LN}, 2, 2")
    a(f"v_and_b32 v{T+3}, 3, v{LN}")
    G, N, R_, CC = T, T+1, T+2, T+3
    t0, t1, t2 = T+4, T+5, T+6
    a(f"v_and_b32 v{t0}, 2, v{LN}"); a(f"v_cmp_eq_u32 vcc, 0, v{t0}")
    a(f"v_mov_b32 v{t1}, 0xeeeeeeee"); a(f"v_mov_b32 v{t2}, 0x44444444")
    a(f"v_cndmask_b32 v{V_IDX}, v{t1}, v{t2}, vcc")
    a(f"v_lshlrev_b32 v{V_L16}, 4, v{LN}"); a(f"v_lshlrev_b32 v{V_L8}, 3, v{LN}")
    a(f"v_lshrrev_b32 v{t0}, 1, v{G}"); a(f"v_lshlrev_b32 v{t0}, 9, v{t0}")
    a(f"v_lshl_add_u32 v{t0}, v{CC}, 7, v{t0}")
    a(f"v_and_b32 v{t1}, 1, v{G}"); a(f"v_lshl_add_u32 v{t0}, v{t1}, 6, v{t0}")
    a(f"v_lshl_add_u32 v{t0}, v{R_}, 3, v{t0}"); a(f"v_add_u32 v{t0}, {L_IMG}, v{t0}")
    a(f"v_lshrrev_b32 v{t1}, 1, v{CC}")
    a(f"v_lshl_add_u32 v{V_AT0}, v{t1}, 5, v{t0}")
    a(f"v_xor_b32 v{t1}, 1, v{t1}"); a(f"v_lshl_add_u32 v{V_AT1}, v{t1}, 5, v{t0}")
    a(f"s_lshl_b32 s{S_T0}, s{S_W}, 5"); a(f"v_add_u32 v{t0}, s{S_T0}, v{N}")
    a(f"v_lshrrev_b32 v{t1}, 2, v{t0}"); a(f"v_lshrrev_b32 v{t2}, 1, v{G}"); a(f"v_add_u32 v{t1}, v{t1}, v{t2}")
    a(f"v_lshlrev_b32 v{t0}, 5, v{t0}"); a(f"v_and_b32 v{t2}, 1, v{G}"); a(f"v_lshl_add_u32 v{t0}, v{t2}, 2, v{t0}"); a(f"v_add_u32 v{t0}, {L_XIM}, v{t0}")
    a(f"v_and_b32 v{t2}, 3, v{t1}"); a(f"v_lshl_add_u32 v{V_XWQ}, v{t2}, 3, v{t0}")
    a(f"v_add_u32 v{t1}, 2, v{t1}"); a(f"v_and_b32 v{t2}, 3, v{t1}"); a(f"v_lshl_add_u32 v{V_XWK}, v{t2}, 3, v{t0}")
    a(f"v_lshl_add_u32 v{t0}, v{G}, 2, v{R_}"); a(f"v_lshlrev_b32 v{t0}, 5, v{t0}")
    a(f"v_add_u32 v{t1}, v{CC}, v{G}"); a(f"v_and_b32 v{t1}, 3, v{t1}"); a(f"v_lshl_add_u32 v{t0}, v{t1}, 3, v{t0}")
    a(f"v_add_u32 v{V_XR}, {L_XIM}, v{t0}")
    a(f"v_add_u32 v{V_KT}, {L_KTB}, v{V_L16}")
    a(f"s_mul_i32 s{S_T0}, s{S_W}, 20480"); a(f"v_add_u32 v{V_WO}, s{S_T0}, v{V_L16}")
    a(f"s_mul_i32 s{S_T0}, s{S_W}, 12288"); a(f"s_add_u32 s{S_T0}, s{S_T0}, {L_WS}"); a(f"v_add_u32 v{V_WS}, s{S_T0}, v{V_L16}")
    a(f"s_lshl_b32 s{S_T0}, s{S_W}, 1"); a(f"v_lshrrev_b32 v{t0}, 1, v{G}"); a(f"v_add_u32 v{t0}, s{S_T0}, v{t0}")
    a(f"v_and_b32 v{t1}, 6, v{N}"); a(f"v_xor_b32 v{t0}, v{t0}, v{t1}"); a(f"v_lshlrev_b32 v{t0}, 4, v{t0}")
    a(f"v_and_b32 v{t1}, 7, v{N}"); a(f"v_lshl_add_u32 v{t0}, v{t1}, 7, v{t0}")
    a(f"v_and_b32 v{t1}, 1, v{G}"); a(f"v_lshl_add_u32 v{t0}, v{t1}, 3, v{t0}"); a(f"v_add_u32 v{V_OEW}, {L_OEX}, v{t0}")
    a(f"v_lshrrev_b32 v{t0}, 2, v{N}"); a(f"v_lshlrev_b32 v{t0}, 1, v{t0}"); a(f"v_and_b32 v{t1}, 1, v{N}"); a(f"v_add_u32 v{t0}, v{t0}, v{t1}")
    a(f"v_bfe_u32 v{t1}, v{N}, 1, 1"); a(f"v_lshl_add_u32 v{t1}, v{G}, 1, v{t1}")
    a(f"v_and_b32 v{t2}, 6, v{t0}"); a(f"v_xor_b32 v{t1}, v{t1}, v{t2}"); a(f"v_lshlrev_b32 v{t1}, 4, v{t1}")
    a(f"v_lshl_add_u32 v{t1}, v{t0}, 7, v{t1}"); a(f"v_add_u32 v{V_OER}, {L_OEX}, v{t1}")
    a(f"s_lshl_b32 s{S_T0}, s{S_W}, 8"); a(f"s_add_u32 s{S_T0}, s{S_T0}, {L_VEX}")
    a(f"v_lshlrev_b32 v{t0}, 4, v{N}"); a(f"v_add_u32 v{t0}, s{S_T0}, v{t0}")
    a(f"v_lshl_add_u32 v{V_VEW}, v{G}, 2, v{t0}")
    a(f"v_and_b32 v{t1}, 1, v{G}"); a(f"v_lshl_add_u32 v{V_VER}, v{t1}, 3, v{t0}")
    gather_block(a, S_T0)
    a(f"s_mul_i32 s{S_T0}, s{S_T0}, 2560"); a(f"s_add_u32 s{S_T0}, s{S_T0}, {L_IMG}")
    a(f"v_lshrrev_b32 v{t0}, 5, v{LN}"); a(f"v_lshlrev_b32 v{t0}, 9, v{t0}")
    a(f"v_bfe_u32 v{t1}, v{LN}, 3, 2"); a(f"v_lshl_add_u32 v{t0}, v{t1}, 7, v{t0}")
    a(f"v_lshrrev_b32 v{t1}, 1, v{t1}"); a(f"v_lshlrev_b32 v{t1}, 5, v{t1}")
    a(f"v_and_b32 v{t2}, 7, v{LN}"); a(f"v_lshlrev_b32 v{t2}, 4, v{t2}"); a(f"v_xor_b32 v{t2}, v{t2}, v{t1}")
    a(f"v_add_u32 v{t0}, v{t0}, v{t2}"); a(f"v_add_u32 v{V_IW0}, s{S_T0}, v{t0}")
    a(f"v_lshrrev_b32 v{t1}, 1, v{G}"); a(f"v_lshlrev_b32 v{t1}, 5, v{t1}"); a(f"v_lshlrev_b32 v{t2}, 3, v{N}"); a(f"v_xor_b32 v{t2}, v{t2}, v{t1}")
    a(f"v_lshl_add_u32 v{t0}, v{G}, 7, v{t2}"); a(f"v_add_u32 v{V_IW2}, s{S_T0}, v{t0}")
    a(f"v_lshrrev_b32 v{t0}, 3, v{N}"); a(f"v_lshl_add_u32 v{t0}, v{G}, 1, v{t0}"); a(f"v_mul_u32_u24 v{t0}, 10240, v{t0}")
    a(f"v_and_b32 v{t1}, 7, v{N}"); a(f"v_lshl_add_u32 v{t0}, v{t1}, 4, v{t0}")
    a(f"s_min_u32 s{S_T0}, s{S_RID}, 79"); a(f"s_lshl_b32 s{S_T0}, s{S_T0}, 7"); a(f"v_add_u32 v{V_RL}, s{S_T0}, v{t0}")
    for r in range(4): a(f"v_mov_b32 v{V_ONES+r}, 0x3f803f80")
    for k in range(4):
        a(f"v_mov_b32 v{t0}, 0")
        a(f"v_cmp_eq_u32 vcc, {2*k}, v{N}"); a(f"v_mov_b32 v{t1}, 0x3f80"); a(f"v_cndmask_b32 v{t0}, v{t0}, v{t1}, vcc")
        a(f"v_cmp_eq_u32 vcc, {2*k+1}, v{N}"); a(f"v_mov_b32 v{t1}, 0x3f800000"); a(f"v_cndmask_b32 v{V_SEL+k}, v{t0}, v{t1}, vcc")
    a(f"v_cmp_gt_u32 vcc, 2, v{G}"); a(f"v_mov_b32 v{t1}, 0xff800000"); a(f"v_mov_b32 v{t0}, 0")
    for r in range(4): a(f"v_cndmask_b32 v{V_CNEG+r}, v{t0}, v{t1}, vcc")
    a(f"s_mov_b32 s{S_C}, 0x{f32bits(128**-0.5 * 1.4426950408889634):08x}"); a(f"s_mov_b32 s{S_C+1}, s{S_C}")
    a(f"s_mov_b32 s{S_LO}, 0x00003f80"); a(f"s_mov_b32 s{S_HI}, 0x3f800000")
    a(f"s_mov_b32 s{S_EXO}, 0x00ff00ff"); a(f"s_mov_b32 s{S_EXO+1}, 0x00ff00ff")

def load_mem0(a):
    LN = 19
    T = 56
    a(f"v_bfe_u32 v{T}, v{LN}, 4, 2"); a(f"v_and_b32 v{T+1}, 15, v{LN}")
    a(f"v_mul_u32_u24 v{T+2}, 2560, v{T}")
    a(f"s_lshl_b32 s{S_T0}, s{S_W}, 5"); a(f"v_add_u32 v{T+3}, s{S_T0}, v{T+1}"); a(f"v_lshl_add_u32 v{T+2}, v{T+3}, 1, v{T+2}")
    B = 64
    for i in range(5):
        for q, off in enumerate((0, 1280, 32, 1312)):
            a(f"global_load_ushort v{B+4*i+q}, v{T+2}, {sp(P_MEM0)} offset:{256*i+off}")
    a(f"v_lshrrev_b32 v{T+3}, 1, v{T}"); a(f"v_lshlrev_b32 v{T+3}, 5, v{T+3}"); a(f"v_lshlrev_b32 v{T+4}, 3, v{T+1}"); a(f"v_xor_b32 v{T+4}, v{T+4}, v{T+3}")
    a(f"v_lshl_add_u32 v{T+4}, v{T}, 7, v{T+4}"); a(f"s_lshl_b32 s{S_T0}, s{S_W}, 9"); a(f"s_add_u32 s{S_T0}, s{S_T0}, {L_IMG}"); a(f"v_add_u32 v{T+4}, s{S_T0}, v{T+4}")

def finish_mem0(a):
    T = 56; B = 64
    for i in range(5):
        a(f"v_lshl_or_b32 v{B+4*i}, v{B+4*i+1}, 16, v{B+4*i}")
        a(f"v_lshl_or_b32 v{B+4*i+1}, v{B+4*i+3}, 16, v{B+4*i+2}")
        a(f"ds_write_b64 v{T+4}, v[{B+4*i}:{B+4*i+1}] offset:{2048*i}")

def census(a):
    from gen import XA, XB
    a(f"s_mov_b32 s{S_SPIN}, 0")
    load_tickets(a, 90, 91, 19)
    a(f"v_mov_b32 v92, {DBG_RINIT}"); a("v_cmp_eq_u32 vcc, 12, v19"); a("v_cndmask_b32 v90, v90, v92, vcc")
    a(f"global_load_dword v91, v90, {sp(P_DBG)} sc1")
    a("s_waitcnt vmcnt(0)")
    finish_mem0(a)
    a("s_branch L_R_census_chk")
    a.label("L_R_census")
    a(f"global_load_dword v91, v90, {sp(P_DBG)} sc1")
    a("s_waitcnt vmcnt(0)")
    a.label("L_R_census_chk")
    sum_tickets(a, S_T0, S_T1, 91)
    a(f"v_readlane_b32 s{S_T1}, v91, 12"); a(f"v_readlane_b32 s{S_POL}, v91, 11")
    a(f"s_cmp_ge_u32 s{S_T1}, 64"); a(f"s_cselect_b32 s{S_T0}, s{S_T0}, 0")
    a(f"s_cmp_ge_u32 s{S_T0}, 256"); a(f"s_cselect_b32 s{S_T0}, s{S_POL}, 0")
    a(f"s_cmp_lg_u32 s{S_T0}, 0"); a("s_cbranch_scc1 L_R_census_ok")
    a("s_sleep 4")
    a(f"s_add_u32 s{S_SPIN}, s{S_SPIN}, 1"); a(f"s_cmp_lt_u32 s{S_SPIN}, {SPIN_MAX}"); a("s_cbranch_scc1 L_R_census")
    a("s_endpgm")
    a.label("L_R_census_ok")
    a(f"s_cmp_eq_u32 s{S_POL}, 2"); a(f"s_cselect_b32 s{S_POL}, 8192, 0")
    a(f"v_readlane_b32 s{S_T0}, v91, {XA}"); a(f"v_readlane_b32 s{S_T1}, v91, {XB}")
    a(f"s_min_u32 s{S_T0}, s{S_T0}, s{S_T1}")
    a("s_waitcnt lgkmcnt(0)")
    a(f"s_cmp_ge_u32 s{S_T0}, 32")
    a("s_cbranch_scc0 L_Rslow_start")
    a("s_branch L_Rfast_start")

WS_DUMMY = 8 * MB
V_FLG = 0
V_FV = 19
S_OFFP = 96
S_OFFX = 97
S_TAG = 99
S_M0KT = 98
S_FM = 100

def backoff(a, n33, opts):
    if n33 <= 0: return
    if opts.get('slp', 1):
        k = (n33 * 33 + 32) // 64
        if k: a(f"s_sleep {k}")
    else:
        for _ in range(n33): a("s_nop 7")

def weave(a, mains, fillers, per=2):
    fi = 0
    for m in mains:
        m()
        k = 0
        while k < per and fi < len(fillers):
            f = fillers[fi]; fi += 1
            if f is None: break
            n = f()
            k += n if n else 1
    while fi < len(fillers):
        if fillers[fi] is not None: fillers[fi]()
        fi += 1

def body(a, opts, slow):
    P = "L_Rslow" if slow else "L_Rfast"
    LS = "sc1" if slow else ""
    D_RED = opts.get('d_red', 10); D_LOC = opts.get('d_loc', 12); D_REM = opts.get('d_rem', 0)
    stamps = opts.get('prof', False)
    prof = stamps or opts.get('cnt', False)
    PROF = [2, 26, 27, 23, 23, 23, 23, 23, 23] if not stamps else [2, 3, 4, 5, 6, 7, 23, 26, 27]; PRT = [20, 21, 22]
    fine = opts.get('fine', 0)
    def fstamp(i):
        if not fine: return
        a("s_memtime s[44:45]"); a("s_waitcnt lgkmcnt(0)")
        a("s_sub_u32 s45, s44, s33"); a(f"s_add_u32 s{PROF[i]}, s{PROF[i]}, s45")
        a("s_mov_b32 s33, s44")
    def stamp(i):
        if not stamps: return
        if fine and i is not None:
            i = {0: 8, 1: 8, 2: 8, 3: 8, 4: 8, 5: 8, 6: 8, 7: 8, 8: 8}[i]
        a("s_memtime s[44:45]"); a("s_waitcnt lgkmcnt(0)")
        if i is not None:
            a("s_sub_u32 s45, s44, s33"); a(f"s_add_u32 s{PROF[i]}, s{PROF[i]}, s45")
        a("s_mov_b32 s33, s44")
    I = lambda t: (lambda: a(t))
    RT = {'A': 86, 'B': 42, 'C': 22, 'D': 28, 'E': 6, 'F': 24, 'G': 20, 'H': None, 'I': 26, 'J': 2, 'K': 4}
    rt_on = opts.get('rt', 0)
    def rt(k):
        if rt_on and RT[k] is not None: a(f"s_memrealtime s[{RT[k]}:{RT[k]+1}]")
    B_PST, B_RL, B_PUBR, B_PUBL, B_GL, B_GR = 8, 10, 12, 14, 16, 18
    a.label(P + "_start")
    if prof:
        for r in PROF + PRT: a(f"s_mov_b32 s{r}, 0")
    a(f"s_mov_b32 s{S_STEP}, 0"); a(f"s_mov_b32 s{S_OFFP}, 0"); a(f"s_mov_b32 s{S_OFFX}, 0"); a(f"s_mov_b32 s{S_TAG}, 0")
    a(f"s_lshl_b32 s{S_T0}, s{S_H}, 13")
    sadd64(a, S_KT, P_WS, WS_KT); sadd64(a, S_KT, S_KT, f"s{S_T0}"); a(f"s_lshl_b32 s{S_T1}, s{S_W}, 11"); sadd64(a, S_KT, S_KT, f"s{S_T1}")
    sadd64(a, S_VT, P_WS, WS_VT); sadd64(a, S_VT, S_VT, f"s{S_T0}")
    a(f"s_lshl_b32 s{S_T1}, s{S_HF}, 2"); a(f"s_add_u32 s{S_T1}, s{S_T1}, s{S_W}"); a(f"s_lshl_b32 s{S_T2}, s{S_T1}, 10"); sadd64(a, S_VT, S_VT, f"s{S_T2}")
    a(f"s_lshl_b32 s{S_T0}, s{S_H}, 12")
    sadd64(a, S_XM, P_WS, WS_XM); sadd64(a, S_XM, S_XM, f"s{S_T0}")
    a(f"s_and_b32 s{S_XMW}, s{S_W}, 1"); a(f"s_lshl_b32 s{S_T3}, s{S_HF}, 1"); a(f"s_add_u32 s{S_XMW}, s{S_XMW}, s{S_T3}"); a(f"s_lshl_b32 s{S_XMW}, s{S_XMW}, 10")
    sadd64(a, S_XM, S_XM, f"s{S_XMW}")
    sadd64(a, S_VM, P_WS, WS_VM); sadd64(a, S_VM, S_VM, f"s{S_T0}"); a(f"s_lshl_b32 s{S_T2}, s{S_T1}, 9"); sadd64(a, S_VM, S_VM, f"s{S_T2}")
    a(f"s_lshl_b32 s{S_T0}, s{S_H}, 1"); a(f"s_add_u32 s{S_T0}, s{S_T0}, s{S_HF}"); a(f"s_lshl_b32 s{S_T0}, s{S_T0}, 6"); a(f"s_add_u32 s{S_T0}, s{S_T0}, {FM_OFF}")
    sadd64(a, S_FM, P_WS, f"s{S_T0}")
    a(f"v_lshrrev_b32 v56, 4, v{V_L16}")
    a(f"v_and_b32 v57, 3, v56"); a("v_lshlrev_b32 v57, 2, v57"); a("v_bfe_u32 v58, v56, 2, 1"); a(f"v_mul_u32_u24 v58, {FV_OFF}, v58"); a("v_add_u32 v57, v57, v58")
    a(f"s_lshl_b32 s{S_T0}, s{S_H}, 6"); a(f"v_add_u32 v{V_FV}, s{S_T0}, v57")
    a(f"s_mul_i32 s{S_T1}, s{S_PROD}, 10240"); a(f"s_mul_i32 s{S_T2}, s{S_W}, 2560"); a(f"s_add_u32 s{S_T1}, s{S_T1}, s{S_T2}")
    sadd64(a, B_PST, P_WS, WS_PART); sadd64(a, B_PST, B_PST, f"s{S_T1}")
    a(f"s_mul_i32 s{S_T1}, s{S_G}, {32*10240}"); a(f"s_add_u32 s{S_T1}, s{S_T1}, {WS_PART}")
    a(f"s_cmp_eq_u32 s{S_RACT}, 0"); a(f"s_cselect_b32 s{S_T1}, {WS_DUMMY}, s{S_T1}")
    sadd64(a, B_RL, P_WS, f"s{S_T1}")
    a(f"s_min_u32 s{S_T3}, s{S_RID}, 79")
    a(f"s_mul_i32 s{S_T1}, s{S_G}, 10240"); a(f"s_lshl_b32 s{S_T2}, s{S_T3}, 7"); a(f"s_add_u32 s{S_T2}, s{S_T2}, s{S_T1}"); a(f"s_add_u32 s{S_T2}, s{S_T2}, {WS_XPL}")
    a(f"s_lshl_b32 s{S_T0}, s{S_T3}, 7")
    a(f"s_sub_u32 s{S_T1}, s{S_T0}, {60*128}"); a(f"s_add_u32 s{S_T1}, s{S_T1}, 16384")
    a(f"s_cmp_ge_u32 s{S_T3}, 60"); a(f"s_cselect_b32 s{S_T0}, s{S_T1}, s{S_T0}")
    a(f"s_lshl_b32 s{S_T1}, s{S_G}, 15"); a(f"s_add_u32 s{S_T0}, s{S_T0}, s{S_T1}"); a(f"s_add_u32 s{S_T0}, s{S_T0}, s{S_POL}"); a(f"s_add_u32 s{S_T0}, s{S_T0}, {WS_XPR}")
    a(f"s_lshl_b32 s{S_T3}, s{S_PROD}, 8"); a(f"s_add_u32 s{S_T3}, s{S_T3}, {WS_DUMMY + 2*MB}")
    a(f"s_cmp_eq_u32 s{S_RACT}, 0"); a(f"s_cselect_b32 s{S_T0}, s{S_T3}, s{S_T0}"); a(f"s_cselect_b32 s{S_T2}, s{S_T3}, s{S_T2}")
    sadd64(a, B_PUBR, P_WS, f"s{S_T0}"); sadd64(a, B_PUBL, P_WS, f"s{S_T2}")
    gather_block(a, S_T2)
    a(f"s_mul_i32 s{S_T1}, s{S_G}, 10240"); a(f"s_mul_i32 s{S_T3}, s{S_T2}, 2560"); a(f"s_add_u32 s{S_T0}, s{S_T1}, s{S_T3}"); a(f"s_add_u32 s{S_T0}, s{S_T0}, {WS_XPL}")
    sadd64(a, B_GL, P_WS, f"s{S_T0}")
    a(f"s_cmp_eq_u32 s{S_T2}, 3"); a(f"s_cselect_b32 s{S_T3}, 16384, s{S_T3}")
    a(f"s_xor_b32 s{S_T1}, s{S_G}, 1"); a(f"s_lshl_b32 s{S_T1}, s{S_T1}, 15"); a(f"s_add_u32 s{S_T0}, s{S_T1}, s{S_T3}"); a(f"s_add_u32 s{S_T0}, s{S_T0}, s{S_POL}"); a(f"s_add_u32 s{S_T0}, s{S_T0}, {WS_XPR}")
    sadd64(a, B_GR, P_WS, f"s{S_T0}")
    a(f"s_mov_b32 s{S_OFFR}, 0")
    a("s_mov_b32 s24, -1"); a("s_mov_b32 s25, 0")
    a(f"s_lshl_b32 s{S_T1}, s{S_J}, 7"); a(f"s_add_u32 s{S_T1}, s{S_T1}, s{S_POL}"); a(f"s_add_u32 s{S_T1}, s{S_T1}, {WS_XPR + 16384 + 2560}")
    a(f"s_lshl_b32 s{S_T0}, s{S_G}, 15"); a(f"s_add_u32 s{S_T0}, s{S_T0}, s{S_T1}"); sadd64(a, S_HW, P_WS, f"s{S_T0}")
    a(f"s_xor_b32 s{S_T0}, s{S_G}, 1"); a(f"s_lshl_b32 s{S_T0}, s{S_T0}, 15"); a(f"s_add_u32 s{S_T0}, s{S_T0}, s{S_T1}"); sadd64(a, S_HR, P_WS, f"s{S_T0}")
    a(f"s_mov_b32 s{S_XMN}, s{S_XM}"); a(f"s_mov_b32 s{S_XMN+1}, s{S_XM+1}"); a(f"s_mov_b32 s{S_VMN}, s{S_VM}"); a(f"s_mov_b32 s{S_VMN+1}, s{S_VM+1}")
    a(f"s_lshl_b32 s{S_T0}, s{S_PROD}, 2"); a(f"s_add_u32 s{S_T0}, s{S_T0}, s{S_W}"); a(f"s_lshl_b32 s{S_T0}, s{S_T0}, 10"); a(f"s_add_u32 s{S_T0}, s{S_T0}, {WS_DUMMY}")
    sadd64(a, S_XM, P_WS, f"s{S_T0}"); sadd64(a, S_VM, P_WS, f"s{S_T0}")
    a(f"s_lshl_b32 s{S_WBIT}, 1, s{S_W}")
    a(f"v_mov_b32 v{XF+14}, 0")
    def flags_load(): a(f"global_load_dword v{V_FLG}, v{V_FV}, {sp(P_WS)} sc1")
    def flags_spin(need, ret):
        stub = a.newlabel(P + "_fs")
        def fn():
            a.label(stub)
            a(f"s_mov_b32 s{S_SPIN}, 0")
            a.label(stub + "_l")
            flags_load()
            a("s_waitcnt vmcnt(0)")
            a(f"v_cmp_gt_u32 vcc, s{need}, v{V_FLG}")
            a(f"s_cbranch_vccz {ret}")
            a("s_sleep 2")
            a(f"s_add_u32 s{S_SPIN}, s{S_SPIN}, 1"); a(f"s_cmp_lt_u32 s{S_SPIN}, {SPIN_MAX}"); a(f"s_cbranch_scc1 {stub}_l")
            a("s_endpgm")
        a.defer(fn)
        return stub
    def part_bases():
        sadd64(a, S_PST, B_PST, f"s{S_OFFP}")
        sadd64(a, S_RL, B_RL, f"s{S_OFFP}")
        for t in range(1, 4): sadd64(a, S_RL+2*t, S_RL+2*t-2, 81920)
    a(f"s_mov_b32 s{S_NEED}, 1")
    pr = a.newlabel(P + "_prime")
    a(f"s_branch {flags_spin(S_NEED, pr)}")
    a.label(pr)
    a(f"s_lshl_b32 s{S_T0}, s{S_W}, 11"); a(f"s_add_u32 m0, s{S_T0}, {L_KTB}"); a(f"s_add_u32 s{S_M0KT}, s{S_T0}, {L_KTB + 8192}")
    a(f"global_load_lds_dwordx4 v{V_L16}, {sp(S_KT)} sc1")
    a(f"global_load_lds_dwordx4 v{V_L16}, {sp(S_KT)} offset:1024 sc1")
    sadd64(a, S_KT, S_KT, 32*8192)
    a(f"s_mov_b32 s{S_NEED}, 2")
    part_bases()
    for r in range(0, 20, 2): a(f"v_mov_b64 v[{ACC+r}:{ACC+r+1}], 0")
    a("s_waitcnt vmcnt(0)")
    stamp(None)
    rt_stamp(a, 3, 140, opts.get('tl', 0))
    a.label(P + "_loop")
    a("s_barrier")
    stamp(5)
    if opts.get('tl', 0):
        for st, ix in ((1, 4), (2, 5), (8, 6), (32, 7)):
            sk = a.newlabel("L_tl")
            a(f"s_cmp_eq_u32 s{S_STEP}, {st}"); a(f"s_cbranch_scc0 {sk}")
            rt_stamp(a, ix, 140, True)
            a.label(sk)
    if prof:
        sk = a.newlabel("L_pr")
        a(f"s_cmp_eq_u32 s{S_STEP}, 32"); a(f"s_cbranch_scc0 {sk}")
        for r in PROF + PRT: a(f"s_mov_b32 s{r}, 0")
        a.label(sk)
    if DBGT[0]:
        for st, wd in ((1, 13), (32, 14)):
            sk = a.newlabel("L_dts")
            a(f"s_cmp_eq_u32 s{S_STEP}, {st}"); a(f"s_cbranch_scc0 {sk}")
            dbg_stamp(a, wd)
            a.label(sk)
    if rt_on:
        rt('A'); a("s_waitcnt lgkmcnt(0)")
    if opts.get('steplog'):
        a("s_memtime s[44:45]"); a("s_waitcnt lgkmcnt(0)"); a(f"s_mov_b32 m0, s{S_STEP}"); a("s_nop 0"); a(f"v_writelane_b32 v{V_IW0}, s44, m0")
    lg = Cnt(a, "lgkmcnt", 15)
    def af_read(c, h):
        v = V_AT0 if h == 0 else V_AT1
        return lambda: lg.issue(('af', c), f"ds_read_b64_tr_b16 v[{AF+4*c+2*h}:{AF+4*c+2*h+1}], v{v} offset:{1024*c}")
    def ks_read(c, h):
        b = VS + 8*(c & 1) + 4*h
        return lambda: lg.issue(('ks', c), f"ds_read_b128 v[{b}:{b+3}], v{V_WS} offset:{2048*(c-4)+1024*h}")
    def kt_read(i):
        return lambda: lg.issue(('kt', i), f"ds_read_b128 v[{KT+4*i}:{KT+4*i+3}], v{V_KT} offset:{1024*i}")
    for c in range(4):
        af_read(c, 0)(); af_read(c, 1)()
    def smf(acc, c, w): a(f"v_smfmac_f32_16x16x64_bf16 v[{acc}:{acc+3}], v[{AF+4*c}:{AF+4*c+3}], {w}, v{V_IDX}")
    slot = {}
    seq = [af_read(4, 0), af_read(4, 1), ks_read(4, 0), ks_read(4, 1), af_read(5, 0), af_read(5, 1), ks_read(5, 0), ks_read(5, 1),
           af_read(6, 0), af_read(6, 1), af_read(7, 0), af_read(7, 1), kt_read(0), kt_read(1), af_read(8, 0), af_read(8, 1),
           af_read(9, 0), af_read(9, 1), kt_read(2), None,
           ks_read(6, 0), ks_read(6, 1), kt_read(3), None, ks_read(7, 0), ks_read(7, 1), kt_read(4), None,
           ks_read(8, 0), ks_read(8, 1), kt_read(5), None, ks_read(9, 0), ks_read(9, 1), kt_read(6), kt_read(7), None, None, None, None]
    XT = XF+8; VMC = XF+12; FMV = XF+14
    def x_vt(): a(f"global_load_dwordx4 v[{V_VT}:{V_VT+3}], v{V_L16}, {sp(S_VT)} sc1")
    def x_d0(): a(f"s_mov_b32 m0, s{S_M0KT}"); a(f"global_load_lds_dwordx4 v{V_L16}, {sp(S_KT)} sc1")
    def x_d1(): a(f"global_load_lds_dwordx4 v{V_L16}, {sp(S_KT)} offset:1024 sc1")
    def x_xm(): a(f"global_store_dwordx4 v{V_L16}, v[{XT}:{XT+3}], {sp(S_XM)} sc1")
    def x_vm(): a(f"global_store_dwordx2 v{V_L8}, v[{VMC}:{VMC+1}], {sp(S_VM)} sc1")
    def x_fm():
        a("s_mov_b64 exec, 1"); a(f"global_store_dword v{V_L8}, v{FMV}, {sp(S_FM)} sc1"); a("s_mov_b64 exec, -1")
        a(f"global_load_dword v{V_FLG}, v{V_FV}, {sp(P_WS)} sc1")
    extras = [x_vt, x_d0, x_d1, x_xm, x_vm, x_fm]
    if opts.get('x_noext') == 1: extras = [x_vt, x_d0, x_d1, lambda: a('s_nop 0'), lambda: a('s_nop 0'), lambda: a('s_nop 0')]
    if opts.get('x_noext') == 2: extras = [lambda: a('s_nop 0')]*6
    X0 = opts.get('x0', 2)
    ops_per = [1, 1, 1, 1, 1, 2]
    nx22 = sum(n for e, n in enumerate(ops_per) if X0 + 4*e < 22)
    fret = a.newlabel(P + "_fret"); fstub = flags_spin(S_NEED, fret)
    KT_FIRST = 24
    seq = [af_read(4, 0), af_read(4, 1), ks_read(4, 0), ks_read(4, 1), af_read(5, 0), af_read(5, 1), ks_read(5, 0), ks_read(5, 1),
           af_read(6, 0), af_read(6, 1), af_read(7, 0), af_read(7, 1), af_read(8, 0), af_read(8, 1), af_read(9, 0), af_read(9, 1),
           None, None, None, None,
           ks_read(6, 0), ks_read(6, 1), kt_read(0), kt_read(1), ks_read(7, 0), ks_read(7, 1), kt_read(2), kt_read(3),
           ks_read(8, 0), ks_read(8, 1), kt_read(4), kt_read(5), ks_read(9, 0), ks_read(9, 1), kt_read(6), kt_read(7), None, None, None, None]
    k = 0
    for c in range(10):
        for t, tile in enumerate(('q0', 'q1', 'k0', 'k1')):
            if t == 0: lg.wait(('af', c))
            if tile == 'k1' and c >= 4:
                lg.wait(('ks', c)); b = VS + 8*(c & 1)
                smf(ACC+12, c, f"v[{b}:{b+7}]")
            else:
                smf(ACC+4*t, c, wr(tile, c))
            if k == 0:
                a(f"v_cmp_gt_u32 vcc, s{S_NEED}, v{V_FLG}")
            if k == 2:
                a(f"s_lshr_b32 s{S_TAG}, s{S_STEP}, 1"); a(f"s_and_b32 s{S_TAG}, s{S_TAG}, 1")
            if k == 1:
                a(f"s_cbranch_vccnz {fstub}"); a.label(fret)
            if k == 22: a(f"s_waitcnt vmcnt({nx22 if not opts.get('x_noext') else 0})")
            if seq[k] is not None: seq[k]()
            if k >= X0 and (k - X0) % 4 == 0 and (k - X0) // 4 < len(extras):
                extras[(k - X0) // 4]()
            k += 1
    if fine == 1: lg.waitall(); fstamp(0)
    for t in range(4): a(f"v_pk_add_f32 v[{ACC+4*t}:{ACC+4*t+1}], v[{ACC+4*t}:{ACC+4*t+1}], v[{ACC+4*t+2}:{ACC+4*t+3}]")
    for t in range(4): a(f"v_cvt_pk_bf16_f32 v{ACC+4*t+2}, v{ACC+4*t}, v{ACC+4*t+1}")
    lg.issue('xw', f"ds_write2st64_b32 v{V_XWQ}, v{ACC+2}, v{ACC+6} offset0:0 offset1:2")
    lg.issue('xw', f"ds_write2st64_b32 v{V_XWK}, v{ACC+10}, v{ACC+14} offset0:0 offset1:2")
    for c in range(3): smf(ACC+16, c, wr('v', c))
    lg.waitall()
    if fine == 1: fstamp(1)
    a("s_barrier")
    stamp(0)
    for ks in range(4):
        lg.issue(('x', ks), f"ds_read_b64_tr_b16 v[{XF+4*ks}:{XF+4*ks+1}], v{V_XR} offset:{1024*ks}")
        lg.issue(('x', ks), f"ds_read_b64_tr_b16 v[{XF+4*ks+2}:{XF+4*ks+3}], v{V_XR} offset:{1024*ks+512}")
    SM, S0, S1 = ACC, ACC+4, ACC+8
    VACC = ACC+16; VM_ = ACC+12
    WOB = {0: AF, 1: AF+8, 2: AF+16, 3: AF+24, 4: AF+32, 5: VS, 6: VS+8, 7: XF+8, 8: ACC+4, 9: ACC+16}
    def wo_read(tt, h):
        b = WOB[tt] + 4*h
        return lambda: lg.issue(('wo', tt), f"ds_read_b128 v[{b}:{b+3}], v{V_WO} offset:{2048*tt+1024*h}")
    WSCH = opts.get('wsched', 0)
    vfill = {4: wo_read(0, 0), 6: wo_read(0, 1), 8: wo_read(5, 0), 9: wo_read(5, 1)}
    if WSCH == 0: vfill = {3: wo_read(0, 0), 4: wo_read(0, 1), 5: wo_read(5, 0), 6: wo_read(5, 1), 7: wo_read(1, 0), 8: wo_read(1, 1), 9: wo_read(6, 0)}
    for c in range(3, 10):
        smf(ACC+16, c, wr('v', c))
        if c in vfill: vfill[c]()
    if fine == 1: lg.waitall(); fstamp(2)
    mains = []
    for ks in range(4):
        x = f"v[{XF+4*ks}:{XF+4*ks+3}]"
        def ma(ks=ks, x=x):
            lg.wait(('x', ks))
            cm = f"v[{V_CNEG}:{V_CNEG+3}]" if ks == 0 else f"v[{SM}:{SM+3}]"
            a(f"v_mfma_f32_16x16x32_bf16 v[{SM}:{SM+3}], {x}, {x}, {cm}")
        mains.append(ma)
        for kt, Sx in ((0, S0), (1, S1)):
            def mb(ks=ks, kt=kt, Sx=Sx, x=x):
                k = f"v[{KT+4*(2*ks+kt)}:{KT+4*(2*ks+kt)+3}]"
                cs = "0" if ks == 0 else f"v[{Sx}:{Sx+3}]"
                a(f"v_mfma_f32_16x16x32_bf16 v[{Sx}:{Sx+3}], {k}, {x}, {cs}")
            mains.append(mb)
    sfill = [[], [wo_read(6, 0)], [wo_read(6, 1)],
             [I(f"v_pk_add_f32 v[{VACC}:{VACC+1}], v[{VACC}:{VACC+1}], v[{VACC+2}:{VACC+3}]")],
             [wo_read(1, 0), I(f"v_cvt_pk_bf16_f32 v{VACC+2}, v{VACC}, v{VACC+1}")],
             [lambda: lg.issue('vw', f"ds_write_b32 v{V_VEW}, v{VACC+2}"), lambda: lg.issue('vm', f"ds_read_b64 v[{VM_}:{VM_+1}], v{V_VER}")],
             [wo_read(1, 1)], [wo_read(2, 0)], [wo_read(2, 1)], [], [], []]
    if WSCH == 0:
        sfill = [[wo_read(6, 1)], [wo_read(2, 0)], [wo_read(2, 1)],
             [wo_read(3, 0), I(f"v_pk_add_f32 v[{VACC}:{VACC+1}], v[{VACC}:{VACC+1}], v[{VACC+2}:{VACC+3}]")],
             [wo_read(3, 1), I(f"v_cvt_pk_bf16_f32 v{VACC+2}, v{VACC}, v{VACC+1}")],
             [lambda: lg.issue('vw', f"ds_write_b32 v{V_VEW}, v{VACC+2}"), lambda: lg.issue('vm', f"ds_read_b64 v[{VM_}:{VM_+1}], v{V_VER}")],
             [wo_read(4, 0)], [wo_read(4, 1)], [], [], [], []]
    for m, fl in zip(mains, sfill):
        m()
        for f in fl: f()
    a(f"s_waitcnt vmcnt({6 if not opts.get('x_noext') else 0})")
    a(f"s_cmp_eq_u32 s{S_STEP}, {opts.get('last', 63)}"); a(f"s_cbranch_scc1 {P}_finish")
    if fine == 1: lg.waitall(); fstamp(3)
    MX = ACC+14; T1 = ACC+15
    a(f"v_max3_f32 v{MX}, v{SM}, v{SM+1}, v{SM+2}")
    a(f"v_max3_f32 v{T1}, v{SM+3}, v{S0}, v{S0+1}")
    a(f"v_max3_f32 v{MX}, v{MX}, v{S0+2}, v{S0+3}")
    a(f"v_max3_f32 v{T1}, v{T1}, v{S1}, v{S1+1}")
    a(f"v_max3_f32 v{MX}, v{MX}, v{S1+2}, v{S1+3}")
    a(f"v_max_f32 v{MX}, v{MX}, v{T1}")
    OUT = [KT+4*t for t in range(8)] + [XF, XF+4]
    zero = [I(f"v_mov_b64 v[{OUT[t]+2*h}:{OUT[t]+2*h+1}], 0") for t in range(10) for h in range(2)]
    a(f"v_mov_b32 v{T1}, v{MX}")
    if WSCH: wo_read(3, 0)(); wo_read(3, 1)()
    else: zero.pop(0)(); zero.pop(0)()
    a(f"v_permlane32_swap_b32 v{MX}, v{T1}")
    a(f"v_max_f32 v{MX}, v{MX}, v{T1}")
    a(f"v_mov_b32 v{T1}, v{MX}")
    if WSCH: wo_read(4, 0)(); wo_read(4, 1)()
    else: zero.pop(0)(); zero.pop(0)()
    a(f"v_permlane16_swap_b32 v{MX}, v{T1}")
    a(f"v_max_f32 v{MX}, v{MX}, v{T1}")
    a(f"v_mul_f32 v{MX}, s{S_C}, v{MX}")
    for r in range(0, 12, 2):
        a(f"v_pk_fma_f32 v[{ACC+r}:{ACC+r+1}], v[{ACC+r}:{ACC+r+1}], s[{S_C}:{S_C+1}], v[{MX}:{MX+1}] op_sel_hi:[1,1,0] neg_lo:[0,0,1] neg_hi:[0,0,1]")
    if fine == 1: fstamp(4)
    PT = VACC; PM = ACC+14
    for r in range(4, 12): a(f"v_exp_f32 v{ACC+r}, v{ACC+r}")
    a(f"v_exp_f32 v{SM}, v{SM}")
    a(f"v_cvt_pk_bf16_f32 v{PT}, v{S0}, v{S0+1}"); a(f"v_cvt_pk_bf16_f32 v{PT+1}, v{S0+2}, v{S0+3}")
    a(f"v_cvt_pk_bf16_f32 v{PT+2}, v{S1}, v{S1+1}"); a(f"v_cvt_pk_bf16_f32 v{PT+3}, v{S1+2}, v{S1+3}")
    a(f"v_exp_f32 v{SM+1}, v{SM+1}"); a(f"v_exp_f32 v{SM+2}, v{SM+2}")
    LL, OO = S0, S1
    a(f"v_mfma_f32_16x16x32_bf16 v[{LL}:{LL+3}], v[{V_ONES}:{V_ONES+3}], v[{PT}:{PT+3}], 0")
    a(f"v_exp_f32 v{SM+3}, v{SM+3}")
    a(f"v_mfma_f32_16x16x32_bf16 v[{OO}:{OO+3}], v[{V_VT}:{V_VT+3}], v[{PT}:{PT+3}], 0")
    a(f"v_cvt_pk_bf16_f32 v{PM}, v{SM}, v{SM+1}"); a(f"v_cvt_pk_bf16_f32 v{PM+1}, v{SM+2}, v{SM+3}")
    wo_read(7, 0)(); wo_read(7, 1)(); wo_read(9, 0)(); wo_read(9, 1)()
    lg.wait('vm')
    a(f"v_mfma_f32_16x16x16_bf16 v[{LL}:{LL+3}], v[{V_ONES}:{V_ONES+1}], v[{PM}:{PM+1}], v[{LL}:{LL+3}]")
    a(f"v_mfma_f32_16x16x16_bf16 v[{OO}:{OO+3}], v[{VM_}:{VM_+1}], v[{PM}:{PM+1}], v[{OO}:{OO+3}]")
    for _ in range(7): zero.pop(0)()
    if fine == 1: lg.waitall(); fstamp(5)
    a(f"v_rcp_f32 v{LL}, v{LL}")
    zero.pop(0)()
    a(f"v_pk_mul_f32 v[{OO}:{OO+1}], v[{OO}:{OO+1}], v[{LL}:{LL+1}] op_sel_hi:[1,0]")
    a(f"v_pk_mul_f32 v[{OO+2}:{OO+3}], v[{OO+2}:{OO+3}], v[{LL}:{LL+1}] op_sel_hi:[1,0]")
    a(f"v_cvt_pk_bf16_f32 v{OO}, v{OO}, v{OO+1}"); a(f"v_cvt_pk_bf16_f32 v{OO+1}, v{OO+2}, v{OO+3}")
    a(f"s_mov_b64 exec, {sp(S_EXO)}")
    lg.issue('ow', f"ds_write_b64 v{V_OEW}, v[{OO}:{OO+1}]")
    a("s_mov_b64 exec, -1")
    while zero: zero.pop(0)()
    efm = a.newlabel(P + "_efm"); efm2 = a.newlabel(P + "_efm2")
    a(f"s_cmp_ge_u32 s{S_STEP}, 58"); a(f"s_cbranch_scc1 {efm}")
    a.label(efm + "_r")
    lg.waitall()
    if fine == 1: fstamp(6)
    a("s_barrier")
    def fn_efm():
        a.label(efm)
        a("s_waitcnt vmcnt(0)")
        a(f"s_branch {efm}_r")
        a.label(efm2)
        a("s_mov_b64 exec, 1")
        a(f"v_mov_b32 v{ACC+14}, s{S_STEP}")
        a(f"global_store_dword v{V_L8}, v{ACC+14}, {sp(S_FM)} sc1")
        a("s_mov_b64 exec, -1")
        a(f"s_branch {efm2}_r")
    a.defer(fn_efm)
    stamp(1)
    OA = ACC
    lg.issue('oa', f"ds_read_b128 v[{OA}:{OA+3}], v{V_OER}")
    wo_read(8, 0)(); wo_read(8, 1)()
    a(f"s_cmp_ge_u32 s{S_STEP}, 58"); a(f"s_cbranch_scc1 {efm2}")
    a.label(efm2 + "_r")
    XT = XF+8
    lg.wait('oa')
    if fine == 1: lg.waitall(); fstamp(7)
    def osm(tt):
        b = WOB[tt]
        a(f"v_smfmac_f32_16x16x64_bf16 v[{OUT[tt]}:{OUT[tt]+3}], v[{OA}:{OA+3}], v[{b}:{b+7}], v{V_IDX}")
    DST = {0: OUT[0], 1: OUT[0]+2, 2: OUT[4], 3: OUT[4]+2, 4: OUT[8]}
    def post(t):
        o0, o1 = OUT[2*t], OUT[2*t+1]
        d = DST[t]
        L = [I(f"v_pk_add_f32 v[{o0}:{o0+1}], v[{o0}:{o0+1}], v[{o0+2}:{o0+3}]"),
             I(f"v_pk_add_f32 v[{o1}:{o1+1}], v[{o1}:{o1+1}], v[{o1+2}:{o1+3}]"),
             I(f"v_cvt_pk_bf16_f32 v{d}, v{o0}, v{o0+1}"),
             I(f"v_cvt_pk_bf16_f32 v{d+1}, v{o1}, v{o1+1}"),
             I(f"v_and_or_b32 v{d}, v{d}, -2, s{S_TAG}")]
        if t in (1, 3): L.append(I(f"global_store_dwordx4 v{V_L16}, v[{DST[t-1]}:{DST[t-1]+3}], {sp(S_PST)} offset:{1024*(t//2)} {LS}"))
        elif t == 4: L.append(I(f"global_store_dwordx2 v{V_L8}, v[{d}:{d+1}], {sp(S_PST)} offset:2048 {LS}"))
        return L
    p = [post(t) for t in range(5)]
    sal = []
    for r, b, o in ((S_PUBR, B_PUBR, S_OFFR), (S_PUBL, B_PUBL, S_OFFX), (S_GL, B_GL, S_OFFX), (S_GR, B_GR, S_OFFR)):
        sal.append(I(f"s_add_u32 s{r}, s{b}, s{o}")); sal.append(I(f"s_addc_u32 s{r+1}, s{b+1}, 0"))
    if opts.get('p2', 0):
        osm(0); sal[0](); sal[1]()
        osm(1); sal[2](); sal[3]()
        osm(2); sal[4](); sal[5]()
        osm(3); p[0][0](); sal[6]()
        osm(4); p[0][1](); sal[7]()
        osm(5); p[0][2]()
        osm(6); p[0][3]()
        osm(7); p[1][0]()
        osm(9); p[1][1]()
        lg.wait(('wo', 8)); osm(8); p[1][2]()
        p[1][3](); p[0][4](); p[1][4](); p[1][5]()
        for t in (2, 3, 4):
            for f in p[t]: f()
        a(f"v_add_u32 v{XT+4}, s{S_XMW}, v{V_XR}")
        lg.issue('xt', f"ds_read_b64_tr_b16 v[{XT}:{XT+1}], v{XT+4}")
        lg.issue('xt', f"ds_read_b64_tr_b16 v[{XT+2}:{XT+3}], v{XT+4} offset:512")
    else:
        osm(0); osm(1); osm(2); osm(3); osm(4); osm(5); osm(6); osm(7)
        a(f"v_add_u32 v{XT+4}, s{S_XMW}, v{V_XR}")
        p[0][0](); osm(9); p[0][1]()
        lg.wait(('wo', 8)); osm(8)
        lg.issue('xt', f"ds_read_b64_tr_b16 v[{XT}:{XT+1}], v{XT+4}")
        lg.issue('xt', f"ds_read_b64_tr_b16 v[{XT+2}:{XT+3}], v{XT+4} offset:512")
        for f in p[0][2:]: f()
        for t in (1, 2, 3, 4):
            for f in p[t]: f()
        for f in sal: f()
    stamp(2)
    rt('B')
    nored = a.newlabel(P + "_nored"); redj = a.newlabel(P + "_redj")
    if opts.get('nocomm'): a(f"s_branch {redj}")
    a(f"s_cmp_eq_u32 s{S_RACT}, 0"); a(f"s_cbranch_scc1 {nored}")
    def fn_nored():
        a.label(nored)
        if not opts.get('hint', 0):
            a(f"s_branch {redj}"); return
        a(f"s_cmp_eq_u32 s{S_W}, 3"); a(f"s_cbranch_scc0 {redj}")
        a(f"s_add_u32 s{S_T0}, s{S_STEP}, 1")
        a("s_mov_b64 exec, 1")
        a(f"v_mov_b32 v{XF+2}, s{S_T0}")
        a(f"global_store_dword v{V_L8}, v{XF+2}, {sp(S_HW)} sc1")
        a("s_mov_b64 exec, -1")
        a(f"s_mov_b32 s{S_SPIN}, 0")
        a("s_waitcnt lgkmcnt(0)")
        hl = a.newlabel(P + "_hl"); hd = a.newlabel(P + "_hd")
        a.label(hl)
        a(f"s_load_dword s{S_T1}, {sp(S_HR)}, 0x0 glc")
        a(f"s_add_u32 s{S_SPIN}, s{S_SPIN}, 1")
        a("s_waitcnt lgkmcnt(0)")
        a(f"s_cmp_eq_u32 s{S_T1}, s{S_T0}"); a(f"s_cbranch_scc1 {hd}")
        a(f"s_cmp_lt_u32 s{S_SPIN}, {SPIN_MAX}"); a(f"s_cbranch_scc1 {hl}")
        a("s_endpgm")
        a.label(hd)
        backoff(a, opts.get('d_hint', 12), opts)
        a(f"s_branch {redj}")
    a.defer(fn_nored)
    backoff(a, D_RED, opts)
    RD = AF; RA = AF + 48; TM = AF + 52; PB = KT
    MSK = [S_T0, S_T2, S_PST, S_EXX]
    def r_load(t, RD=RD): a(f"global_load_dwordx4 v[{RD+4*t}:{RD+4*t+3}], v{V_RL}, {sp(S_RL+2*t)} sc1")
    RMODE = opts.get('rmode', 2)
    def r_reduce(RDx, younger):
        for t in range(4):
            a(f"s_waitcnt vmcnt({3-t+younger})")
            c = "0" if t == 0 else f"v[{RA}:{RA+3}]"
            a(f"v_mfma_f32_16x16x32_bf16 v[{RA}:{RA+3}], v[{V_SEL}:{V_SEL+3}], v[{RDx+4*t}:{RDx+4*t+3}], {c}")
            if t == 0: a(f"v_xor_b32 v{TM}, s{S_TAG}, v{RDx}")
            else: a(f"v_bitop3_b32 v{TM}, v{TM}, v{RDx+4*t}, s{S_TAG} bitop3:0xf6")
            a(f"v_bitop3_b32 v{TM}, v{TM}, v{RDx+4*t+2}, s{S_TAG} bitop3:0xf6")
        a(f"v_and_b32 v{TM}, 1, v{TM}")
        a(f"v_cmp_ne_u32 vcc, 0, v{TM}")
    rt('C')
    for t in range(4): r_load(t)
    if RMODE == 2:
        backoff(a, opts.get('d_r2', 6), opts)
        for t in range(4): r_load(t, RD+16)
    r_reduce(RD, 4 if RMODE == 2 else 0)
    rs1 = a.newlabel(P + "_rs1"); rok = a.newlabel(P + "_rok")
    a(f"s_cbranch_vccnz {rs1}")
    a.label(rok)
    rt('D')
    def masked_poll(stub, nld, check_fn, load_fn, cnt_reg, depth):
        a(f"s_mov_b32 s{S_SPIN}, 0")
        a("s_or_b32 exec_lo, vcc_lo, 1"); a("s_mov_b32 exec_hi, vcc_hi")
        for _ in range(depth - 1):
            for t in range(nld): load_fn(t)
        a.label(stub + "_l")
        for t in range(nld): load_fn(t)
        if prof: a(f"s_add_u32 s{cnt_reg}, s{cnt_reg}, 1")
        a(f"s_add_u32 s{S_SPIN}, s{S_SPIN}, 1")
        a(f"s_waitcnt vmcnt({nld*(depth-1)})")
        check_fn()
        a(f"s_cbranch_vccz {stub}_ok")
        a("s_or_b32 exec_lo, vcc_lo, 1"); a("s_mov_b32 exec_hi, vcc_hi")
        a(f"s_cmp_lt_u32 s{S_SPIN}, {SPIN_MAX}"); a(f"s_cbranch_scc1 {stub}_l")
        a("s_endpgm")
        a.label(stub + "_ok")
        a("s_mov_b64 exec, -1")
    def r_check():
        a(f"v_xor_b32 v{TM}, s{S_TAG}, v{RD}")
        a(f"v_bitop3_b32 v{TM}, v{TM}, v{RD+2}, s{S_TAG} bitop3:0xf6")
        for t in range(1, 4):
            a(f"v_bitop3_b32 v{TM}, v{TM}, v{RD+4*t}, s{S_TAG} bitop3:0xf6")
            a(f"v_bitop3_b32 v{TM}, v{TM}, v{RD+4*t+2}, s{S_TAG} bitop3:0xf6")
        a(f"v_and_b32 v{TM}, 1, v{TM}")
        a(f"v_cmp_ne_u32 vcc, 0, v{TM}")
    def fn_rslow():
        a.label(rs1)
        if RMODE == 2:
            a(f"s_mov_b32 s{S_SPIN}, 0")
            a.label(rs1 + "_l")
            for (x, y) in ((RD, RD+16), (RD+16, RD)):
                if prof: a(f"s_add_u32 s{PRT[2]}, s{PRT[2]}, 1")
                for t in range(4): r_load(t, x)
                r_reduce(y, 4)
                nx = a.newlabel(rs1 + "_n")
                a(f"s_cbranch_vccnz {nx}")
                a("s_nop 7"); a(f"s_branch {rok}")
                a.label(nx)
            a(f"s_add_u32 s{S_SPIN}, s{S_SPIN}, 1"); a(f"s_cmp_lt_u32 s{S_SPIN}, {SPIN_MAX}"); a(f"s_cbranch_scc1 {rs1}_l")
            a("s_endpgm")
            return
        masked_poll(rs1, 4, r_check, r_load, PRT[2], opts.get('dr', 1))
        for t in range(4):
            c = "0" if t == 0 else f"v[{RA}:{RA+3}]"
            a(f"v_mfma_f32_16x16x32_bf16 v[{RA}:{RA+3}], v[{V_SEL}:{V_SEL+3}], v[{RD+4*t}:{RD+4*t+3}], {c}")
        a("s_nop 7"); a(f"s_branch {rok}")
    a.defer(fn_rslow)
    for r in range(4): a(f"v_add_f32_dpp v{RA+r}, v{RA+r}, v{RA+r} row_ror:8 row_mask:0xf bank_mask:0xf")
    a(f"v_cvt_pk_bf16_f32 v{PB}, v{RA}, v{RA+1}"); a(f"v_cvt_pk_bf16_f32 v{PB+1}, v{RA+2}, v{RA+3}")
    a(f"v_permlane16_swap_b32 v{PB}, v{PB+2}"); a(f"v_permlane16_swap_b32 v{PB+1}, v{PB+3}")
    a(f"v_and_or_b32 v{PB}, v{PB}, -2, s{S_TAG}"); a(f"v_and_or_b32 v{PB+2}, v{PB+2}, -2, s{S_TAG}")
    a("s_mov_b64 exec, 0xff")
    a(f"global_store_dwordx4 v{V_L16}, v[{PB}:{PB+3}], {sp(S_PUBR)} sc1")
    a(f"global_store_dwordx4 v{V_L16}, v[{PB}:{PB+3}], {sp(S_PUBL)} {LS}")
    a("s_mov_b64 exec, -1")
    a.label(redj)
    rt('E')
    a("s_barrier")
    rt('F')
    stamp(3)
    lg.waitall()
    a(f"v_mov_b64 v[{VMC}:{VMC+1}], v[{VM_}:{VM_+1}]")
    a(f"v_mov_b32 v{FMV}, s{S_STEP}")
    for r in range(0, 20, 2): a(f"v_mov_b64 v[{ACC+r}:{ACC+r+1}], 0")
    if opts.get('nocomm'): D_LOC = 0
    backoff(a, D_LOC, opts)
    GLc = AF; GF = AF + 12; TMG = AF + 48
    GR = KT
    def g_load(base, sb):
        def f(t):
            if t == 0: a(f"global_load_dwordx4 v[{base}:{base+3}], v{V_L16}, {sp(sb)} sc1")
            elif t == 1: a(f"global_load_dwordx4 v[{base+4}:{base+7}], v{V_L16}, {sp(sb)} offset:1024 sc1")
            else: a(f"global_load_dwordx2 v[{base+8}:{base+9}], v{V_L8}, {sp(sb)} offset:2048 sc1")
        return f
    def chk(base):
        a(f"v_xor_b32 v{TMG}, s{S_TAG}, v{base}")
        for o in (2, 4, 6, 8): a(f"v_bitop3_b32 v{TMG}, v{TMG}, v{base+o}, s{S_TAG} bitop3:0xf6")
        a(f"v_and_b32 v{TMG}, 1, v{TMG}")
        a(f"v_cmp_ne_u32 vcc, 0, v{TMG}")
    GM = [S_T0, S_T2, S_EXX]
    def gmasks(base):
        def f():
            for t in range(3): a(f"v_xor_b32 v{TMG+t}, s{S_TAG}, v{base+4*t}")
            for t in range(3): a(f"v_and_b32 v{TMG+t}, 1, v{TMG+t}")
            for t in range(3): a(f"v_cmp_ne_u32 {sp(GM[t])}, 0, v{TMG+t}")
        return f
    rt('G')
    if opts.get('nocomm'): g_load = lambda base, sb: (lambda t: None)
    for t in range(3): g_load(GLc, S_GL)(t)
    for _ in range(D_REM): a("s_nop 7")
    rt('H')
    GMODE = opts.get('gmode', 1)
    GR1 = KT + 10
    for t in range(3): g_load(GR, S_GR)(t)
    stamp(6)
    a(f"s_add_u32 s{S_STEP}, s{S_STEP}, 1")
    a(f"s_xor_b32 s{S_OFFP}, s{S_OFFP}, {64*10240}")
    a(f"s_xor_b32 s{S_OFFX}, s{S_OFFX}, 20480"); a(f"s_xor_b32 s{S_OFFR}, s{S_OFFR}, 65536")
    part_bases()
    a(f"s_and_b32 s{S_T0}, s{S_STEP}, 1"); a(f"s_lshl_b32 s{S_T0}, s{S_T0}, 13"); a(f"s_add_u32 s{S_T0}, s{S_T0}, {L_KTB}")
    a(f"v_add_u32 v{V_KT}, s{S_T0}, v{V_L16}")
    a(f"s_xor_b32 s{S_T0}, s{S_STEP}, 1"); a(f"s_and_b32 s{S_T0}, s{S_T0}, 1"); a(f"s_lshl_b32 s{S_T0}, s{S_T0}, 13"); a(f"s_add_u32 s{S_T0}, s{S_T0}, {L_KTB}")
    a(f"s_lshl_b32 s{S_T1}, s{S_W}, 11"); a(f"s_add_u32 s{S_M0KT}, s{S_T0}, s{S_T1}")
    a(f"s_cmp_lt_u32 s{S_STEP}, 63"); a(f"s_cselect_b32 s{S_T0}, {32*8192}, 0")
    sadd64(a, S_KT, S_KT, f"s{S_T0}")
    sadd64(a, S_VT, S_VT, 32*8192)
    a(f"s_add_u32 s{S_NEED}, s{S_STEP}, 2"); a(f"s_min_u32 s{S_NEED}, s{S_NEED}, 64")
    a(f"s_mov_b32 s{S_XM}, s{S_XMN}"); a(f"s_mov_b32 s{S_XM+1}, s{S_XMN+1}"); a(f"s_mov_b32 s{S_VM}, s{S_VMN}"); a(f"s_mov_b32 s{S_VM+1}, s{S_VMN+1}")
    sadd64(a, S_XMN, S_XMN, 32*4096); sadd64(a, S_VMN, S_VMN, 32*4096)
    if GMODE == 2:
        backoff(a, opts.get('d_g2', 0), opts)
        for t in range(3): g_load(GR1, S_GR)(t)
    a(f"s_waitcnt vmcnt({6 if GMODE == 2 else 3})")
    lre = a.newlabel(P + "_lre"); lok = a.newlabel(P + "_lok")
    chk(GLc)
    if not opts.get('nocomm'): a(f"s_cbranch_vccnz {lre}")
    a.label(lok)
    def fn_l():
        a.label(lre)
        masked_poll(lre, 3, lambda: chk(GLc), g_load(GLc, S_GL), PRT[0], 2)
        a("s_waitcnt vmcnt(0)")
        a(f"s_branch {lok}")
    a.defer(fn_l)
    rt('I')
    stamp(8)
    for i in range(10):
        a(f"v_lshlrev_b32 v{GF+2*i}, 16, v{GLc+i}"); a(f"v_and_b32 v{GF+2*i+1}, 0xffff0000, v{GLc+i}")
    def stage(G):
        def dots(i):
            a(f"v_dot2_f32_bf16 v{GF+2*i}, v{G+i}, s{S_LO}, v{GF+2*i}")
            a(f"v_dot2_f32_bf16 v{GF+2*i+1}, v{G+i}, s{S_HI}, v{GF+2*i+1}")
        def cv(i): a(f"v_cvt_pk_bf16_f32 v{GLc+i}, v{GF+2*i}, v{GF+2*i+1}")
        for i in range(4): dots(i)
        for t in range(5):
            cv(2*t); cv(2*t+1)
            a(f"ds_write_b64 v{V_IW2}, v[{GLc+2*t}:{GLc+2*t+1}] offset:{512*t}")
            for i in (2*t+4, 2*t+5):
                if i < 10: dots(i)
    a(f"s_waitcnt vmcnt({3 if GMODE == 2 else 0})")
    chk(GR)
    gs1 = a.newlabel(P + "_gs1"); gok = a.newlabel(P + "_gok")
    if not opts.get('nocomm'): a(f"s_cbranch_vccnz {gs1}")
    if GMODE == 2:
        stamp(4)
        rt('J')
        stage(GR)
        a.label(gok)
        def fn_gslow():
            a.label(gs1)
            a(f"s_mov_b32 s{S_SPIN}, 0")
            a.label(gs1 + "_l")
            for (x, y) in ((GR, GR1), (GR1, GR)):
                if prof: a(f"s_add_u32 s{PRT[1]}, s{PRT[1]}, 1")
                for t in range(3): g_load(x, S_GR)(t)
                a("s_waitcnt vmcnt(3)")
                chk(y)
                nx = a.newlabel(gs1 + "_n")
                a(f"s_cbranch_vccnz {nx}")
                rt('J')
                stage(y)
                a(f"s_branch {gok}")
                a.label(nx)
            a(f"s_add_u32 s{S_SPIN}, s{S_SPIN}, 1"); a(f"s_cmp_lt_u32 s{S_SPIN}, {SPIN_MAX}"); a(f"s_cbranch_scc1 {gs1}_l")
            a("s_endpgm")
        a.defer(fn_gslow)
    else:
        a.label(gok)
        def fn_gslow():
            a.label(gs1)
            masked_poll(gs1, 3, lambda: chk(GR), g_load(GR, S_GR), PRT[1], opts.get('dg', 2))
            a(f"s_branch {gok}")
        a.defer(fn_gslow)
        stamp(4)
        rt('J')
        stage(GR)
    rt('K')
    a("s_waitcnt lgkmcnt(0)")
    a(f"s_branch {P}_loop")
    a.label(P + "_finish")
    dbg_stamp(a, 15)
    if opts.get('steplog'):
        a("s_waitcnt lgkmcnt(0)")
        a(f"s_lshl_b32 s44, s{S_PROD}, 2"); a(f"s_add_u32 s44, s44, s{S_W}"); a("s_lshl_b32 s44, s44, 8"); a(f"s_add_u32 s44, s44, {WS_PROF}")
        a(f"v_lshrrev_b32 v{XF}, 2, v{V_L16}"); a(f"v_add_u32 v{XF}, s44, v{XF}")
        a(f"global_store_dword v{XF}, v{V_IW0}, {sp(P_WS)}")
    if rt_on:
        a("s_waitcnt lgkmcnt(0)")
        a(f"s_lshl_b32 s44, s{S_PROD}, 2"); a(f"s_add_u32 s44, s44, s{S_W}"); a("s_lshl_b32 s44, s44, 6"); a(f"s_add_u32 s44, s44, {WS_PROF}")
        a("s_mov_b64 exec, 1")
        a(f"v_mov_b32 v{XF}, s44")
        for i, kk in enumerate("ABCDEFGHIJK"):
            a(f"v_mov_b32 v{XF+1}, s{RT[kk] if RT[kk] is not None else RT['G']}"); a(f"global_store_dword v{XF}, v{XF+1}, {sp(P_WS)} offset:{4*i}"); a("s_nop 1")
        a("s_mov_b64 exec, -1")
    rt_stamp(a, 2, 140, opts.get('tl', 0))
    if prof:
        a(f"s_lshl_b32 s44, s{S_PROD}, 2"); a(f"s_add_u32 s44, s44, s{S_W}"); a("s_lshl_b32 s44, s44, 6"); a(f"s_add_u32 s44, s44, {WS_PROF}")
        a("s_mov_b64 exec, 1")
        a(f"v_mov_b32 v{XF}, s44")
        for i, r in enumerate(PROF[:6] + PRT + PROF[6:]):
            a(f"v_mov_b32 v{XF+1}, s{r}"); a(f"global_store_dword v{XF}, v{XF+1}, {sp(P_WS)} offset:{4*i}"); a("s_nop 1")
        a("s_mov_b64 exec, -1")
    a("s_waitcnt lgkmcnt(0)")
    a(f"v_add_u32 v{AF+4}, s{S_XMW}, v{V_XR}")
    a(f"ds_read_b64_tr_b16 v[{AF}:{AF+1}], v{AF+4}")
    a(f"ds_read_b64_tr_b16 v[{AF+2}:{AF+3}], v{AF+4} offset:512")
    a("s_waitcnt lgkmcnt(0)")
    a(f"global_store_dwordx4 v{V_L16}, v[{AF}:{AF+3}], {sp(S_XMN)} sc1")
    a(f"global_store_dwordx2 v{V_L8}, v[{ACC+12}:{ACC+13}], {sp(S_VMN)} sc1")
    a("s_waitcnt vmcnt(0)")
    a("s_barrier")
    a(f"s_cmp_eq_u32 s{S_W}, 0"); a(f"s_cbranch_scc0 {P}_end")
    a("s_mov_b64 exec, 1")
    a(f"v_mov_b32 v{XF+2}, 64")
    a(f"global_store_dword v{V_L8}, v{XF+2}, {sp(S_FM)} sc1")
    a("s_waitcnt vmcnt(0)")
    rt_stamp(a, 8, 140, opts.get('tl', 0))
    a.label(P + "_end")
    a("s_endpgm")
    a.flush()
```

```python
from gen_common import *
SPIN_MAX = 0x40000

def gen_fin(a, opts={}):
    tl = opts.get('tl', 0)
    L16, FOV, FHV, XO, LW, LR, OO = 1, 2, 3, 4, 5, 6, 7
    ACC, ACH, RING, NB = 8, 24, 40, 24
    T = 136
    W2 = 148
    S_S, S_NEED, S_SPIN, S_SET = 36, 37, 38, 39
    S_O, S_H, S_X, S_OUT = 44, 46, 48, 50
    a.label("L_F_main")
    a(f"s_mov_b32 s{S_SET}, s35")
    a("v_and_b32 v0, 63, v0")
    if opts.get('stag', 1): wait_first_keys(a, 'F')
    a(f"v_lshlrev_b32 v{L16}, 4, v0")
    a("v_lshrrev_b32 v2, 2, v0"); a("v_mul_u32_u24 v2, 1280, v2"); a("v_and_b32 v3, 3, v0"); a("v_lshl_add_u32 v2, v3, 4, v2")
    a("s_lshl_b32 s40, s34, 6")
    a("s_mul_i32 s41, s32, 1310720"); a("s_add_u32 s41, s41, s40")
    sadd64(a, 44, P_WO, "s41")
    a("s_mul_i32 s41, s32, 552960"); a("s_add_u32 s41, s41, s40")
    sadd64(a, 46, P_W2, "s41")
    a("s_lshl_b32 s41, s32, 13"); a(f"v_add_u32 v3, s41, v{L16}")
    a("v_lshrrev_b32 v4, 5, v0"); a("v_bfe_u32 v5, v0, 2, 2"); a("v_bfe_u32 v6, v0, 4, 1"); a("v_and_b32 v7, 3, v0")
    a("v_lshlrev_b32 v9, 5, v6"); a("v_lshl_add_u32 v9, v7, 3, v9"); a("v_lshl_add_u32 v9, v5, 6, v9"); a("v_add_u32 v9, s41, v9")
    a("v_lshl_add_u32 v10, v4, 9, v9")
    a("v_lshl_add_u32 v11, v4, 8, v9")
    chunks = [('o', c, 4) for c in range(16)] + [('f', c, 4 if c < 6 else 3) for c in range(7)]
    LAND = 16
    vm = Cnt(a, "vmcnt", 63)
    DEPTH = 7
    def issue(i):
        kind, c, n = chunks[i]
        base = LAND + 16*(i % 8)
        sreg = 44 if kind == 'o' else 46
        for q in range(n):
            vm.issue(i, f"global_load_dwordx4 v[{base+4*q}:{base+4*q+3}], v2, s[{sreg}:{sreg+1}]")
            sadd64(a, sreg, sreg, 20480)
    for i in range(DEPTH): issue(i)
    for i, (kind, c, n) in enumerate(chunks):
        base = LAND + 16*(i % 8); buf = 4096*(i & 1)
        vm.wait(i)
        for q in range(n): a(f"ds_write_b128 v3, v[{base+4*q}:{base+4*q+3}] offset:{buf+1024*q}")
        for kk in range(n):
            for jq in range(2):
                if kind == 'o':
                    ks = 4*c + kk
                    a(f"ds_read_b64_tr_b16 a[{4*ks+2*jq}:{4*ks+2*jq+1}], v10 offset:{buf+1024*kk+256*jq}")
                else:
                    ks = 4*c + kk
                    a(f"ds_read_b64_tr_b16 v[{W2+4*ks+2*jq}:{W2+4*ks+2*jq+1}], v11 offset:{buf+1024*kk+512*jq}")
        a("s_waitcnt lgkmcnt(0)")
        if i + DEPTH < len(chunks): issue(i + DEPTH)
    a("s_barrier")
    a(f"v_and_b32 v{FOV}, 7, v0"); a("s_lshl_b32 s40, s32, 3"); a(f"v_add_u32 v{FOV}, s40, v{FOV}"); a(f"v_lshlrev_b32 v{FOV}, 6, v{FOV}"); a(f"v_add_u32 v{FOV}, {FO_OFF}, v{FOV}")
    a(f"v_min_u32 v{T}, 55, v0"); a(f"v_lshrrev_b32 v{T+1}, 2, v{T}"); a(f"v_and_b32 v{T}, 3, v{T}"); a(f"v_lshlrev_b32 v{T}, 2, v{T}")
    a(f"v_lshl_add_u32 v{FHV}, v{T+1}, 6, v{T}"); a(f"v_add_u32 v{FHV}, {FH_OFF}, v{FHV}")
    a(f"v_and_b32 v{T}, 31, v0"); a(f"v_mul_u32_u24 v{T}, 1280, v{T}"); a(f"v_lshrrev_b32 v{T+1}, 5, v0"); a(f"v_lshl_add_u32 v{T}, v{T+1}, 3, v{T}")
    a("s_lshl_b32 s40, s34, 6"); a("s_lshl_b32 s41, s32, 4"); a("s_add_u32 s40, s40, s41"); a(f"v_add_u32 v{XO}, s40, v{T}")
    a("s_lshl_b32 s40, s32, 12"); a(f"v_add_u32 v{LW}, s40, v{L16}")
    a("s_lshl_b32 s40, s32, 10"); a(f"v_add_u32 v{LR}, s40, v{L16}")
    a(f"s_mov_b32 s{S_S}, s{S_SET}"); a("s_mov_b32 s56, 0"); a("s_mov_b32 s57, 0")
    def wait_flag(tag, voff, need, extra_sreg=None, sleep=4):
        lp = f"L_F_w{tag}"
        a(f"s_mov_b32 s{S_SPIN}, 0")
        a.label(lp)
        if extra_sreg is None: a(f"global_load_dword v{T}, v{voff}, {sp(P_WS)} sc1")
        else: a(f"global_load_dword v{T}, v{voff}, {sp(extra_sreg)} sc1")
        a("s_waitcnt vmcnt(0)")
        a(f"v_cmp_gt_u32 vcc, s{need}, v{T}")
        a.retry(lp, S_SPIN, SPIN_MAX, sleep=sleep)
    def hbase(sreg_seg):
        a(f"s_mul_i32 s40, s{sreg_seg}, {108*1024}"); a(f"s_mul_i32 s41, s32, {27*1024}"); a("s_add_u32 s40, s40, s41")
        sadd64(a, S_H, P_WS, WS_H1); sadd64(a, S_H, S_H, "s40")
    rt_stamp(a, 1, 136, tl)
    a(f"s_add_u32 s{S_NEED}, s{S_S}, 1")
    wait_flag("h0", FHV, S_NEED)
    hbase(S_S)
    def h_load(vm, i):
        b = RING + 4*(i % NB)
        vm.issue(('h', i), f"global_load_dwordx4 v[{b}:{b+3}], v{L16}, {sp(S_H)} offset:{1024*(i&3)} sc1")
        if (i & 3) == 3: sadd64(a, S_H, S_H, 4096)
    def h_mfma(vm, i, slot):
        b = RING + 4*(slot % NB)
        vm.wait(('h', i) if slot == i else ('h', i))
        c = "0" if i == 0 else f"v[{ACH}:{ACH+15}]"
        a(f"v_mfma_f32_32x32x16_bf16 v[{ACH}:{ACH+15}], v[{W2+4*i}:{W2+4*i+3}], v[{b}:{b+3}], {c}")
    vm = Cnt(a, "vmcnt", 63)
    for i in range(NB): h_load(vm, i)
    for i in range(27):
        h_mfma(vm, i, i)
        if i + NB < 27: h_load(vm, i + NB)
    a.label("L_F_loop")
    a(f"s_lshl_b32 s40, s{S_S}, 18"); a("s_lshl_b32 s41, s32, 16"); a("s_add_u32 s40, s40, s41")
    sadd64(a, S_O, P_WS, WS_OT); sadd64(a, S_O, S_O, "s40")
    a(f"s_mul_i32 s40, s{S_S}, 40960")
    sadd64(a, S_X, P_X, "s40"); sadd64(a, S_OUT, P_OUT, "s40")
    a(f"s_and_b32 s40, s{S_S}, 3"); a("s_lshl_b32 s40, s40, 11"); sadd64(a, 52, P_WS, "s40")
    a(f"s_add_u32 s{S_NEED}, s{S_S}, 1")
    a(f"s_add_u32 s54, s{S_S}, 3"); a("s_min_u32 s54, s54, 63"); a("s_add_u32 s55, s54, 1")
    a("s_cmp_eq_u32 s57, 1"); a("s_cbranch_scc1 L_F_hall")
    wait_flag("h", FHV, 55)
    a(f"v_cmp_gt_u32 vcc, 64, v{T}"); a("s_cmp_eq_u64 vcc, 0"); a("s_cselect_b32 s57, 1, 0")
    a.label("L_F_hall")
    hbase(54)
    wait_flag("o", FOV, S_NEED, 52, sleep=1)
    def st63(i):
        if not tl: return
        sk = a.newlabel("L_t63")
        a(f"s_cmp_eq_u32 s{S_S}, 63"); a(f"s_cbranch_scc0 {sk}")
        rt_stamp(a, i, T+8, True)
        a.label(sk)
    st63(3)
    vm = Cnt(a, "vmcnt", 63)
    vm.issue('x', f"global_load_dwordx2 v[{T+2}:{T+3}], v{XO}, {sp(S_X)}")
    seq = [('o', i) for i in range(64)] + [('h', i) for i in range(27)]
    def load(k):
        kind, i = seq[k]; b = RING + 4*(k % NB)
        sreg = S_O if kind == 'o' else S_H
        vm.issue(k, f"global_load_dwordx4 v[{b}:{b+3}], v{L16}, {sp(sreg)} offset:{1024*(i&3)} sc1")
        if (i & 3) == 3: sadd64(a, sreg, sreg, 4096)
    for k in range(NB): load(k)
    for k, (kind, i) in enumerate(seq):
        b = RING + 4*(k % NB)
        vm.wait(k)
        if kind == 'o':
            c = f"v[{ACH}:{ACH+15}]" if i == 0 else f"v[{ACC}:{ACC+15}]"
            a(f"v_mfma_f32_32x32x16_bf16 v[{ACC}:{ACC+15}], a[{4*i}:{4*i+3}], v[{b}:{b+3}], {c}")
        else:
            c = "0" if i == 0 else f"v[{ACH}:{ACH+15}]"
            a(f"v_mfma_f32_32x32x16_bf16 v[{ACH}:{ACH+15}], v[{W2+4*i}:{W2+4*i+3}], v[{b}:{b+3}], {c}")
        if k + NB < len(seq): load(k + NB)
        if k == 63:
            if tl: a("s_nop 15")
            st63(4)
            a("s_xor_b32 s56, s56, 16384"); a("s_add_u32 s40, s56, 32768")
            a(f"v_add_u32 v{T+4}, s40, v{LW}"); a(f"v_add_u32 v{T+5}, s40, v{LR}")
            for q in range(4): a(f"ds_write_b128 v{T+4}, v[{ACC+4*q}:{ACC+4*q+3}] offset:{1024*q}")
            a("s_waitcnt lgkmcnt(0)")
            a("s_barrier")
            for w2 in range(4): a(f"ds_read_b128 v[{ACC+4*w2}:{ACC+4*w2+3}], v{T+5} offset:{4096*w2}")
            a("s_waitcnt lgkmcnt(0)")
            for r in range(4):
                a(f"v_add_f32 v{ACC+r}, v{ACC+r}, v{ACC+4+r}"); a(f"v_add_f32 v{ACC+8+r}, v{ACC+8+r}, v{ACC+12+r}")
            for r in range(4): a(f"v_add_f32 v{ACC+r}, v{ACC+r}, v{ACC+8+r}")
            a(f"v_lshlrev_b32 v{ACC+4}, 16, v{T+2}"); a(f"v_and_b32 v{ACC+5}, 0xffff0000, v{T+2}")
            a(f"v_lshlrev_b32 v{ACC+6}, 16, v{T+3}"); a(f"v_and_b32 v{ACC+7}, 0xffff0000, v{T+3}")
            for r in range(4): a(f"v_add_f32 v{ACC+r}, v{ACC+r}, v{ACC+4+r}")
            a(f"v_cvt_pk_bf16_f32 v{T+6}, v{ACC}, v{ACC+1}"); a(f"v_cvt_pk_bf16_f32 v{T+7}, v{ACC+2}, v{ACC+3}")
            vm.issue('st', f"global_store_dwordx2 v{XO}, v[{T+6}:{T+7}], {sp(S_OUT)}")
            a(f"s_cmp_ge_u32 s{S_S}, 61"); a("s_cbranch_scc1 L_F_done")
    a(f"s_add_u32 s{S_S}, s{S_S}, 3"); a(f"s_cmp_lt_u32 s{S_S}, 64"); a("s_cbranch_scc1 L_F_loop")
    a.label("L_F_done")
    a("s_waitcnt vmcnt(0)")
    rt_stamp(a, 2, 136, tl)
    a("s_endpgm")
    a.flush()
```

```python
from gen_common import *
from gen_init import f32bits
from gen_proj import flag_store

L_WO  = 0
L_WS  = 81920
L_IMG = 131072
L_KTB = 141312
L_XIM = 157696
L_OEX = 161792
L_VEX = 162816
L_STG = 81920

V_IDX, V_L16, V_L8, V_AT0, V_AT1, V_XWQ, V_XWK, V_XR, V_KT, V_WO, V_WS, V_OEW, V_OER, V_VEW, V_VER, V_IW0, V_IW2, V_RL = range(1, 19)
V_ONES = 20
V_SEL  = 24
V_CNEG = 28
ACC = 32
V_VT = 52
POOL = 56
AF = POOL; VS = POOL + 40; KT = POOL + 56; XF = POOL + 88
WREG = 160

def wfrag(tile, c):
    order = []
    for cc in range(10):
        for t in ('q0', 'q1', 'k0'): order.append((t, cc))
    for cc in range(4): order.append(('k1', cc))
    for cc in range(10): order.append(('v', cc))
    if (tile, c) not in order: return None
    f = order.index((tile, c))
    return ('a', 8*f) if f < 32 else ('v', WREG + 8*(f - 32))
def wr(tile, c, lo=0, n=8):
    k, b = wfrag(tile, c)
    return f"{k}[{b+lo}:{b+lo+n-1}]"

S_W, S_J, S_G = 32, 34, 35
S_H, S_HF, S_PROD, S_RID, S_RACT, S_STEP = 36, 37, 38, 39, 40, 41
S_T0, S_T1, S_T2, S_T3 = 44, 45, 46, 47
S_PST = 48
S_RL  = 50
S_PUBR, S_PUBL = 58, 60
S_GL, S_GR = 62, 64
S_KT, S_VT, S_XM, S_VM = 66, 68, 70, 72
S_SPIN = 74
S_XMN, S_VMN = 76, 78
S_POI_OLD = 76
S_PXR, S_PXL = 84, 86
S_C = 88
S_LO, S_HI = 90, 91
S_EXO = 92
S_NEED = 94
S_XMW = 95
S_WBIT = 87
S_EXX = 84
S_HW, S_HR = 80, 82
S_POL = 86
S_OFFR = 85
S_DUM = 42

SPIN_MAX = 0x20000

DBGT = [0]
def dbg_stamp(a, word, first=False):
    if not DBGT[0]: return
    sk = a.newlabel("L_dt")
    a(f"s_or_b32 s4, s{S_PROD}, s{S_W}"); a("s_cmp_eq_u32 s4, 0"); a(f"s_cbranch_scc0 {sk}")
    a("s_memrealtime s[4:5]"); a("s_waitcnt lgkmcnt(0)")
    if first: a("s_mov_b32 s3, s4")
    a("s_sub_u32 s4, s4, s3")
    a("s_mov_b64 s[6:7], exec"); a("s_mov_b64 exec, 1")
    a(f"v_mov_b32 v142, {4*word}"); a("v_mov_b32 v143, s4")
    a("global_store_dword v142, v143, s[28:29] sc1")
    a("s_waitcnt vmcnt(0)")
    a("s_mov_b64 exec, s[6:7]")
    a.label(sk)

def gen_r(a, opts):
    DBGT[0] = opts.get('dbgt', 0)
    ROT[0] = opts.get('rot', 0)
    PRETOUCH[0] = opts.get('pre', 0)
    D_RED = opts.get('d_red', 5); D_LOC = opts.get('d_loc', 2); D_REM = opts.get('d_rem', 1)
    prof = opts.get('prof', False)
    a.label("L_R")
    a("v_and_b32 v1, 63, v0")
    a(f"s_lshr_b32 s{S_T0}, s{S_J}, 1"); a(f"s_lshl_b32 s{S_H}, s{S_G}, 4"); a(f"s_add_u32 s{S_H}, s{S_H}, s{S_T0}")
    a(f"s_and_b32 s{S_HF}, s{S_J}, 1")
    a(f"s_lshl_b32 s{S_PROD}, s{S_G}, 5"); a(f"s_add_u32 s{S_PROD}, s{S_PROD}, s{S_J}")
    a(f"s_lshl_b32 s{S_RID}, s{S_W}, 5"); a(f"s_add_u32 s{S_RID}, s{S_RID}, s{S_J}")
    a(f"s_cmp_lt_u32 s{S_RID}, 80"); a(f"s_cselect_b32 s{S_RACT}, 1, 0")
    dbg_stamp(a, 12, first=True)
    init_handoff(a)
    prologue_weights(a)
    dbg_stamp(a, 12)
    setup_regs(a)
    load_mem0(a)
    rt_stamp(a, 1, 140, opts.get('tl', 0))
    census(a)
    body(a, opts, slow=False)
    body(a, opts, slow=True)

def init_handoff(a):
    for r in range(4, 8): a(f"v_mov_b32 v{r}, -1")
    a("v_lshlrev_b32 v2, 4, v0")
    a(f"s_mul_i32 s{S_T0}, s{S_PROD}, 10240")
    sadd64(a, 48, P_WS, WS_PART); sadd64(a, 48, 48, f"s{S_T0}")
    a("v_add_u32 v3, 4096, v2"); a("v_min_u32 v8, 2032, v2"); a("v_add_u32 v8, 8192, v8")
    for sl in range(2):
        for v in (2, 3, 8): a(f"global_store_dwordx4 v{v}, v[4:7], s[48:49] sc1")
        if sl == 0: sadd64(a, 48, 48, 64*10240)
    a(f"s_lshl_b32 s{S_T0}, s{S_G}, 15"); a(f"s_lshl_b32 s{S_T1}, s{S_J}, 10"); a(f"s_add_u32 s{S_T0}, s{S_T0}, s{S_T1}")
    a(f"s_and_b32 s{S_T1}, s{S_W}, 1"); a(f"s_lshl_b32 s{S_T1}, s{S_T1}, 16"); a(f"s_add_u32 s{S_T0}, s{S_T0}, s{S_T1}")
    sadd64(a, 48, P_WS, WS_XPR); sadd64(a, 48, 48, f"s{S_T0}")
    a("v_lshlrev_b32 v9, 4, v1")
    a("global_store_dwordx4 v9, v[4:7], s[48:49] sc1")
    a(f"s_mul_i32 s{S_T0}, s{S_G}, 10240"); a(f"s_mul_i32 s{S_T1}, s{S_J}, 320"); a(f"s_add_u32 s{S_T0}, s{S_T0}, s{S_T1}")
    a(f"s_and_b32 s{S_T1}, s{S_W}, 1"); a(f"s_mul_i32 s{S_T1}, s{S_T1}, 20480"); a(f"s_add_u32 s{S_T0}, s{S_T0}, s{S_T1}")
    sadd64(a, 48, P_WS, WS_XPL); sadd64(a, 48, 48, f"s{S_T0}")
    a("v_min_u32 v9, 304, v9")
    a("global_store_dwordx4 v9, v[4:7], s[48:49] sc1")

def prologue_weights(a):
    QB = [0, 40960, 81920, 122880]
    a(f"s_lshl_b32 s{S_T0}, s{S_H}, 8")
    sadd64(a, 50, P_WQ, f"s{S_T0}"); sadd64(a, 52, P_WK, f"s{S_T0}")
    a(f"s_lshl_b32 s{S_T1}, s{S_HF}, 7"); a(f"s_add_u32 s{S_T0}, s{S_T0}, s{S_T1}")
    sadd64(a, 54, P_WV, f"s{S_T0}")
    a("v_lshrrev_b32 v2, 4, v1"); a("v_and_b32 v3, 15, v1")
    a("v_lshrrev_b32 v4, 1, v3"); a("v_and_b32 v5, 1, v3")
    a("v_and_b32 v6, 1, v2")
    a(f"s_and_b32 s{S_T0}, s{S_W}, 1"); a(f"s_lshl_b32 s{S_T0}, s{S_T0}, 2")
    a(f"v_or_b32 v6, s{S_T0}, v6")
    a(f"s_lshl_b32 s{S_T1}, s{S_W}, 4")
    a(f"v_add_u32 v7, s{S_T1}, v2")
    for i in range(4):
        a(f"v_or_b32 v8, {(i & 1) << 1}, v6"); a("v_xor_b32 v8, v8, v4"); a("v_lshl_add_u32 v8, v8, 1, v5")
        a(f"v_add_u32 v9, {4*i}, v7"); a("v_lshlrev_b32 v9, 13, v9"); a(f"v_lshl_add_u32 v{10+i}, v8, 4, v9")
    a("v_lshrrev_b32 v2, 3, v1"); a("v_and_b32 v3, 7, v1")
    a("v_lshrrev_b32 v4, 1, v3"); a("v_and_b32 v5, 1, v3")
    a("v_bfe_u32 v6, v2, 2, 1")
    a(f"s_and_b32 s{S_T0}, s{S_W}, 1"); a(f"s_lshl_b32 s{S_T0}, s{S_T0}, 1"); a(f"v_or_b32 v6, s{S_T0}, v6")
    a("v_xor_b32 v6, v6, v4"); a("v_lshl_add_u32 v6, v6, 1, v5")
    for i in range(2):
        a(f"s_lshl_b32 s{S_T1}, s{S_W}, 4"); a(f"s_add_u32 s{S_T1}, s{S_T1}, {8*i}")
        a(f"v_add_u32 v9, s{S_T1}, v2"); a("v_lshlrev_b32 v9, 13, v9"); a(f"v_lshl_add_u32 v{14+i}, v6, 4, v9")
    def qkv_dma(buf):
        a(f"s_lshl_b32 s{S_T0}, s{S_W}, 12"); a(f"s_add_u32 s{S_T0}, s{S_T0}, {buf}")
        for i in range(4):
            a(f"s_add_u32 m0, s{S_T0}, {1024*i}"); a(f"global_load_lds_dwordx4 v{10+i}, s[50:51]")
        for i in range(4):
            a(f"s_add_u32 m0, s{S_T0}, {16384 + 1024*i}"); a(f"global_load_lds_dwordx4 v{10+i}, s[52:53]")
        a(f"s_lshl_b32 s{S_T0}, s{S_W}, 11"); a(f"s_add_u32 s{S_T0}, s{S_T0}, {buf + 32768}")
        for i in range(2):
            a(f"s_add_u32 m0, s{S_T0}, {1024*i}"); a(f"global_load_lds_dwordx4 v{14+i}, s[54:55]")
        for p in (50, 52, 54): sadd64(a, p, p, 64*8192)
    a(f"s_lshl_b32 s{S_T0}, s{S_H}, 7"); a(f"s_lshl_b32 s{S_T1}, s{S_HF}, 6"); a(f"s_add_u32 s{S_T0}, s{S_T0}, s{S_T1}")
    a(f"s_mul_i32 s{S_T0}, s{S_T0}, 1280")
    sadd64(a, 48, P_WO, f"s{S_T0}")
    a(f"s_mul_i32 s{S_T2}, s{S_W}, 1280"); a(f"v_add_u32 v16, s{S_T2}, v1")
    a(f"s_mul_i32 s{S_T2}, s{S_W}, 20480"); a(f"s_add_u32 s{S_T2}, s{S_T2}, {L_STG}")
    a(f"s_mov_b32 s{S_T3}, 52429")
    for i in range(20):
        a(f"v_mul_lo_u32 v17, v16, s{S_T3}"); a("v_lshrrev_b32 v17, 22, v17")
        a("v_mul_u32_u24 v18, 80, v17"); a("v_sub_u32 v18, v16, v18")
        a("v_and_b32 v19, 1, v17"); a("v_bfe_u32 v20, v17, 2, 2"); a("v_lshl_add_u32 v19, v20, 1, v19")
        a("v_lshlrev_b32 v19, 1, v19"); a("v_xor_b32 v18, v18, v19")
        a("v_mul_u32_u24 v17, 1280, v17"); a("v_lshl_add_u32 v17, v18, 4, v17")
        a(f"s_add_u32 m0, s{S_T2}, {1024*i}")
        a("global_load_lds_dwordx4 v17, s[48:49]")
        a("v_add_u32 v16, 64, v16")
    qkv_dma(QB[0]); qkv_dma(QB[1])
    a("v_lshrrev_b32 v5, 4, v1")
    a("v_bfe_u32 v6, v1, 2, 2")
    a("v_lshrrev_b32 v7, 1, v5"); a("v_lshlrev_b32 v7, 4, v7")
    a("v_and_b32 v8, 1, v5"); a("v_lshl_add_u32 v7, v8, 2, v7")
    a("v_and_b32 v9, 1, v6"); a("v_add_u32 v7, v7, v9")
    a("v_lshrrev_b32 v16, 1, v6"); a("v_lshl_add_u32 v7, v16, 3, v7")
    a("v_mul_u32_u24 v7, 1280, v7")
    a("v_and_b32 v17, 3, v1"); a("v_lshl_add_u32 v7, v17, 3, v7"); a(f"v_add_u32 v7, {L_STG}, v7")
    a("v_lshl_add_u32 v9, v8, 1, v9"); a("v_lshl_add_u32 v9, v16, 2, v9")
    a("s_waitcnt vmcnt(20)")
    a("s_barrier")
    a(f"s_cmp_eq_u32 s{S_W}, 0"); a("s_cbranch_scc0 L_R_noid")
    init_done(a, 28, DBG_RINIT)
    a.label("L_R_noid")
    if PRETOUCH[0]:
        a("v_lshlrev_b32 v28, 4, v0"); a("v_add_u32 v29, 4096, v28"); a("v_min_u32 v24, 2032, v28"); a("v_add_u32 v24, 8192, v24")
        a(f"s_mul_i32 s{S_T0}, s{S_PROD}, 10240")
        sadd64(a, 56, P_WS, WS_PART); sadd64(a, 56, 56, f"s{S_T0}")
        for sl in range(2):
            for k, v in enumerate((28, 29, 24)): a(f"global_load_dwordx4 v[{110+12*sl+4*k}:{113+12*sl+4*k}], v{v}, s[56:57] sc1")
            if sl == 0: sadd64(a, 56, 56, 64*10240)
        a(f"s_mul_i32 s{S_T0}, s{S_G}, 10240"); a(f"s_mul_i32 s{S_T1}, s{S_J}, 320"); a(f"s_add_u32 s{S_T0}, s{S_T0}, s{S_T1}")
        a(f"s_and_b32 s{S_T1}, s{S_W}, 1"); a(f"s_mul_i32 s{S_T1}, s{S_T1}, 20480"); a(f"s_add_u32 s{S_T0}, s{S_T0}, s{S_T1}")
        sadd64(a, 56, P_WS, WS_XPL); sadd64(a, 56, 56, f"s{S_T0}")
        a("v_lshlrev_b32 v28, 4, v1"); a("v_min_u32 v28, 304, v28")
        a("global_load_dwordx4 v[134:137], v28, s[56:57] sc1")
    for tt in range(10):
        a(f"s_mul_i32 s{S_T0}, s{S_W}, 10"); a(f"s_add_u32 s{S_T0}, s{S_T0}, {tt}")
        a(f"s_and_b32 s{S_T1}, s{S_T0}, 7"); a(f"s_and_b32 s{S_T2}, s{S_T0}, 0xf8")
        a(f"v_xor_b32 v17, s{S_T1}, v9"); a(f"v_add_u32 v17, s{S_T2}, v17"); a("v_lshl_add_u32 v17, v17, 5, v7")
        d = 30 + 8*tt
        for hi in range(2):
            for jq in range(2):
                a(f"ds_read_b64_tr_b16 v[{d+4*hi+2*jq}:{d+4*hi+2*jq+1}], v17 offset:{40960*hi + 2560*jq}")
        if tt % 3 == 2: a("s_waitcnt lgkmcnt(0)")
    a("s_waitcnt lgkmcnt(0)")
    a("s_barrier")
    qkv_dma(QB[2]); qkv_dma(QB[3])
    a("v_lshrrev_b32 v5, 4, v1"); a("v_bfe_u32 v6, v1, 2, 2")
    a("v_lshlrev_b32 v7, 2, v5"); a("v_and_b32 v8, 1, v6"); a("v_add_u32 v7, v7, v8"); a("v_lshrrev_b32 v9, 1, v6"); a("v_lshl_add_u32 v7, v9, 4, v7")
    a("v_and_b32 v16, 1, v5")
    a("v_lshl_add_u32 v17, v16, 1, v8"); a("v_lshl_add_u32 v17, v9, 2, v17")
    a("v_lshl_add_u32 v21, v9, 1, v16")
    a("v_and_b32 v22, 3, v1")
    a("v_lshlrev_b32 v23, 8, v7"); a("v_lshl_add_u32 v23, v22, 3, v23")
    for t in range(2):
        a(f"s_lshl_b32 s{S_T0}, s{S_W}, 1"); a(f"s_add_u32 s{S_T0}, s{S_T0}, {t}")
        a(f"v_xor_b32 v24, s{S_T0}, v17"); a(f"v_lshl_add_u32 v{18+t}, v24, 5, v23")
    a("v_lshlrev_b32 v23, 7, v7"); a("v_lshl_add_u32 v23, v22, 3, v23"); a("v_add_u32 v23, 32768, v23")
    a(f"v_xor_b32 v24, s{S_W}, v21"); a("v_lshl_add_u32 v20, v24, 5, v23")
    KTMP = 110
    for c in range(10):
        buf = QB[c & 3]
        inflight = min(3, 9 - c)
        a(f"s_waitcnt vmcnt({10*inflight})")
        a("s_barrier")
        for r in range(3): a(f"v_add_u32 v{25+r}, {buf}, v{18+r}")
        lgp = Cnt(a, "lgkmcnt", 15)
        for tile, areg, img in (('q0', 25, 0), ('q1', 26, 0), ('k0', 25, 16384), ('k1', 26, 16384), ('v', 27, 0)):
            for hi in range(2):
                for jq in range(2):
                    lo = 4*hi + 2*jq
                    if wfrag(tile, c) is None: dst = f"v[{KTMP+8*(c-4)+lo}:{KTMP+8*(c-4)+lo+1}]"
                    else: dst = wr(tile, c, lo, 2)
                    off = img + (hi*4096 + jq*256 if tile == 'v' else hi*8192 + jq*512)
                    lgp.issue(0, f"ds_read_b64_tr_b16 {dst}, v{areg} offset:{off}")
        lgp.waitall()
        a("s_barrier")
        if c + 4 < 10: qkv_dma(buf)
    a(f"s_mul_i32 s{S_T0}, s{S_W}, 20480"); a("v_lshlrev_b32 v12, 4, v1"); a(f"v_add_u32 v12, s{S_T0}, v12")
    for tt in range(10):
        d = 30 + 8*tt
        a(f"ds_write_b128 v12, v[{d}:{d+3}] offset:{2048*tt}")
        a(f"ds_write_b128 v12, v[{d+4}:{d+7}] offset:{2048*tt+1024}")
        if tt % 5 == 4: a("s_waitcnt lgkmcnt(0)")
    a(f"s_mul_i32 s{S_T0}, s{S_W}, 12288"); a(f"s_add_u32 s{S_T0}, s{S_T0}, {L_WS}")
    a("v_lshlrev_b32 v12, 4, v1"); a(f"v_add_u32 v12, s{S_T0}, v12")
    for k in range(6):
        a(f"ds_write_b128 v12, v[{KTMP+8*k}:{KTMP+8*k+3}] offset:{2048*k}")
        a(f"ds_write_b128 v12, v[{KTMP+8*k+4}:{KTMP+8*k+7}] offset:{2048*k+1024}")
    a("s_waitcnt lgkmcnt(0)")

ROT = [0]
PRETOUCH = [1]
def gather_block(a, sreg):
    if ROT[0]:
        a(f"s_add_u32 s{sreg}, s{S_W}, s{S_J}"); a(f"s_and_b32 s{sreg}, s{sreg}, 3")
    else:
        a(f"s_mov_b32 s{sreg}, s{S_W}")

def setup_regs(a):
    LN = 19
    a(f"v_mov_b32 v{LN}, v1")
    T = 56
    a(f"v_lshrrev_b32 v{T}, 4, v{LN}")
    a(f"v_and_b32 v{T+1}, 15, v{LN}")
    a(f"v_bfe_u32 v{T+2}, v{LN}, 2, 2")
    a(f"v_and_b32 v{T+3}, 3, v{LN}")
    G, N, R_, CC = T, T+1, T+2, T+3
    t0, t1, t2 = T+4, T+5, T+6
    a(f"v_and_b32 v{t0}, 2, v{LN}"); a(f"v_cmp_eq_u32 vcc, 0, v{t0}")
    a(f"v_mov_b32 v{t1}, 0xeeeeeeee"); a(f"v_mov_b32 v{t2}, 0x44444444")
    a(f"v_cndmask_b32 v{V_IDX}, v{t1}, v{t2}, vcc")
    a(f"v_lshlrev_b32 v{V_L16}, 4, v{LN}"); a(f"v_lshlrev_b32 v{V_L8}, 3, v{LN}")
    a(f"v_lshrrev_b32 v{t0}, 1, v{G}"); a(f"v_lshlrev_b32 v{t0}, 9, v{t0}")
    a(f"v_lshl_add_u32 v{t0}, v{CC}, 7, v{t0}")
    a(f"v_and_b32 v{t1}, 1, v{G}"); a(f"v_lshl_add_u32 v{t0}, v{t1}, 6, v{t0}")
    a(f"v_lshl_add_u32 v{t0}, v{R_}, 3, v{t0}"); a(f"v_add_u32 v{t0}, {L_IMG}, v{t0}")
    a(f"v_lshrrev_b32 v{t1}, 1, v{CC}")
    a(f"v_lshl_add_u32 v{V_AT0}, v{t1}, 5, v{t0}")
    a(f"v_xor_b32 v{t1}, 1, v{t1}"); a(f"v_lshl_add_u32 v{V_AT1}, v{t1}, 5, v{t0}")
    a(f"s_lshl_b32 s{S_T0}, s{S_W}, 5"); a(f"v_add_u32 v{t0}, s{S_T0}, v{N}")
    a(f"v_lshrrev_b32 v{t1}, 2, v{t0}"); a(f"v_lshrrev_b32 v{t2}, 1, v{G}"); a(f"v_add_u32 v{t1}, v{t1}, v{t2}")
    a(f"v_lshlrev_b32 v{t0}, 5, v{t0}"); a(f"v_and_b32 v{t2}, 1, v{G}"); a(f"v_lshl_add_u32 v{t0}, v{t2}, 2, v{t0}"); a(f"v_add_u32 v{t0}, {L_XIM}, v{t0}")
    a(f"v_and_b32 v{t2}, 3, v{t1}"); a(f"v_lshl_add_u32 v{V_XWQ}, v{t2}, 3, v{t0}")
    a(f"v_add_u32 v{t1}, 2, v{t1}"); a(f"v_and_b32 v{t2}, 3, v{t1}"); a(f"v_lshl_add_u32 v{V_XWK}, v{t2}, 3, v{t0}")
    a(f"v_lshl_add_u32 v{t0}, v{G}, 2, v{R_}"); a(f"v_lshlrev_b32 v{t0}, 5, v{t0}")
    a(f"v_add_u32 v{t1}, v{CC}, v{G}"); a(f"v_and_b32 v{t1}, 3, v{t1}"); a(f"v_lshl_add_u32 v{t0}, v{t1}, 3, v{t0}")
    a(f"v_add_u32 v{V_XR}, {L_XIM}, v{t0}")
    a(f"v_add_u32 v{V_KT}, {L_KTB}, v{V_L16}")
    a(f"s_mul_i32 s{S_T0}, s{S_W}, 20480"); a(f"v_add_u32 v{V_WO}, s{S_T0}, v{V_L16}")
    a(f"s_mul_i32 s{S_T0}, s{S_W}, 12288"); a(f"s_add_u32 s{S_T0}, s{S_T0}, {L_WS}"); a(f"v_add_u32 v{V_WS}, s{S_T0}, v{V_L16}")
    a(f"s_lshl_b32 s{S_T0}, s{S_W}, 1"); a(f"v_lshrrev_b32 v{t0}, 1, v{G}"); a(f"v_add_u32 v{t0}, s{S_T0}, v{t0}")
    a(f"v_and_b32 v{t1}, 6, v{N}"); a(f"v_xor_b32 v{t0}, v{t0}, v{t1}"); a(f"v_lshlrev_b32 v{t0}, 4, v{t0}")
    a(f"v_and_b32 v{t1}, 7, v{N}"); a(f"v_lshl_add_u32 v{t0}, v{t1}, 7, v{t0}")
    a(f"v_and_b32 v{t1}, 1, v{G}"); a(f"v_lshl_add_u32 v{t0}, v{t1}, 3, v{t0}"); a(f"v_add_u32 v{V_OEW}, {L_OEX}, v{t0}")
    a(f"v_lshrrev_b32 v{t0}, 2, v{N}"); a(f"v_lshlrev_b32 v{t0}, 1, v{t0}"); a(f"v_and_b32 v{t1}, 1, v{N}"); a(f"v_add_u32 v{t0}, v{t0}, v{t1}")
    a(f"v_bfe_u32 v{t1}, v{N}, 1, 1"); a(f"v_lshl_add_u32 v{t1}, v{G}, 1, v{t1}")
    a(f"v_and_b32 v{t2}, 6, v{t0}"); a(f"v_xor_b32 v{t1}, v{t1}, v{t2}"); a(f"v_lshlrev_b32 v{t1}, 4, v{t1}")
    a(f"v_lshl_add_u32 v{t1}, v{t0}, 7, v{t1}"); a(f"v_add_u32 v{V_OER}, {L_OEX}, v{t1}")
    a(f"s_lshl_b32 s{S_T0}, s{S_W}, 8"); a(f"s_add_u32 s{S_T0}, s{S_T0}, {L_VEX}")
    a(f"v_lshlrev_b32 v{t0}, 4, v{N}"); a(f"v_add_u32 v{t0}, s{S_T0}, v{t0}")
    a(f"v_lshl_add_u32 v{V_VEW}, v{G}, 2, v{t0}")
    a(f"v_and_b32 v{t1}, 1, v{G}"); a(f"v_lshl_add_u32 v{V_VER}, v{t1}, 3, v{t0}")
    gather_block(a, S_T0)
    a(f"s_mul_i32 s{S_T0}, s{S_T0}, 2560"); a(f"s_add_u32 s{S_T0}, s{S_T0}, {L_IMG}")
    a(f"v_lshrrev_b32 v{t0}, 5, v{LN}"); a(f"v_lshlrev_b32 v{t0}, 9, v{t0}")
    a(f"v_bfe_u32 v{t1}, v{LN}, 3, 2"); a(f"v_lshl_add_u32 v{t0}, v{t1}, 7, v{t0}")
    a(f"v_lshrrev_b32 v{t1}, 1, v{t1}"); a(f"v_lshlrev_b32 v{t1}, 5, v{t1}")
    a(f"v_and_b32 v{t2}, 7, v{LN}"); a(f"v_lshlrev_b32 v{t2}, 4, v{t2}"); a(f"v_xor_b32 v{t2}, v{t2}, v{t1}")
    a(f"v_add_u32 v{t0}, v{t0}, v{t2}"); a(f"v_add_u32 v{V_IW0}, s{S_T0}, v{t0}")
    a(f"v_lshrrev_b32 v{t1}, 1, v{G}"); a(f"v_lshlrev_b32 v{t1}, 5, v{t1}"); a(f"v_lshlrev_b32 v{t2}, 3, v{N}"); a(f"v_xor_b32 v{t2}, v{t2}, v{t1}")
    a(f"v_lshl_add_u32 v{t0}, v{G}, 7, v{t2}"); a(f"v_add_u32 v{V_IW2}, s{S_T0}, v{t0}")
    a(f"v_lshrrev_b32 v{t0}, 3, v{N}"); a(f"v_lshl_add_u32 v{t0}, v{G}, 1, v{t0}"); a(f"v_mul_u32_u24 v{t0}, 10240, v{t0}")
    a(f"v_and_b32 v{t1}, 7, v{N}"); a(f"v_lshl_add_u32 v{t0}, v{t1}, 4, v{t0}")
    a(f"s_min_u32 s{S_T0}, s{S_RID}, 79"); a(f"s_lshl_b32 s{S_T0}, s{S_T0}, 7"); a(f"v_add_u32 v{V_RL}, s{S_T0}, v{t0}")
    for r in range(4): a(f"v_mov_b32 v{V_ONES+r}, 0x3f803f80")
    for k in range(4):
        a(f"v_mov_b32 v{t0}, 0")
        a(f"v_cmp_eq_u32 vcc, {2*k}, v{N}"); a(f"v_mov_b32 v{t1}, 0x3f80"); a(f"v_cndmask_b32 v{t0}, v{t0}, v{t1}, vcc")
        a(f"v_cmp_eq_u32 vcc, {2*k+1}, v{N}"); a(f"v_mov_b32 v{t1}, 0x3f800000"); a(f"v_cndmask_b32 v{V_SEL+k}, v{t0}, v{t1}, vcc")
    a(f"v_cmp_gt_u32 vcc, 2, v{G}"); a(f"v_mov_b32 v{t1}, 0xff800000"); a(f"v_mov_b32 v{t0}, 0")
    for r in range(4): a(f"v_cndmask_b32 v{V_CNEG+r}, v{t0}, v{t1}, vcc")
    a(f"s_mov_b32 s{S_C}, 0x{f32bits(128**-0.5 * 1.4426950408889634):08x}"); a(f"s_mov_b32 s{S_C+1}, s{S_C}")
    a(f"s_mov_b32 s{S_LO}, 0x00003f80"); a(f"s_mov_b32 s{S_HI}, 0x3f800000")
    a(f"s_mov_b32 s{S_EXO}, 0x00ff00ff"); a(f"s_mov_b32 s{S_EXO+1}, 0x00ff00ff")

def load_mem0(a):
    LN = 19
    T = 56
    a(f"v_bfe_u32 v{T}, v{LN}, 4, 2"); a(f"v_and_b32 v{T+1}, 15, v{LN}")
    a(f"v_mul_u32_u24 v{T+2}, 2560, v{T}")
    a(f"s_lshl_b32 s{S_T0}, s{S_W}, 5"); a(f"v_add_u32 v{T+3}, s{S_T0}, v{T+1}"); a(f"v_lshl_add_u32 v{T+2}, v{T+3}, 1, v{T+2}")
    B = 64
    for i in range(5):
        for q, off in enumerate((0, 1280, 32, 1312)):
            a(f"global_load_ushort v{B+4*i+q}, v{T+2}, {sp(P_MEM0)} offset:{256*i+off}")
    a(f"v_lshrrev_b32 v{T+3}, 1, v{T}"); a(f"v_lshlrev_b32 v{T+3}, 5, v{T+3}"); a(f"v_lshlrev_b32 v{T+4}, 3, v{T+1}"); a(f"v_xor_b32 v{T+4}, v{T+4}, v{T+3}")
    a(f"v_lshl_add_u32 v{T+4}, v{T}, 7, v{T+4}"); a(f"s_lshl_b32 s{S_T0}, s{S_W}, 9"); a(f"s_add_u32 s{S_T0}, s{S_T0}, {L_IMG}"); a(f"v_add_u32 v{T+4}, s{S_T0}, v{T+4}")

def finish_mem0(a):
    T = 56; B = 64
    for i in range(5):
        a(f"v_lshl_or_b32 v{B+4*i}, v{B+4*i+1}, 16, v{B+4*i}")
        a(f"v_lshl_or_b32 v{B+4*i+1}, v{B+4*i+3}, 16, v{B+4*i+2}")
        a(f"ds_write_b64 v{T+4}, v[{B+4*i}:{B+4*i+1}] offset:{2048*i}")

def census(a):
    from gen import XA, XB
    a(f"s_mov_b32 s{S_SPIN}, 0")
    load_tickets(a, 90, 91, 19)
    a(f"v_mov_b32 v92, {DBG_RINIT}"); a("v_cmp_eq_u32 vcc, 12, v19"); a("v_cndmask_b32 v90, v90, v92, vcc")
    a(f"global_load_dword v91, v90, {sp(P_DBG)} sc1")
    a("s_waitcnt vmcnt(0)")
    finish_mem0(a)
    a("s_branch L_R_census_chk")
    a.label("L_R_census")
    a(f"global_load_dword v91, v90, {sp(P_DBG)} sc1")
    a("s_waitcnt vmcnt(0)")
    a.label("L_R_census_chk")
    sum_tickets(a, S_T0, S_T1, 91)
    a(f"v_readlane_b32 s{S_T1}, v91, 12"); a(f"v_readlane_b32 s{S_POL}, v91, 11")
    a(f"s_cmp_ge_u32 s{S_T1}, 64"); a(f"s_cselect_b32 s{S_T0}, s{S_T0}, 0")
    a(f"s_cmp_ge_u32 s{S_T0}, 256"); a(f"s_cselect_b32 s{S_T0}, s{S_POL}, 0")
    a(f"s_cmp_lg_u32 s{S_T0}, 0"); a("s_cbranch_scc1 L_R_census_ok")
    a("s_sleep 4")
    a(f"s_add_u32 s{S_SPIN}, s{S_SPIN}, 1"); a(f"s_cmp_lt_u32 s{S_SPIN}, {SPIN_MAX}"); a("s_cbranch_scc1 L_R_census")
    a("s_endpgm")
    a.label("L_R_census_ok")
    a(f"s_cmp_eq_u32 s{S_POL}, 2"); a(f"s_cselect_b32 s{S_POL}, 8192, 0")
    a(f"v_readlane_b32 s{S_T0}, v91, {XA}"); a(f"v_readlane_b32 s{S_T1}, v91, {XB}")
    a(f"s_min_u32 s{S_T0}, s{S_T0}, s{S_T1}")
    a("s_waitcnt lgkmcnt(0)")
    a(f"s_cmp_ge_u32 s{S_T0}, 32")
    a("s_cbranch_scc0 L_Rslow_start")
    a("s_branch L_Rfast_start")

WS_DUMMY = 8 * MB
V_FLG = 0
V_FV = 19
S_OFFP = 96
S_OFFX = 97
S_TAG = 99
S_M0KT = 98
S_FM = 100

def backoff(a, n33, opts):
    if n33 <= 0: return
    if opts.get('slp', 1):
        k = (n33 * 33 + 32) // 64
        if k: a(f"s_sleep {k}")
    else:
        for _ in range(n33): a("s_nop 7")

def weave(a, mains, fillers, per=2):
    fi = 0
    for m in mains:
        m()
        k = 0
        while k < per and fi < len(fillers):
            f = fillers[fi]; fi += 1
            if f is None: break
            n = f()
            k += n if n else 1
    while fi < len(fillers):
        if fillers[fi] is not None: fillers[fi]()
        fi += 1

def body(a, opts, slow):
    P = "L_Rslow" if slow else "L_Rfast"
    LS = "sc1" if slow else ""
    D_RED = opts.get('d_red', 10); D_LOC = opts.get('d_loc', 12); D_REM = opts.get('d_rem', 0)
    stamps = opts.get('prof', False)
    prof = stamps or opts.get('cnt', False)
    PROF = [2, 26, 27, 23, 23, 23, 23, 23, 23] if not stamps else [2, 3, 4, 5, 6, 7, 23, 26, 27]; PRT = [20, 21, 22]
    fine = opts.get('fine', 0)
    def fstamp(i):
        if not fine: return
        a("s_memtime s[44:45]"); a("s_waitcnt lgkmcnt(0)")
        a("s_sub_u32 s45, s44, s33"); a(f"s_add_u32 s{PROF[i]}, s{PROF[i]}, s45")
        a("s_mov_b32 s33, s44")
    def stamp(i):
        if not stamps: return
        if fine and i is not None:
            i = {0: 8, 1: 8, 2: 8, 3: 8, 4: 8, 5: 8, 6: 8, 7: 8, 8: 8}[i]
        a("s_memtime s[44:45]"); a("s_waitcnt lgkmcnt(0)")
        if i is not None:
            a("s_sub_u32 s45, s44, s33"); a(f"s_add_u32 s{PROF[i]}, s{PROF[i]}, s45")
        a("s_mov_b32 s33, s44")
    I = lambda t: (lambda: a(t))
    RT = {'A': 86, 'B': 42, 'C': 22, 'D': 28, 'E': 6, 'F': 24, 'G': 20, 'H': None, 'I': 26, 'J': 2, 'K': 4}
    rt_on = opts.get('rt', 0)
    def rt(k):
        if rt_on and RT[k] is not None: a(f"s_memrealtime s[{RT[k]}:{RT[k]+1}]")
    B_PST, B_RL, B_PUBR, B_PUBL, B_GL, B_GR = 8, 10, 12, 14, 16, 18
    a.label(P + "_start")
    if prof:
        for r in PROF + PRT: a(f"s_mov_b32 s{r}, 0")
    a(f"s_mov_b32 s{S_STEP}, 0"); a(f"s_mov_b32 s{S_OFFP}, 0"); a(f"s_mov_b32 s{S_OFFX}, 0"); a(f"s_mov_b32 s{S_TAG}, 0")
    a(f"s_lshl_b32 s{S_T0}, s{S_H}, 13")
    sadd64(a, S_KT, P_WS, WS_KT); sadd64(a, S_KT, S_KT, f"s{S_T0}"); a(f"s_lshl_b32 s{S_T1}, s{S_W}, 11"); sadd64(a, S_KT, S_KT, f"s{S_T1}")
    sadd64(a, S_VT, P_WS, WS_VT); sadd64(a, S_VT, S_VT, f"s{S_T0}")
    a(f"s_lshl_b32 s{S_T1}, s{S_HF}, 2"); a(f"s_add_u32 s{S_T1}, s{S_T1}, s{S_W}"); a(f"s_lshl_b32 s{S_T2}, s{S_T1}, 10"); sadd64(a, S_VT, S_VT, f"s{S_T2}")
    a(f"s_lshl_b32 s{S_T0}, s{S_H}, 12")
    sadd64(a, S_XM, P_WS, WS_XM); sadd64(a, S_XM, S_XM, f"s{S_T0}")
    a(f"s_and_b32 s{S_XMW}, s{S_W}, 1"); a(f"s_lshl_b32 s{S_T3}, s{S_HF}, 1"); a(f"s_add_u32 s{S_XMW}, s{S_XMW}, s{S_T3}"); a(f"s_lshl_b32 s{S_XMW}, s{S_XMW}, 10")
    sadd64(a, S_XM, S_XM, f"s{S_XMW}")
    sadd64(a, S_VM, P_WS, WS_VM); sadd64(a, S_VM, S_VM, f"s{S_T0}"); a(f"s_lshl_b32 s{S_T2}, s{S_T1}, 9"); sadd64(a, S_VM, S_VM, f"s{S_T2}")
    a(f"s_lshl_b32 s{S_T0}, s{S_H}, 1"); a(f"s_add_u32 s{S_T0}, s{S_T0}, s{S_HF}"); a(f"s_lshl_b32 s{S_T0}, s{S_T0}, 6"); a(f"s_add_u32 s{S_T0}, s{S_T0}, {FM_OFF}")
    sadd64(a, S_FM, P_WS, f"s{S_T0}")
    a(f"v_lshrrev_b32 v56, 4, v{V_L16}")
    a(f"v_and_b32 v57, 3, v56"); a("v_lshlrev_b32 v57, 2, v57"); a("v_bfe_u32 v58, v56, 2, 1"); a(f"v_mul_u32_u24 v58, {FV_OFF}, v58"); a("v_add_u32 v57, v57, v58")
    a(f"s_lshl_b32 s{S_T0}, s{S_H}, 6"); a(f"v_add_u32 v{V_FV}, s{S_T0}, v57")
    a(f"s_mul_i32 s{S_T1}, s{S_PROD}, 10240"); a(f"s_mul_i32 s{S_T2}, s{S_W}, 2560"); a(f"s_add_u32 s{S_T1}, s{S_T1}, s{S_T2}")
    sadd64(a, B_PST, P_WS, WS_PART); sadd64(a, B_PST, B_PST, f"s{S_T1}")
    a(f"s_mul_i32 s{S_T1}, s{S_G}, {32*10240}"); a(f"s_add_u32 s{S_T1}, s{S_T1}, {WS_PART}")
    a(f"s_cmp_eq_u32 s{S_RACT}, 0"); a(f"s_cselect_b32 s{S_T1}, {WS_DUMMY}, s{S_T1}")
    sadd64(a, B_RL, P_WS, f"s{S_T1}")
    a(f"s_min_u32 s{S_T3}, s{S_RID}, 79")
    a(f"s_mul_i32 s{S_T1}, s{S_G}, 10240"); a(f"s_lshl_b32 s{S_T2}, s{S_T3}, 7"); a(f"s_add_u32 s{S_T2}, s{S_T2}, s{S_T1}"); a(f"s_add_u32 s{S_T2}, s{S_T2}, {WS_XPL}")
    a(f"s_lshl_b32 s{S_T0}, s{S_T3}, 7")
    a(f"s_sub_u32 s{S_T1}, s{S_T0}, {60*128}"); a(f"s_add_u32 s{S_T1}, s{S_T1}, 16384")
    a(f"s_cmp_ge_u32 s{S_T3}, 60"); a(f"s_cselect_b32 s{S_T0}, s{S_T1}, s{S_T0}")
    a(f"s_lshl_b32 s{S_T1}, s{S_G}, 15"); a(f"s_add_u32 s{S_T0}, s{S_T0}, s{S_T1}"); a(f"s_add_u32 s{S_T0}, s{S_T0}, s{S_POL}"); a(f"s_add_u32 s{S_T0}, s{S_T0}, {WS_XPR}")
    a(f"s_lshl_b32 s{S_T3}, s{S_PROD}, 8"); a(f"s_add_u32 s{S_T3}, s{S_T3}, {WS_DUMMY + 2*MB}")
    a(f"s_cmp_eq_u32 s{S_RACT}, 0"); a(f"s_cselect_b32 s{S_T0}, s{S_T3}, s{S_T0}"); a(f"s_cselect_b32 s{S_T2}, s{S_T3}, s{S_T2}")
    sadd64(a, B_PUBR, P_WS, f"s{S_T0}"); sadd64(a, B_PUBL, P_WS, f"s{S_T2}")
    gather_block(a, S_T2)
    a(f"s_mul_i32 s{S_T1}, s{S_G}, 10240"); a(f"s_mul_i32 s{S_T3}, s{S_T2}, 2560"); a(f"s_add_u32 s{S_T0}, s{S_T1}, s{S_T3}"); a(f"s_add_u32 s{S_T0}, s{S_T0}, {WS_XPL}")
    sadd64(a, B_GL, P_WS, f"s{S_T0}")
    a(f"s_cmp_eq_u32 s{S_T2}, 3"); a(f"s_cselect_b32 s{S_T3}, 16384, s{S_T3}")
    a(f"s_xor_b32 s{S_T1}, s{S_G}, 1"); a(f"s_lshl_b32 s{S_T1}, s{S_T1}, 15"); a(f"s_add_u32 s{S_T0}, s{S_T1}, s{S_T3}"); a(f"s_add_u32 s{S_T0}, s{S_T0}, s{S_POL}"); a(f"s_add_u32 s{S_T0}, s{S_T0}, {WS_XPR}")
    sadd64(a, B_GR, P_WS, f"s{S_T0}")
    a(f"s_mov_b32 s{S_OFFR}, 0")
    a("s_mov_b32 s24, -1"); a("s_mov_b32 s25, 0")
    a(f"s_lshl_b32 s{S_T1}, s{S_J}, 7"); a(f"s_add_u32 s{S_T1}, s{S_T1}, s{S_POL}"); a(f"s_add_u32 s{S_T1}, s{S_T1}, {WS_XPR + 16384 + 2560}")
    a(f"s_lshl_b32 s{S_T0}, s{S_G}, 15"); a(f"s_add_u32 s{S_T0}, s{S_T0}, s{S_T1}"); sadd64(a, S_HW, P_WS, f"s{S_T0}")
    a(f"s_xor_b32 s{S_T0}, s{S_G}, 1"); a(f"s_lshl_b32 s{S_T0}, s{S_T0}, 15"); a(f"s_add_u32 s{S_T0}, s{S_T0}, s{S_T1}"); sadd64(a, S_HR, P_WS, f"s{S_T0}")
    a(f"s_mov_b32 s{S_XMN}, s{S_XM}"); a(f"s_mov_b32 s{S_XMN+1}, s{S_XM+1}"); a(f"s_mov_b32 s{S_VMN}, s{S_VM}"); a(f"s_mov_b32 s{S_VMN+1}, s{S_VM+1}")
    a(f"s_lshl_b32 s{S_T0}, s{S_PROD}, 2"); a(f"s_add_u32 s{S_T0}, s{S_T0}, s{S_W}"); a(f"s_lshl_b32 s{S_T0}, s{S_T0}, 10"); a(f"s_add_u32 s{S_T0}, s{S_T0}, {WS_DUMMY}")
    sadd64(a, S_XM, P_WS, f"s{S_T0}"); sadd64(a, S_VM, P_WS, f"s{S_T0}")
    a(f"s_lshl_b32 s{S_WBIT}, 1, s{S_W}")
    a(f"v_mov_b32 v{XF+14}, 0")
    def flags_load(): a(f"global_load_dword v{V_FLG}, v{V_FV}, {sp(P_WS)} sc1")
    def flags_spin(need, ret):
        stub = a.newlabel(P + "_fs")
        def fn():
            a.label(stub)
            a(f"s_mov_b32 s{S_SPIN}, 0")
            a.label(stub + "_l")
            flags_load()
            a("s_waitcnt vmcnt(0)")
            a(f"v_cmp_gt_u32 vcc, s{need}, v{V_FLG}")
            a(f"s_cbranch_vccz {ret}")
            a("s_sleep 2")
            a(f"s_add_u32 s{S_SPIN}, s{S_SPIN}, 1"); a(f"s_cmp_lt_u32 s{S_SPIN}, {SPIN_MAX}"); a(f"s_cbranch_scc1 {stub}_l")
            a("s_endpgm")
        a.defer(fn)
        return stub
    def part_bases():
        sadd64(a, S_PST, B_PST, f"s{S_OFFP}")
        sadd64(a, S_RL, B_RL, f"s{S_OFFP}")
        for t in range(1, 4): sadd64(a, S_RL+2*t, S_RL+2*t-2, 81920)
    a(f"s_mov_b32 s{S_NEED}, 1")
    pr = a.newlabel(P + "_prime")
    a(f"s_branch {flags_spin(S_NEED, pr)}")
    a.label(pr)
    a(f"s_lshl_b32 s{S_T0}, s{S_W}, 11"); a(f"s_add_u32 m0, s{S_T0}, {L_KTB}"); a(f"s_add_u32 s{S_M0KT}, s{S_T0}, {L_KTB + 8192}")
    a(f"global_load_lds_dwordx4 v{V_L16}, {sp(S_KT)} sc1")
    a(f"global_load_lds_dwordx4 v{V_L16}, {sp(S_KT)} offset:1024 sc1")
    sadd64(a, S_KT, S_KT, 32*8192)
    a(f"s_mov_b32 s{S_NEED}, 2")
    part_bases()
    for r in range(0, 20, 2): a(f"v_mov_b64 v[{ACC+r}:{ACC+r+1}], 0")
    a("s_waitcnt vmcnt(0)")
    stamp(None)
    rt_stamp(a, 3, 140, opts.get('tl', 0))
    a.label(P + "_loop")
    a("s_barrier")
    stamp(5)
    if opts.get('tl', 0):
        for st, ix in ((1, 4), (2, 5), (8, 6), (32, 7)):
            sk = a.newlabel("L_tl")
            a(f"s_cmp_eq_u32 s{S_STEP}, {st}"); a(f"s_cbranch_scc0 {sk}")
            rt_stamp(a, ix, 140, True)
            a.label(sk)
    if prof:
        sk = a.newlabel("L_pr")
        a(f"s_cmp_eq_u32 s{S_STEP}, 32"); a(f"s_cbranch_scc0 {sk}")
        for r in PROF + PRT: a(f"s_mov_b32 s{r}, 0")
        a.label(sk)
    if DBGT[0]:
        for st, wd in ((1, 13), (32, 14)):
            sk = a.newlabel("L_dts")
            a(f"s_cmp_eq_u32 s{S_STEP}, {st}"); a(f"s_cbranch_scc0 {sk}")
            dbg_stamp(a, wd)
            a.label(sk)
    if rt_on:
        rt('A'); a("s_waitcnt lgkmcnt(0)")
    if opts.get('steplog') == 1:
        a("s_memtime s[44:45]"); a("s_waitcnt lgkmcnt(0)"); a(f"s_mov_b32 m0, s{S_STEP}"); a("s_nop 0"); a(f"v_writelane_b32 v{V_IW0}, s44, m0")
    if opts.get('steplog') == 2:
        a("s_memrealtime s[44:45]"); a("s_waitcnt lgkmcnt(0)"); a("s_lshl_b32 s44, s44, 8")
        a("s_min_u32 s21, s21, 15"); a("s_min_u32 s22, s22, 15"); a("s_lshl_b32 s21, s21, 4"); a("s_or_b32 s44, s44, s21"); a("s_or_b32 s44, s44, s22")
        a("s_mov_b32 s21, 0"); a("s_mov_b32 s22, 0")
        a(f"s_mov_b32 m0, s{S_STEP}"); a("s_nop 0"); a(f"v_writelane_b32 v{V_IW0}, s44, m0")
    lg = Cnt(a, "lgkmcnt", 15)
    def af_read(c, h):
        v = V_AT0 if h == 0 else V_AT1
        return lambda: lg.issue(('af', c), f"ds_read_b64_tr_b16 v[{AF+4*c+2*h}:{AF+4*c+2*h+1}], v{v} offset:{1024*c}")
    def ks_read(c, h):
        b = VS + 8*(c & 1) + 4*h
        return lambda: lg.issue(('ks', c), f"ds_read_b128 v[{b}:{b+3}], v{V_WS} offset:{2048*(c-4)+1024*h}")
    def kt_read(i):
        return lambda: lg.issue(('kt', i), f"ds_read_b128 v[{KT+4*i}:{KT+4*i+3}], v{V_KT} offset:{1024*i}")
    for c in range(4):
        af_read(c, 0)(); af_read(c, 1)()
    def smf(acc, c, w): a(f"v_smfmac_f32_16x16x64_bf16 v[{acc}:{acc+3}], v[{AF+4*c}:{AF+4*c+3}], {w}, v{V_IDX}")
    slot = {}
    seq = [af_read(4, 0), af_read(4, 1), ks_read(4, 0), ks_read(4, 1), af_read(5, 0), af_read(5, 1), ks_read(5, 0), ks_read(5, 1),
           af_read(6, 0), af_read(6, 1), af_read(7, 0), af_read(7, 1), kt_read(0), kt_read(1), af_read(8, 0), af_read(8, 1),
           af_read(9, 0), af_read(9, 1), kt_read(2), None,
           ks_read(6, 0), ks_read(6, 1), kt_read(3), None, ks_read(7, 0), ks_read(7, 1), kt_read(4), None,
           ks_read(8, 0), ks_read(8, 1), kt_read(5), None, ks_read(9, 0), ks_read(9, 1), kt_read(6), kt_read(7), None, None, None, None]
    XT = XF+8; VMC = XF+12; FMV = XF+14
    def x_vt(): a(f"global_load_dwordx4 v[{V_VT}:{V_VT+3}], v{V_L16}, {sp(S_VT)} sc1")
    def x_d0(): a(f"s_mov_b32 m0, s{S_M0KT}"); a(f"global_load_lds_dwordx4 v{V_L16}, {sp(S_KT)} sc1")
    def x_d1(): a(f"global_load_lds_dwordx4 v{V_L16}, {sp(S_KT)} offset:1024 sc1")
    def x_xm(): a(f"global_store_dwordx4 v{V_L16}, v[{XT}:{XT+3}], {sp(S_XM)} sc1")
    def x_vm(): a(f"global_store_dwordx2 v{V_L8}, v[{VMC}:{VMC+1}], {sp(S_VM)} sc1")
    def x_fm():
        a("s_mov_b64 exec, 1"); a(f"global_store_dword v{V_L8}, v{FMV}, {sp(S_FM)} sc1"); a("s_mov_b64 exec, -1")
        a(f"global_load_dword v{V_FLG}, v{V_FV}, {sp(P_WS)} sc1")
    extras = [x_vt, x_d0, x_d1, x_xm, x_vm, x_fm]
    if opts.get('x_noext') == 1: extras = [x_vt, x_d0, x_d1, lambda: a('s_nop 0'), lambda: a('s_nop 0'), lambda: a('s_nop 0')]
    if opts.get('x_noext') == 2: extras = [lambda: a('s_nop 0')]*6
    X0 = opts.get('x0', 2)
    ops_per = [1, 1, 1, 1, 1, 2]
    nx22 = sum(n for e, n in enumerate(ops_per) if X0 + 4*e < 22)
    fret = a.newlabel(P + "_fret"); fstub = flags_spin(S_NEED, fret)
    KT_FIRST = 24
    seq = [af_read(4, 0), af_read(4, 1), ks_read(4, 0), ks_read(4, 1), af_read(5, 0), af_read(5, 1), ks_read(5, 0), ks_read(5, 1),
           af_read(6, 0), af_read(6, 1), af_read(7, 0), af_read(7, 1), af_read(8, 0), af_read(8, 1), af_read(9, 0), af_read(9, 1),
           None, None, None, None,
           ks_read(6, 0), ks_read(6, 1), kt_read(0), kt_read(1), ks_read(7, 0), ks_read(7, 1), kt_read(2), kt_read(3),
           ks_read(8, 0), ks_read(8, 1), kt_read(4), kt_read(5), ks_read(9, 0), ks_read(9, 1), kt_read(6), kt_read(7), None, None, None, None]
    k = 0
    for c in range(10):
        for t, tile in enumerate(('q0', 'q1', 'k0', 'k1')):
            if t == 0: lg.wait(('af', c))
            if tile == 'k1' and c >= 4:
                lg.wait(('ks', c)); b = VS + 8*(c & 1)
                smf(ACC+12, c, f"v[{b}:{b+7}]")
            else:
                smf(ACC+4*t, c, wr(tile, c))
            if k == 0:
                a(f"v_cmp_gt_u32 vcc, s{S_NEED}, v{V_FLG}")
            if k == 2:
                a(f"s_lshr_b32 s{S_TAG}, s{S_STEP}, 1"); a(f"s_and_b32 s{S_TAG}, s{S_TAG}, 1")
            if k == 1:
                a(f"s_cbranch_vccnz {fstub}"); a.label(fret)
            if k == 22: a(f"s_waitcnt vmcnt({nx22 if not opts.get('x_noext') else 0})")
            if seq[k] is not None: seq[k]()
            if k >= X0 and (k - X0) % 4 == 0 and (k - X0) // 4 < len(extras):
                extras[(k - X0) // 4]()
            k += 1
    if fine == 1: lg.waitall(); fstamp(0)
    for t in range(4): a(f"v_pk_add_f32 v[{ACC+4*t}:{ACC+4*t+1}], v[{ACC+4*t}:{ACC+4*t+1}], v[{ACC+4*t+2}:{ACC+4*t+3}]")
    for t in range(4): a(f"v_cvt_pk_bf16_f32 v{ACC+4*t+2}, v{ACC+4*t}, v{ACC+4*t+1}")
    lg.issue('xw', f"ds_write2st64_b32 v{V_XWQ}, v{ACC+2}, v{ACC+6} offset0:0 offset1:2")
    lg.issue('xw', f"ds_write2st64_b32 v{V_XWK}, v{ACC+10}, v{ACC+14} offset0:0 offset1:2")
    for c in range(3): smf(ACC+16, c, wr('v', c))
    lg.waitall()
    if fine == 1: fstamp(1)
    a("s_barrier")
    stamp(0)
    for ks in range(4):
        lg.issue(('x', ks), f"ds_read_b64_tr_b16 v[{XF+4*ks}:{XF+4*ks+1}], v{V_XR} offset:{1024*ks}")
        lg.issue(('x', ks), f"ds_read_b64_tr_b16 v[{XF+4*ks+2}:{XF+4*ks+3}], v{V_XR} offset:{1024*ks+512}")
    SM, S0, S1 = ACC, ACC+4, ACC+8
    VACC = ACC+16; VM_ = ACC+12
    WOB = {0: AF, 1: AF+8, 2: AF+16, 3: AF+24, 4: AF+32, 5: VS, 6: VS+8, 7: XF+8, 8: ACC+4, 9: ACC+16}
    def wo_read(tt, h):
        b = WOB[tt] + 4*h
        return lambda: lg.issue(('wo', tt), f"ds_read_b128 v[{b}:{b+3}], v{V_WO} offset:{2048*tt+1024*h}")
    WSCH = opts.get('wsched', 0)
    vfill = {4: wo_read(0, 0), 6: wo_read(0, 1), 8: wo_read(5, 0), 9: wo_read(5, 1)}
    if WSCH == 0: vfill = {3: wo_read(0, 0), 4: wo_read(0, 1), 5: wo_read(5, 0), 6: wo_read(5, 1), 7: wo_read(1, 0), 8: wo_read(1, 1), 9: wo_read(6, 0)}
    for c in range(3, 10):
        smf(ACC+16, c, wr('v', c))
        if c in vfill: vfill[c]()
    if fine == 1: lg.waitall(); fstamp(2)
    mains = []
    for ks in range(4):
        x = f"v[{XF+4*ks}:{XF+4*ks+3}]"
        def ma(ks=ks, x=x):
            lg.wait(('x', ks))
            cm = f"v[{V_CNEG}:{V_CNEG+3}]" if ks == 0 else f"v[{SM}:{SM+3}]"
            a(f"v_mfma_f32_16x16x32_bf16 v[{SM}:{SM+3}], {x}, {x}, {cm}")
        mains.append(ma)
        for kt, Sx in ((0, S0), (1, S1)):
            def mb(ks=ks, kt=kt, Sx=Sx, x=x):
                k = f"v[{KT+4*(2*ks+kt)}:{KT+4*(2*ks+kt)+3}]"
                cs = "0" if ks == 0 else f"v[{Sx}:{Sx+3}]"
                a(f"v_mfma_f32_16x16x32_bf16 v[{Sx}:{Sx+3}], {k}, {x}, {cs}")
            mains.append(mb)
    sfill = [[], [wo_read(6, 0)], [wo_read(6, 1)],
             [I(f"v_pk_add_f32 v[{VACC}:{VACC+1}], v[{VACC}:{VACC+1}], v[{VACC+2}:{VACC+3}]")],
             [wo_read(1, 0), I(f"v_cvt_pk_bf16_f32 v{VACC+2}, v{VACC}, v{VACC+1}")],
             [lambda: lg.issue('vw', f"ds_write_b32 v{V_VEW}, v{VACC+2}"), lambda: lg.issue('vm', f"ds_read_b64 v[{VM_}:{VM_+1}], v{V_VER}")],
             [wo_read(1, 1)], [wo_read(2, 0)], [wo_read(2, 1)], [], [], []]
    if WSCH == 0:
        sfill = [[wo_read(6, 1)], [wo_read(2, 0)], [wo_read(2, 1)],
             [wo_read(3, 0), I(f"v_pk_add_f32 v[{VACC}:{VACC+1}], v[{VACC}:{VACC+1}], v[{VACC+2}:{VACC+3}]")],
             [wo_read(3, 1), I(f"v_cvt_pk_bf16_f32 v{VACC+2}, v{VACC}, v{VACC+1}")],
             [lambda: lg.issue('vw', f"ds_write_b32 v{V_VEW}, v{VACC+2}"), lambda: lg.issue('vm', f"ds_read_b64 v[{VM_}:{VM_+1}], v{V_VER}")],
             [wo_read(4, 0)], [wo_read(4, 1)], [], [], [], []]
    for m, fl in zip(mains, sfill):
        m()
        for f in fl: f()
    a(f"s_waitcnt vmcnt({6 if not opts.get('x_noext') else 0})")
    a(f"s_cmp_eq_u32 s{S_STEP}, {opts.get('last', 63)}"); a(f"s_cbranch_scc1 {P}_finish")
    if fine == 1: lg.waitall(); fstamp(3)
    MX = ACC+14; T1 = ACC+15
    a(f"v_max3_f32 v{MX}, v{SM}, v{SM+1}, v{SM+2}")
    a(f"v_max3_f32 v{T1}, v{SM+3}, v{S0}, v{S0+1}")
    a(f"v_max3_f32 v{MX}, v{MX}, v{S0+2}, v{S0+3}")
    a(f"v_max3_f32 v{T1}, v{T1}, v{S1}, v{S1+1}")
    a(f"v_max3_f32 v{MX}, v{MX}, v{S1+2}, v{S1+3}")
    a(f"v_max_f32 v{MX}, v{MX}, v{T1}")
    OUT = [KT+4*t for t in range(8)] + [XF, XF+4]
    zero = [I(f"v_mov_b64 v[{OUT[t]+2*h}:{OUT[t]+2*h+1}], 0") for t in range(10) for h in range(2)]
    a(f"v_mov_b32 v{T1}, v{MX}")
    if WSCH: wo_read(3, 0)(); wo_read(3, 1)()
    else: zero.pop(0)(); zero.pop(0)()
    a(f"v_permlane32_swap_b32 v{MX}, v{T1}")
    a(f"v_max_f32 v{MX}, v{MX}, v{T1}")
    a(f"v_mov_b32 v{T1}, v{MX}")
    if WSCH: wo_read(4, 0)(); wo_read(4, 1)()
    else: zero.pop(0)(); zero.pop(0)()
    a(f"v_permlane16_swap_b32 v{MX}, v{T1}")
    a(f"v_max_f32 v{MX}, v{MX}, v{T1}")
    a(f"v_mul_f32 v{MX}, s{S_C}, v{MX}")
    for r in range(0, 12, 2):
        a(f"v_pk_fma_f32 v[{ACC+r}:{ACC+r+1}], v[{ACC+r}:{ACC+r+1}], s[{S_C}:{S_C+1}], v[{MX}:{MX+1}] op_sel_hi:[1,1,0] neg_lo:[0,0,1] neg_hi:[0,0,1]")
    if fine == 1: fstamp(4)
    PT = VACC; PM = ACC+14
    for r in range(4, 12): a(f"v_exp_f32 v{ACC+r}, v{ACC+r}")
    a(f"v_exp_f32 v{SM}, v{SM}")
    a(f"v_cvt_pk_bf16_f32 v{PT}, v{S0}, v{S0+1}"); a(f"v_cvt_pk_bf16_f32 v{PT+1}, v{S0+2}, v{S0+3}")
    a(f"v_cvt_pk_bf16_f32 v{PT+2}, v{S1}, v{S1+1}"); a(f"v_cvt_pk_bf16_f32 v{PT+3}, v{S1+2}, v{S1+3}")
    a(f"v_exp_f32 v{SM+1}, v{SM+1}"); a(f"v_exp_f32 v{SM+2}, v{SM+2}")
    LL, OO = S0, S1
    a(f"v_mfma_f32_16x16x32_bf16 v[{LL}:{LL+3}], v[{V_ONES}:{V_ONES+3}], v[{PT}:{PT+3}], 0")
    a(f"v_exp_f32 v{SM+3}, v{SM+3}")
    a(f"v_mfma_f32_16x16x32_bf16 v[{OO}:{OO+3}], v[{V_VT}:{V_VT+3}], v[{PT}:{PT+3}], 0")
    a(f"v_cvt_pk_bf16_f32 v{PM}, v{SM}, v{SM+1}"); a(f"v_cvt_pk_bf16_f32 v{PM+1}, v{SM+2}, v{SM+3}")
    wo_read(7, 0)(); wo_read(7, 1)(); wo_read(9, 0)(); wo_read(9, 1)()
    lg.wait('vm')
    a(f"v_mfma_f32_16x16x16_bf16 v[{LL}:{LL+3}], v[{V_ONES}:{V_ONES+1}], v[{PM}:{PM+1}], v[{LL}:{LL+3}]")
    a(f"v_mfma_f32_16x16x16_bf16 v[{OO}:{OO+3}], v[{VM_}:{VM_+1}], v[{PM}:{PM+1}], v[{OO}:{OO+3}]")
    for _ in range(7): zero.pop(0)()
    if fine == 1: lg.waitall(); fstamp(5)
    a(f"v_rcp_f32 v{LL}, v{LL}")
    zero.pop(0)()
    a(f"v_pk_mul_f32 v[{OO}:{OO+1}], v[{OO}:{OO+1}], v[{LL}:{LL+1}] op_sel_hi:[1,0]")
    a(f"v_pk_mul_f32 v[{OO+2}:{OO+3}], v[{OO+2}:{OO+3}], v[{LL}:{LL+1}] op_sel_hi:[1,0]")
    a(f"v_cvt_pk_bf16_f32 v{OO}, v{OO}, v{OO+1}"); a(f"v_cvt_pk_bf16_f32 v{OO+1}, v{OO+2}, v{OO+3}")
    a(f"s_mov_b64 exec, {sp(S_EXO)}")
    lg.issue('ow', f"ds_write_b64 v{V_OEW}, v[{OO}:{OO+1}]")
    a("s_mov_b64 exec, -1")
    while zero: zero.pop(0)()
    efm = a.newlabel(P + "_efm"); efm2 = a.newlabel(P + "_efm2")
    a(f"s_cmp_ge_u32 s{S_STEP}, 62"); a(f"s_cbranch_scc1 {efm}")
    a.label(efm + "_r")
    lg.waitall()
    if fine == 1: fstamp(6)
    a("s_barrier")
    def fn_efm():
        a.label(efm)
        a("s_waitcnt vmcnt(0)")
        a(f"s_branch {efm}_r")
        a.label(efm2)
        a("s_mov_b64 exec, 1")
        a(f"v_mov_b32 v{ACC+14}, s{S_STEP}")
        a(f"global_store_dword v{V_L8}, v{ACC+14}, {sp(S_FM)} sc1")
        a("s_mov_b64 exec, -1")
        a(f"s_branch {efm2}_r")
    a.defer(fn_efm)
    stamp(1)
    OA = ACC
    lg.issue('oa', f"ds_read_b128 v[{OA}:{OA+3}], v{V_OER}")
    wo_read(8, 0)(); wo_read(8, 1)()
    a(f"s_cmp_ge_u32 s{S_STEP}, 62"); a(f"s_cbranch_scc1 {efm2}")
    a.label(efm2 + "_r")
    XT = XF+8
    lg.wait('oa')
    if fine == 1: lg.waitall(); fstamp(7)
    def osm(tt):
        b = WOB[tt]
        a(f"v_smfmac_f32_16x16x64_bf16 v[{OUT[tt]}:{OUT[tt]+3}], v[{OA}:{OA+3}], v[{b}:{b+7}], v{V_IDX}")
    DST = {0: OUT[0], 1: OUT[0]+2, 2: OUT[4], 3: OUT[4]+2, 4: OUT[8]}
    def post(t):
        o0, o1 = OUT[2*t], OUT[2*t+1]
        d = DST[t]
        L = [I(f"v_pk_add_f32 v[{o0}:{o0+1}], v[{o0}:{o0+1}], v[{o0+2}:{o0+3}]"),
             I(f"v_pk_add_f32 v[{o1}:{o1+1}], v[{o1}:{o1+1}], v[{o1+2}:{o1+3}]"),
             I(f"v_cvt_pk_bf16_f32 v{d}, v{o0}, v{o0+1}"),
             I(f"v_cvt_pk_bf16_f32 v{d+1}, v{o1}, v{o1+1}"),
             I(f"v_and_or_b32 v{d}, v{d}, -2, s{S_TAG}")]
        if t in (1, 3): L.append(I(f"global_store_dwordx4 v{V_L16}, v[{DST[t-1]}:{DST[t-1]+3}], {sp(S_PST)} offset:{1024*(t//2)} {LS}"))
        elif t == 4: L.append(I(f"global_store_dwordx2 v{V_L8}, v[{d}:{d+1}], {sp(S_PST)} offset:2048 {LS}"))
        return L
    p = [post(t) for t in range(5)]
    sal = []
    for r, b, o in ((S_PUBR, B_PUBR, S_OFFR), (S_PUBL, B_PUBL, S_OFFX), (S_GL, B_GL, S_OFFX), (S_GR, B_GR, S_OFFR)):
        sal.append(I(f"s_add_u32 s{r}, s{b}, s{o}")); sal.append(I(f"s_addc_u32 s{r+1}, s{b+1}, 0"))
    if opts.get('p2', 0):
        osm(0); sal[0](); sal[1]()
        osm(1); sal[2](); sal[3]()
        osm(2); sal[4](); sal[5]()
        osm(3); p[0][0](); sal[6]()
        osm(4); p[0][1](); sal[7]()
        osm(5); p[0][2]()
        osm(6); p[0][3]()
        osm(7); p[1][0]()
        osm(9); p[1][1]()
        lg.wait(('wo', 8)); osm(8); p[1][2]()
        p[1][3](); p[0][4](); p[1][4](); p[1][5]()
        for t in (2, 3, 4):
            for f in p[t]: f()
        a(f"v_add_u32 v{XT+4}, s{S_XMW}, v{V_XR}")
        lg.issue('xt', f"ds_read_b64_tr_b16 v[{XT}:{XT+1}], v{XT+4}")
        lg.issue('xt', f"ds_read_b64_tr_b16 v[{XT+2}:{XT+3}], v{XT+4} offset:512")
    else:
        osm(0); osm(1); osm(2); osm(3); osm(4); osm(5); osm(6); osm(7)
        a(f"v_add_u32 v{XT+4}, s{S_XMW}, v{V_XR}")
        p[0][0](); osm(9); p[0][1]()
        lg.wait(('wo', 8)); osm(8)
        lg.issue('xt', f"ds_read_b64_tr_b16 v[{XT}:{XT+1}], v{XT+4}")
        lg.issue('xt', f"ds_read_b64_tr_b16 v[{XT+2}:{XT+3}], v{XT+4} offset:512")
        for f in p[0][2:]: f()
        for t in (1, 2, 3, 4):
            for f in p[t]: f()
        for f in sal: f()
    stamp(2)
    rt('B')
    nored = a.newlabel(P + "_nored"); redj = a.newlabel(P + "_redj")
    if opts.get('nocomm'): a(f"s_branch {redj}")
    a(f"s_cmp_eq_u32 s{S_RACT}, 0"); a(f"s_cbranch_scc1 {nored}")
    def fn_nored():
        a.label(nored)
        if not opts.get('hint', 0):
            a(f"s_branch {redj}"); return
        a(f"s_cmp_eq_u32 s{S_W}, 3"); a(f"s_cbranch_scc0 {redj}")
        a(f"s_add_u32 s{S_T0}, s{S_STEP}, 1")
        a("s_mov_b64 exec, 1")
        a(f"v_mov_b32 v{XF+2}, s{S_T0}")
        a(f"global_store_dword v{V_L8}, v{XF+2}, {sp(S_HW)} sc1")
        a("s_mov_b64 exec, -1")
        a(f"s_mov_b32 s{S_SPIN}, 0")
        a("s_waitcnt lgkmcnt(0)")
        hl = a.newlabel(P + "_hl"); hd = a.newlabel(P + "_hd")
        a.label(hl)
        a(f"s_load_dword s{S_T1}, {sp(S_HR)}, 0x0 glc")
        a(f"s_add_u32 s{S_SPIN}, s{S_SPIN}, 1")
        a("s_waitcnt lgkmcnt(0)")
        a(f"s_cmp_eq_u32 s{S_T1}, s{S_T0}"); a(f"s_cbranch_scc1 {hd}")
        a(f"s_cmp_lt_u32 s{S_SPIN}, {SPIN_MAX}"); a(f"s_cbranch_scc1 {hl}")
        a("s_endpgm")
        a.label(hd)
        backoff(a, opts.get('d_hint', 12), opts)
        a(f"s_branch {redj}")
    a.defer(fn_nored)
    backoff(a, D_RED, opts)
    RD = AF; RA = AF + 48; TM = AF + 52; PB = KT
    MSK = [S_T0, S_T2, S_PST, S_EXX]
    def r_load(t, RD=RD): a(f"global_load_dwordx4 v[{RD+4*t}:{RD+4*t+3}], v{V_RL}, {sp(S_RL+2*t)} sc1")
    RMODE = opts.get('rmode', 2)
    def r_reduce(RDx, younger):
        for t in range(4):
            a(f"s_waitcnt vmcnt({3-t+younger})")
            c = "0" if t == 0 else f"v[{RA}:{RA+3}]"
            a(f"v_mfma_f32_16x16x32_bf16 v[{RA}:{RA+3}], v[{V_SEL}:{V_SEL+3}], v[{RDx+4*t}:{RDx+4*t+3}], {c}")
            if t == 0: a(f"v_xor_b32 v{TM}, s{S_TAG}, v{RDx}")
            else: a(f"v_bitop3_b32 v{TM}, v{TM}, v{RDx+4*t}, s{S_TAG} bitop3:0xf6")
            a(f"v_bitop3_b32 v{TM}, v{TM}, v{RDx+4*t+2}, s{S_TAG} bitop3:0xf6")
        a(f"v_and_b32 v{TM}, 1, v{TM}")
        a(f"v_cmp_ne_u32 vcc, 0, v{TM}")
    rt('C')
    for t in range(4): r_load(t)
    if RMODE == 2:
        backoff(a, opts.get('d_r2', 6), opts)
        for t in range(4): r_load(t, RD+16)
    r_reduce(RD, 4 if RMODE == 2 else 0)
    rs1 = a.newlabel(P + "_rs1"); rok = a.newlabel(P + "_rok")
    a(f"s_cbranch_vccnz {rs1}")
    a.label(rok)
    rt('D')
    def masked_poll(stub, nld, check_fn, load_fn, cnt_reg, depth):
        a(f"s_mov_b32 s{S_SPIN}, 0")
        a("s_or_b32 exec_lo, vcc_lo, 1"); a("s_mov_b32 exec_hi, vcc_hi")
        for _ in range(depth - 1):
            for t in range(nld): load_fn(t)
        a.label(stub + "_l")
        for t in range(nld): load_fn(t)
        if prof: a(f"s_add_u32 s{cnt_reg}, s{cnt_reg}, 1")
        a(f"s_add_u32 s{S_SPIN}, s{S_SPIN}, 1")
        a(f"s_waitcnt vmcnt({nld*(depth-1)})")
        check_fn()
        a(f"s_cbranch_vccz {stub}_ok")
        a("s_or_b32 exec_lo, vcc_lo, 1"); a("s_mov_b32 exec_hi, vcc_hi")
        a(f"s_cmp_lt_u32 s{S_SPIN}, {SPIN_MAX}"); a(f"s_cbranch_scc1 {stub}_l")
        a("s_endpgm")
        a.label(stub + "_ok")
        a("s_mov_b64 exec, -1")
    def r_check():
        a(f"v_xor_b32 v{TM}, s{S_TAG}, v{RD}")
        a(f"v_bitop3_b32 v{TM}, v{TM}, v{RD+2}, s{S_TAG} bitop3:0xf6")
        for t in range(1, 4):
            a(f"v_bitop3_b32 v{TM}, v{TM}, v{RD+4*t}, s{S_TAG} bitop3:0xf6")
            a(f"v_bitop3_b32 v{TM}, v{TM}, v{RD+4*t+2}, s{S_TAG} bitop3:0xf6")
        a(f"v_and_b32 v{TM}, 1, v{TM}")
        a(f"v_cmp_ne_u32 vcc, 0, v{TM}")
    def fn_rslow():
        a.label(rs1)
        if RMODE == 2:
            a(f"s_mov_b32 s{S_SPIN}, 0")
            a.label(rs1 + "_l")
            for (x, y) in ((RD, RD+16), (RD+16, RD)):
                if prof: a(f"s_add_u32 s{PRT[2]}, s{PRT[2]}, 1")
                for t in range(4): r_load(t, x)
                r_reduce(y, 4)
                nx = a.newlabel(rs1 + "_n")
                a(f"s_cbranch_vccnz {nx}")
                a("s_nop 7"); a(f"s_branch {rok}")
                a.label(nx)
            a(f"s_add_u32 s{S_SPIN}, s{S_SPIN}, 1"); a(f"s_cmp_lt_u32 s{S_SPIN}, {SPIN_MAX}"); a(f"s_cbranch_scc1 {rs1}_l")
            a("s_endpgm")
            return
        masked_poll(rs1, 4, r_check, r_load, PRT[2], opts.get('dr', 1))
        for t in range(4):
            c = "0" if t == 0 else f"v[{RA}:{RA+3}]"
            a(f"v_mfma_f32_16x16x32_bf16 v[{RA}:{RA+3}], v[{V_SEL}:{V_SEL+3}], v[{RD+4*t}:{RD+4*t+3}], {c}")
        a("s_nop 7"); a(f"s_branch {rok}")
    a.defer(fn_rslow)
    for r in range(4): a(f"v_add_f32_dpp v{RA+r}, v{RA+r}, v{RA+r} row_ror:8 row_mask:0xf bank_mask:0xf")
    a(f"v_cvt_pk_bf16_f32 v{PB}, v{RA}, v{RA+1}"); a(f"v_cvt_pk_bf16_f32 v{PB+1}, v{RA+2}, v{RA+3}")
    a(f"v_permlane16_swap_b32 v{PB}, v{PB+2}"); a(f"v_permlane16_swap_b32 v{PB+1}, v{PB+3}")
    a(f"v_and_or_b32 v{PB}, v{PB}, -2, s{S_TAG}"); a(f"v_and_or_b32 v{PB+2}, v{PB+2}, -2, s{S_TAG}")
    a("s_mov_b64 exec, 0xff")
    a(f"global_store_dwordx4 v{V_L16}, v[{PB}:{PB+3}], {sp(S_PUBR)} sc1")
    a(f"global_store_dwordx4 v{V_L16}, v[{PB}:{PB+3}], {sp(S_PUBL)} {LS}")
    a("s_mov_b64 exec, -1")
    a.label(redj)
    rt('E')
    a("s_barrier")
    rt('F')
    stamp(3)
    lg.waitall()
    a(f"v_mov_b64 v[{VMC}:{VMC+1}], v[{VM_}:{VM_+1}]")
    a(f"v_mov_b32 v{FMV}, s{S_STEP}")
    for r in range(0, 20, 2): a(f"v_mov_b64 v[{ACC+r}:{ACC+r+1}], 0")
    if opts.get('nocomm'): D_LOC = 0
    backoff(a, D_LOC, opts)
    GLc = AF; GF = AF + 12; TMG = AF + 48
    GR = KT
    def g_load(base, sb):
        def f(t):
            if t == 0: a(f"global_load_dwordx4 v[{base}:{base+3}], v{V_L16}, {sp(sb)} sc1")
            elif t == 1: a(f"global_load_dwordx4 v[{base+4}:{base+7}], v{V_L16}, {sp(sb)} offset:1024 sc1")
            else: a(f"global_load_dwordx2 v[{base+8}:{base+9}], v{V_L8}, {sp(sb)} offset:2048 sc1")
        return f
    def chk(base):
        a(f"v_xor_b32 v{TMG}, s{S_TAG}, v{base}")
        for o in (2, 4, 6, 8): a(f"v_bitop3_b32 v{TMG}, v{TMG}, v{base+o}, s{S_TAG} bitop3:0xf6")
        a(f"v_and_b32 v{TMG}, 1, v{TMG}")
        a(f"v_cmp_ne_u32 vcc, 0, v{TMG}")
    GM = [S_T0, S_T2, S_EXX]
    def gmasks(base):
        def f():
            for t in range(3): a(f"v_xor_b32 v{TMG+t}, s{S_TAG}, v{base+4*t}")
            for t in range(3): a(f"v_and_b32 v{TMG+t}, 1, v{TMG+t}")
            for t in range(3): a(f"v_cmp_ne_u32 {sp(GM[t])}, 0, v{TMG+t}")
        return f
    rt('G')
    if opts.get('nocomm'): g_load = lambda base, sb: (lambda t: None)
    for t in range(3): g_load(GLc, S_GL)(t)
    for _ in range(D_REM): a("s_nop 7")
    rt('H')
    GMODE = opts.get('gmode', 1)
    GR1 = KT + 10
    for t in range(3): g_load(GR, S_GR)(t)
    stamp(6)
    a(f"s_add_u32 s{S_STEP}, s{S_STEP}, 1")
    a(f"s_xor_b32 s{S_OFFP}, s{S_OFFP}, {64*10240}")
    a(f"s_xor_b32 s{S_OFFX}, s{S_OFFX}, 20480"); a(f"s_xor_b32 s{S_OFFR}, s{S_OFFR}, 65536")
    part_bases()
    a(f"s_and_b32 s{S_T0}, s{S_STEP}, 1"); a(f"s_lshl_b32 s{S_T0}, s{S_T0}, 13"); a(f"s_add_u32 s{S_T0}, s{S_T0}, {L_KTB}")
    a(f"v_add_u32 v{V_KT}, s{S_T0}, v{V_L16}")
    a(f"s_xor_b32 s{S_T0}, s{S_STEP}, 1"); a(f"s_and_b32 s{S_T0}, s{S_T0}, 1"); a(f"s_lshl_b32 s{S_T0}, s{S_T0}, 13"); a(f"s_add_u32 s{S_T0}, s{S_T0}, {L_KTB}")
    a(f"s_lshl_b32 s{S_T1}, s{S_W}, 11"); a(f"s_add_u32 s{S_M0KT}, s{S_T0}, s{S_T1}")
    a(f"s_cmp_lt_u32 s{S_STEP}, 63"); a(f"s_cselect_b32 s{S_T0}, {32*8192}, 0")
    sadd64(a, S_KT, S_KT, f"s{S_T0}")
    sadd64(a, S_VT, S_VT, 32*8192)
    a(f"s_add_u32 s{S_NEED}, s{S_STEP}, 2"); a(f"s_min_u32 s{S_NEED}, s{S_NEED}, 64")
    a(f"s_mov_b32 s{S_XM}, s{S_XMN}"); a(f"s_mov_b32 s{S_XM+1}, s{S_XMN+1}"); a(f"s_mov_b32 s{S_VM}, s{S_VMN}"); a(f"s_mov_b32 s{S_VM+1}, s{S_VMN+1}")
    sadd64(a, S_XMN, S_XMN, 32*4096); sadd64(a, S_VMN, S_VMN, 32*4096)
    if GMODE == 2:
        backoff(a, opts.get('d_g2', 0), opts)
        for t in range(3): g_load(GR1, S_GR)(t)
    a(f"s_waitcnt vmcnt({6 if GMODE == 2 else 3})")
    lre = a.newlabel(P + "_lre"); lok = a.newlabel(P + "_lok")
    chk(GLc)
    if not opts.get('nocomm'): a(f"s_cbranch_vccnz {lre}")
    a.label(lok)
    def fn_l():
        a.label(lre)
        masked_poll(lre, 3, lambda: chk(GLc), g_load(GLc, S_GL), PRT[0], 2)
        a("s_waitcnt vmcnt(0)")
        a(f"s_branch {lok}")
    a.defer(fn_l)
    rt('I')
    stamp(8)
    for i in range(10):
        a(f"v_lshlrev_b32 v{GF+2*i}, 16, v{GLc+i}"); a(f"v_and_b32 v{GF+2*i+1}, 0xffff0000, v{GLc+i}")
    def stage(G):
        def dots(i):
            a(f"v_dot2_f32_bf16 v{GF+2*i}, v{G+i}, s{S_LO}, v{GF+2*i}")
            a(f"v_dot2_f32_bf16 v{GF+2*i+1}, v{G+i}, s{S_HI}, v{GF+2*i+1}")
        def cv(i): a(f"v_cvt_pk_bf16_f32 v{GLc+i}, v{GF+2*i}, v{GF+2*i+1}")
        for i in range(4): dots(i)
        for t in range(5):
            cv(2*t); cv(2*t+1)
            a(f"ds_write_b64 v{V_IW2}, v[{GLc+2*t}:{GLc+2*t+1}] offset:{512*t}")
            for i in (2*t+4, 2*t+5):
                if i < 10: dots(i)
    a(f"s_waitcnt vmcnt({3 if GMODE == 2 else 0})")
    chk(GR)
    gs1 = a.newlabel(P + "_gs1"); gok = a.newlabel(P + "_gok")
    if not opts.get('nocomm'): a(f"s_cbranch_vccnz {gs1}")
    if GMODE == 2:
        stamp(4)
        rt('J')
        stage(GR)
        a.label(gok)
        def fn_gslow():
            a.label(gs1)
            a(f"s_mov_b32 s{S_SPIN}, 0")
            a.label(gs1 + "_l")
            for (x, y) in ((GR, GR1), (GR1, GR)):
                if prof: a(f"s_add_u32 s{PRT[1]}, s{PRT[1]}, 1")
                for t in range(3): g_load(x, S_GR)(t)
                a("s_waitcnt vmcnt(3)")
                chk(y)
                nx = a.newlabel(gs1 + "_n")
                a(f"s_cbranch_vccnz {nx}")
                rt('J')
                stage(y)
                a(f"s_branch {gok}")
                a.label(nx)
            a(f"s_add_u32 s{S_SPIN}, s{S_SPIN}, 1"); a(f"s_cmp_lt_u32 s{S_SPIN}, {SPIN_MAX}"); a(f"s_cbranch_scc1 {gs1}_l")
            a("s_endpgm")
        a.defer(fn_gslow)
    else:
        a.label(gok)
        def fn_gslow():
            a.label(gs1)
            masked_poll(gs1, 3, lambda: chk(GR), g_load(GR, S_GR), PRT[1], opts.get('dg', 2))
            a(f"s_branch {gok}")
        a.defer(fn_gslow)
        stamp(4)
        rt('J')
        stage(GR)
    rt('K')
    a("s_waitcnt lgkmcnt(0)")
    a(f"s_branch {P}_loop")
    a.label(P + "_finish")
    dbg_stamp(a, 15)
    if opts.get('steplog'):
        a("s_waitcnt lgkmcnt(0)")
        a(f"s_lshl_b32 s44, s{S_PROD}, 2"); a(f"s_add_u32 s44, s44, s{S_W}"); a("s_lshl_b32 s44, s44, 8"); a(f"s_add_u32 s44, s44, {WS_PROF}")
        a(f"v_lshrrev_b32 v{XF}, 2, v{V_L16}"); a(f"v_add_u32 v{XF}, s44, v{XF}")
        a(f"global_store_dword v{XF}, v{V_IW0}, {sp(P_WS)}")
    if rt_on:
        a("s_waitcnt lgkmcnt(0)")
        a(f"s_lshl_b32 s44, s{S_PROD}, 2"); a(f"s_add_u32 s44, s44, s{S_W}"); a("s_lshl_b32 s44, s44, 6"); a(f"s_add_u32 s44, s44, {WS_PROF}")
        a("s_mov_b64 exec, 1")
        a(f"v_mov_b32 v{XF}, s44")
        for i, kk in enumerate("ABCDEFGHIJK"):
            a(f"v_mov_b32 v{XF+1}, s{RT[kk] if RT[kk] is not None else RT['G']}"); a(f"global_store_dword v{XF}, v{XF+1}, {sp(P_WS)} offset:{4*i}"); a("s_nop 1")
        a("s_mov_b64 exec, -1")
    rt_stamp(a, 2, 140, opts.get('tl', 0))
    if prof:
        a(f"s_lshl_b32 s44, s{S_PROD}, 2"); a(f"s_add_u32 s44, s44, s{S_W}"); a("s_lshl_b32 s44, s44, 6"); a(f"s_add_u32 s44, s44, {WS_PROF}")
        a("s_mov_b64 exec, 1")
        a(f"v_mov_b32 v{XF}, s44")
        for i, r in enumerate(PROF[:6] + PRT + PROF[6:]):
            a(f"v_mov_b32 v{XF+1}, s{r}"); a(f"global_store_dword v{XF}, v{XF+1}, {sp(P_WS)} offset:{4*i}"); a("s_nop 1")
        a("s_mov_b64 exec, -1")
    a("s_waitcnt lgkmcnt(0)")
    a(f"v_add_u32 v{AF+4}, s{S_XMW}, v{V_XR}")
    a(f"ds_read_b64_tr_b16 v[{AF}:{AF+1}], v{AF+4}")
    a(f"ds_read_b64_tr_b16 v[{AF+2}:{AF+3}], v{AF+4} offset:512")
    a("s_waitcnt lgkmcnt(0)")
    a(f"global_store_dwordx4 v{V_L16}, v[{AF}:{AF+3}], {sp(S_XMN)} sc1")
    a(f"global_store_dwordx2 v{V_L8}, v[{ACC+12}:{ACC+13}], {sp(S_VMN)} sc1")
    a("s_waitcnt vmcnt(0)")
    a("s_barrier")
    a(f"s_cmp_eq_u32 s{S_W}, 0"); a(f"s_cbranch_scc0 {P}_end")
    a("s_mov_b64 exec, 1")
    a(f"v_mov_b32 v{XF+2}, 64")
    a(f"global_store_dword v{V_L8}, v{XF+2}, {sp(S_FM)} sc1")
    a("s_waitcnt vmcnt(0)")
    rt_stamp(a, 8, 140, opts.get('tl', 0))
    a.label(P + "_end")
    a("s_endpgm")
    a.flush()
```

```python
import sys
from gen_common import *
from gen_init import gen_ln
from gen_proj import gen_proj

XA, XB = 0, 1

OVERVIEW = """
One persistent launch, 256 workgroups (one per CU, 4 waves x 512 registers, 160 KB LDS). Each workgroup takes a ticket of the die
(XCD) it really runs on; die + ticket select a role. Weights stay in registers / LDS, activations flow through d_ws in MFMA fragment
order, guarded by progress words (sc1 store after the data stores have completed, sc1 loads on the reading side).
  LN  layer norm of one 32-token segment (bf16 roundings as in the reference)              -> XN
  K,Q,V  token keys / queries / values of one head, all 64 segments                          -> KT, QT, VT
  H   mish(xn @ w1 + b1), 128 columns                                                        -> H1
  R   the recurrence over the segments, strictly sequential: 64 workgroups on two dies, two per head. Per step: q,k,v of the 8
      memory rows (2:4 sparse MFMA used as an exact M=8 GEMM), scores over [memory ; tokens], softmax, P.V, half of the head's
      out-projection; the partial rows are reduced over the die (L2), exchanged between the two dies and gathered by everyone.
      Ring buffers carry a step tag in bit 0 of every 8 bytes. If the two dies are not filled by 32 native workgroups each, the
      same code runs with placement-independent (sc1) stores.                                -> k_m, v_m of every step (XM, VM)
  A   causal token attention of one (segment, head) per wave over [8 memory rows ; tokens]   -> OT
  F   out = x + O @ Wo + act @ w2, 32 output columns, every third segment
Every wait on another workgroup is bounded. Generated by the author's own scripts from hand-written instruction sequences.
"""

def gen_dispatch(a, roles, fake_xcc=None, tl=False):
    a.comment("workgroups beyond the 256 resident ones exit; the others take a ticket of the die they run on, which selects their role.")
    a("s_cmp_ge_u32 s2, 256")
    a("s_cbranch_scc1 L_exit")
    load_kernargs(a)
    a("v_lshrrev_b32 v1, 6, v0")
    a("v_readfirstlane_b32 s32, v1")
    if fake_xcc is None:
        a("s_getreg_b32 s36, hwreg(HW_REG_XCC_ID)")
        a("s_and_b32 s36, s36, 15")
    else:
        fake_xcc(a)
    a("s_waitcnt lgkmcnt(0)")
    a("s_cmp_eq_u32 s32, 0")
    a("s_cbranch_scc0 L_tk_wait")
    a("v_lshlrev_b32 v2, 2, v0"); a("s_lshl_b32 s37, s2, 8"); a("v_add_u32 v2, s37, v2"); a("v_mov_b32 v3, 0")
    a(f"global_store_dword v2, v3, {sp(P_WS)} sc1")
    a("s_and_b32 s37, s36, 3"); a("s_lshr_b32 s38, s36, 2"); a("s_lshl_b32 s38, s38, 5"); a("s_add_u32 s37, s37, s38")
    a("s_cmp_lt_u32 s36, 8"); a("s_cselect_b32 s37, s37, 10"); a("s_lshl_b32 s37, s37, 2")
    a("s_waitcnt vmcnt(0)")
    a("s_mov_b64 exec, 1")
    a("v_mov_b32 v2, 1")
    a("v_mov_b32 v3, s37")
    a(f"global_atomic_add v4, v3, v2, {sp(P_DBG)} sc0")
    a("s_waitcnt vmcnt(0)")
    a("v_readfirstlane_b32 s37, v4")
    a("s_cmp_lt_u32 s36, 8"); a("s_cselect_b32 s38, 1, 0")
    a("s_cmp_lt_u32 s37, 32"); a("s_cselect_b32 s39, 1, 0")
    a("s_and_b32 s38, s38, s39")
    a("s_cmp_eq_u32 s38, 1")
    a("s_cbranch_scc0 L_tk_float")
    a("s_lshl_b32 s33, s36, 5"); a("s_add_u32 s33, s33, s37")
    a("s_branch L_tk_have")
    a.label("L_tk_float")
    a("s_mov_b32 s38, 0")
    a("s_mov_b64 exec, -1")
    load_tickets(a, 6, 7, 0)
    a.label("L_tk_spin")
    a(f"global_load_dword v7, v6, {sp(P_DBG)} sc1")
    a("s_waitcnt vmcnt(0)")
    sum_tickets(a, 39, 40, 7)
    a("s_cmp_ge_u32 s39, 256"); a("s_cbranch_scc1 L_tk_all")
    a("s_sleep 8")
    a("s_add_u32 s38, s38, 1"); a("s_cmp_lt_u32 s38, 0x40000"); a("s_cbranch_scc1 L_tk_spin")
    a("s_endpgm")
    a.label("L_tk_all")
    a("s_mov_b64 exec, 1")
    a("v_mov_b32 v3, 36")
    a(f"global_atomic_add v4, v3, v2, {sp(P_DBG)} sc0")
    a("s_waitcnt vmcnt(0)")
    a("v_readfirstlane_b32 s37, v4")
    a("s_mov_b32 s33, 0x7fffffff")
    for x in range(8):
        nx = a.newlabel("L_tk_x")
        a(f"v_readlane_b32 s39, v7, {x}")
        a("s_min_u32 s39, s39, 32")
        a("s_sub_u32 s40, 32, s39")
        a("s_cmp_lt_u32 s37, s40"); a(f"s_cbranch_scc0 {nx}")
        a(f"s_add_u32 s33, s39, {32*x}"); a("s_add_u32 s33, s33, s37")
        a("s_branch L_tk_have")
        a.label(nx)
        a("s_sub_u32 s37, s37, s40")
    a.label("L_tk_have")
    a("v_mov_b32 v3, 0"); a("v_mov_b32 v4, s33")
    a("ds_write_b32 v3, v4")
    a("s_waitcnt lgkmcnt(0)")
    a("s_mov_b64 exec, -1")
    a.label("L_tk_wait")
    a("s_barrier")
    a("v_mov_b32 v3, 0")
    a("ds_read_b32 v4, v3")
    a("s_waitcnt lgkmcnt(0)")
    a("v_readfirstlane_b32 s33, v4")
    a("s_barrier")
    a("s_cmp_ge_u32 s33, 256"); a("s_cbranch_scc1 L_exit")
    if tl:
        a("s_mov_b32 s3, s33"); rt_stamp(a, 0, 250)
    a("s_lshr_b32 s35, s33, 5")
    a("s_and_b32 s34, s33, 31")
    table = {XA: 'RA', XB: 'RB'}
    rest = [x for x in range(8) if x not in (XA, XB)]
    for x, r in zip(rest, ['K', 'Q', 'V', 'F0', 'F1', 'F2']): table[x] = r
    def go(role):
        return f"s_branch L_{role}" if role in roles else "s_endpgm"
    for x in range(8):
        nx = a.newlabel("L_dx")
        a(f"s_cmp_eq_u32 s35, {x}"); a(f"s_cbranch_scc0 {nx}")
        r = table[x]
        if r in ('K', 'V', 'Q'): a(go(r))
        elif r == 'RA': a("s_mov_b32 s35, 0"); a(go('R'))
        elif r == 'RB': a("s_mov_b32 s35, 1"); a(go('R'))
        elif r in ('F0', 'F1', 'F2'):
            st = int(r[1]); n2 = a.newlabel("L_dh")
            a("s_cmp_lt_u32 s34, 20"); a(f"s_cbranch_scc0 {n2}")
            a(f"s_mov_b32 s35, {st}"); a(f"s_add_u32 s59, s34, {20*st}"); a("s_branch L_LN")
            a.label(n2)
            if st == 0:
                a("s_sub_u32 s34, s34, 20"); a(go('H'))
            elif st == 1:
                n3 = a.newlabel("L_da")
                a("s_cmp_lt_u32 s34, 22"); a(f"s_cbranch_scc0 {n3}")
                a("s_sub_u32 s34, s34, 8"); a(go('H'))
                a.label(n3)
                a("s_sub_u32 s34, s34, 22"); a(go('A'))
            else:
                a("s_sub_u32 s34, s34, 10")
                n4 = a.newlabel("L_dl")
                a("s_cmp_lt_u32 s34, 16"); a(f"s_cbranch_scc0 {n4}")
                a(go('A'))
                a.label(n4)
                a("s_add_u32 s59, s34, 44")
                a("s_cmp_lt_u32 s59, 64"); a("s_cbranch_scc1 L_LN")
                a("s_endpgm")
        a.label(nx)
    a.label("L_exit")
    a("s_endpgm")

def build(roles=('K', 'V', 'Q', 'H', 'R', 'A', 'F'), fake_xcc=None, opts=None):
    opts = opts or {}
    b = Asm()
    gen_dispatch(b, roles, fake_xcc, opts.get('tl', 0))
    gen_ln(b, opts.get('tl', 0))
    if 'F' not in roles:
        b.label("L_F_main"); b("s_endpgm")
    for k in ('K', 'V', 'Q', 'H'):
        if k in roles: gen_proj(b, k, opts)
    if 'R' in roles:
        from gen_r import gen_r
        gen_r(b, opts)
    if 'A' in roles:
        from gen_att import gen_att
        gen_att(b, opts)
    if 'F' in roles:
        from gen_fin import gen_fin
        gen_fin(b, opts)
    mega_lines = b.finish()
    hdr = open('cdna_kernels/' + NAME + '.s.ref').read().split('\n')
    top = []
    for l in hdr:
        if l.startswith('; @launch') or l.startswith('; Override') or l.startswith('; grid=ceil'): continue
        if not l.startswith(';'): break
        top.append(l)
    for line in OVERVIEW.strip().split("\n"): top.append("; " + line)
    top.append("; @launch grid=(256,1,1) block=(256,1,1) lds=163840")
    KN = NAME + "_kernel"
    out = top + ['.amdgcn_target "amdgcn-amd-amdhsa--gfx950"', '.text']
    out += ['.globl ' + KN, '.p2align 8', f'.type {KN},@function', KN + ':'] + mega_lines
    out += ['.section .rodata,"a"', '.p2align 6', f'.amdhsa_kernel {KN}', '  .amdhsa_next_free_vgpr 512', '  .amdhsa_next_free_sgpr 102', '  .amdhsa_accum_offset 256',
            '  .amdhsa_group_segment_fixed_size 0', '  .amdhsa_kernarg_size 112', '  .amdhsa_user_sgpr_count 2',
            '  .amdhsa_user_sgpr_kernarg_segment_ptr 1', '  .amdhsa_system_sgpr_workgroup_id_x 1', '.end_amdhsa_kernel']
    print(f"; max {b.maxreg} nops {b.nops_inserted} lines {len(out)}", file=sys.stderr)
    return '\n'.join(out) + '\n'

if __name__ == '__main__':
    roles = sys.argv[2].split(',') if len(sys.argv) > 2 else ['K', 'V', 'Q', 'H', 'R', 'A', 'F']
    opts = {}
    for kv in sys.argv[3:]:
        k, v = kv.split('='); opts[k] = int(v)
    fake = None
    if opts.get('fake') == 1:
        def fake(a):
            a("s_mul_hi_u32 s36, s2, 0x1c71c71d"); a("s_mul_i32 s36, s36, 9"); a("s_sub_u32 s36, s2, s36")
    if opts.get('fake') == 2:
        def fake(a):
            a("s_and_b32 s36, s2, 7"); a("s_add_u32 s36, s36, 8")
    src = build(roles, fake_xcc=fake, opts=opts)
    open(sys.argv[1], 'w').write(src)
```
